```python
import torch

def _softmax(x, axis=-1):
    return torch.softmax(x, dim=axis)
def _gelu(x):
    return torch.nn.functional.gelu(x, approximate="tanh")
def _silu(x):
    return torch.nn.functional.silu(x)
def _sigmoid(x):
    return torch.sigmoid(x)
def _layernorm(x, axis=-1, eps=1e-5):
    m = x.mean(dim=axis, keepdim=True)
    v = x.var(dim=axis, keepdim=True, unbiased=False)
    return (x - m) / torch.sqrt(v + eps)
def _scatter_add(tgt, idx, src, axis=0):
    return tgt.clone().index_add_(axis, idx, src)
def _segment_sum(src, seg, n):
    out = torch.zeros((n,) + src.shape[1:], dtype=src.dtype)
    return out.index_add_(0, seg, src)
def _pad(x, pw):
    flat = tuple(v for pair in reversed(pw) for v in pair)
    return torch.nn.functional.pad(x, flat)

kernel_name = 'interleave_layers__sliding_local_dilated__grouped_kv_mqa__prompt'

def setup_inputs():

    _w = (lambda a: (lambda t: t.to(torch.bfloat16) if t.is_floating_point() else t)(torch.as_tensor(a)))
    def _A_setup():
        B, S, D = 1, 2048, 576
        return {
            "x": _w((lambda *s: torch.randn(*s, dtype=torch.bfloat16) * 0.05)(B, S, D)),
            "wqkv": _w((lambda *s: torch.randn(*s, dtype=torch.bfloat16) * 0.05)(D, 3 * D)),
            "wo": _w((lambda *s: torch.randn(*s, dtype=torch.bfloat16) * 0.05)(D, D)),
        }
    _A_in = _A_setup()

    def _B_setup():
        B, S, D, H = 1, 2048, 576, 32
        Dh = D // H
        return {
            "x": _w((lambda *s: torch.randn(*s, dtype=torch.bfloat16) * 0.05)(B, S, D)),
            "wq": _w((lambda *s: torch.randn(*s, dtype=torch.bfloat16) * 0.05)(D, H * Dh)),
            "wk": _w((lambda *s: torch.randn(*s, dtype=torch.bfloat16) * 0.05)(D, Dh)),
            "wv": _w((lambda *s: torch.randn(*s, dtype=torch.bfloat16) * 0.05)(D, Dh)),
            "wo": _w((lambda *s: torch.randn(*s, dtype=torch.bfloat16) * 0.05)(H * Dh, D)),
        }
    _B_in = _B_setup()

    return {
        "A_x": _A_in["x"],
        "A_wqkv": _A_in["wqkv"],
        "A_wo": _A_in["wo"],
        "B_x": _B_in["x"],
        "B_wq": _B_in["wq"],
        "B_wk": _B_in["wk"],
        "B_wv": _B_in["wv"],
        "B_wo": _B_in["wo"],
    }

def reference(A_x, A_wqkv, A_wo, B_x, B_wq, B_wk, B_wv, B_wo):
    def _A_ref(x, wqkv, wo):
        B, S, D = x.shape
        H = 32; Dh = D // H
        W, dil = 8, 2
        qkv = (lambda x, *d: x.permute(*d))((x @ wqkv).reshape(B, S, 3, H, Dh), 2, 0, 3, 1, 4)
        q, k, v = qkv[0], qkv[1], qkv[2]
        scale = Dh ** -0.5
        pos = torch.arange(S)
        off = torch.arange(W) * dil
        idx = pos[:, None] - off[None, :]
        mask = idx >= 0
        idx_c = torch.where(mask, idx, 0).reshape(-1)
        kg = k[:, :, idx_c, :].reshape(B, H, S, W, Dh)
        vg = v[:, :, idx_c, :].reshape(B, H, S, W, Dh)
        logits = torch.einsum("bhsd,bhswd->bhsw", q, kg) * scale
        logits = torch.where(mask[None, None, :, :], logits, -1e9)
        attn = _softmax(logits, axis=-1)
        o = torch.einsum("bhsw,bhswd->bhsd", attn, vg)
        return (lambda x, *d: x.permute(*d))(o, 0, 2, 1, 3).reshape(B, S, D) @ wo

    def _B_ref(x, wq, wk, wv, wo):
        B, S, D = x.shape
        H = 32
        Dh = D // H
        q = (lambda x, *d: x.permute(*d))((x @ wq).reshape(B, S, H, Dh), 0, 2, 1, 3)
        k = x @ wk
        v = x @ wv
        scores = torch.einsum("bhqd,bkd->bhqk", q, k) * (Dh ** -0.5)
        p = _softmax(scores, axis=-1)
        o = torch.einsum("bhqk,bkd->bhqd", p, v)
        return (lambda x, *d: x.permute(*d))(o, 0, 2, 1, 3).reshape(B, S, H * Dh) @ wo

    x = A_x
    x = x + _A_ref(_layernorm(x, axis=-1), A_wqkv, A_wo)
    x = x + _B_ref(_layernorm(x, axis=-1), B_wq, B_wk, B_wv, B_wo)
    x = x + _A_ref(_layernorm(x, axis=-1), A_wqkv, A_wo)
    x = x + _B_ref(_layernorm(x, axis=-1), B_wq, B_wk, B_wv, B_wo)
    return x
```

```python
import re

REG_RE = re.compile(r'(?<![\w.])([vas])(?:(\d+)|\[(\d+):(\d+)\])(?![\w])')
TRANS = ('v_exp_f32', 'v_log_f32', 'v_rcp_f32', 'v_rsq_f32', 'v_sqrt_f32', 'v_sin_f32', 'v_cos_f32')


def regs_of(op):
    out = set()
    for m in REG_RE.finditer(op):
        k = m.group(1)
        if m.group(2) is not None:
            out.add((k, int(m.group(2))))
        else:
            for i in range(int(m.group(3)), int(m.group(4)) + 1):
                out.add((k, i))
    if re.search(r'\bvcc\b', op):
        out |= {('s', 'vcc')}
    if re.search(r'\bm0\b', op):
        out |= {('s', 'm0')}
    if re.search(r'\bexec(_lo|_hi)?\b', op):
        out |= {('s', 'exec')}
    return out


def split_ops(s):
    ops, depth, cur = [], 0, ''
    for ch in s:
        if ch in '[(':
            depth += 1
        if ch in '])':
            depth -= 1
        if ch == ',' and depth == 0:
            ops.append(cur.strip()); cur = ''
        else:
            cur += ch
    if cur.strip():
        ops.append(cur.strip())
    return ops


class Ins:
    def __init__(self, text):
        self.text = text
        t = text.split(';')[0].strip()
        parts = t.split(None, 1)
        self.mn = mn = parts[0]
        ops = split_ops(parts[1]) if len(parts) > 1 else []
        self.ops = ops
        self.mfma = mn.startswith('v_mfma')
        self.valu = mn.startswith('v_') and not self.mfma
        self.ds = mn.startswith('ds_')
        self.vmem = mn.startswith('buffer_') or mn.startswith('global_')
        self.salu = mn.startswith('s_')
        self.trans = mn in TRANS
        self.dot = mn.startswith('v_dot')
        self.permlane = mn.startswith('v_permlane')
        self.dpp = '_dpp' in mn
        self.readlane = mn in ('v_readfirstlane_b32', 'v_readlane_b32')
        self.ldsdma = self.vmem and bool(re.search(r'\blds\b', t))
        self.states = 1
        if mn == 's_nop':
            self.states = int(ops[0], 0) + 1
        R = [regs_of(o) for o in ops]
        w, r = set(), set()
        self.store_data = set()
        if self.mfma:
            w = R[0]; self.A, self.B, self.C = R[1], R[2], R[3]
            r = R[1] | R[2] | R[3]
            self.passes = 16 if '_2b_' in mn else (8 if '32x32' in mn else 4)
        elif self.valu:
            if self.permlane:
                w = R[0] | R[1]; r = set(w)
            elif '_co_' in mn:
                w = R[0] | R[1]; r = set().union(*R[2:])
            else:
                w = R[0]; r = set().union(*R[1:]) if len(R) > 1 else set()
                if 'fmac' in mn or 'dot2c' in mn or self.dpp:
                    r |= R[0]
        elif self.ds:
            if 'read' in mn or 'permute' in mn or 'swizzle' in mn:
                w = R[0]; r = set().union(*R[1:])
            else:
                r = set().union(*R)
        elif self.vmem:
            if 'load' in mn and not self.ldsdma:
                w = R[0]; r = set().union(*R[1:])
            else:
                r = set().union(*R)
                if self.ldsdma:
                    r |= {('s', 'm0')}
                if 'store' in mn and ('x4' in mn or 'x3' in mn):
                    self.store_data = R[0]
        elif self.salu:
            if mn.startswith(('s_cmp', 's_cbranch', 's_branch', 's_waitcnt', 's_nop', 's_barrier', 's_endpgm',
                              's_sleep', 's_bitcmp', 's_setprio')):
                r = set().union(*R) if R else set()
                if 'vcc' in mn:
                    r |= {('s', 'vcc')}
            else:
                w = R[0]; r = set().union(*R[1:]) if len(R) > 1 else set()
        self.w, self.r = w, r
        self.branch = ops[0] if mn.startswith(('s_cbranch', 's_branch')) else None


def vec(s):
    return {x for x in s if x[0] in 'va'}


def sca(s):
    return {x for x in s if x[0] == 's'}


def need(P, X):
    n = 0
    if P.valu:
        wv, ws = vec(P.w), sca(P.w)
        if wv & X.r:
            if X.mfma:
                n = max(n, 2)
            if X.permlane or X.dpp:
                n = max(n, 2)
            if X.readlane:
                n = max(n, 1)
            if P.trans:
                n = max(n, 1)
        if P.dot and (wv & (X.r | X.w)):
            same_c = X.dot and X.mn == P.mn and not (wv & set().union(*[regs_of(o) for o in X.ops[1:3]]))
            if not same_c:
                n = max(n, 3)
        if ws & X.r:
            if X.valu:
                n = max(n, 4 if X.mn in ('v_readlane_b32', 'v_writelane_b32') else 2)
            if X.vmem:
                n = max(n, 5)
            if X.salu:
                n = max(n, 1)
    if P.mfma:
        D = P.w
        big = {4: 8, 8: 12, 16: 20}[P.passes]
        if X.mfma:
            if D & (X.A | X.B):
                n = max(n, big)
            if D & X.C:
                if not (X.C == D and X.passes == P.passes):
                    n = max(n, big - 2)
            elif D & X.w:
                n = max(n, big - 2)
        elif X.valu or X.vmem or X.ds:
            if D & (X.r | X.w):
                n = max(n, big)
        if (X.valu or X.ds or X.vmem) and (vec(P.C) & X.w):
            n = max(n, {4: 3, 8: 7, 16: 15}[P.passes])
    if P.salu and ('s', 'm0') in P.w and X.ldsdma:
        n = max(n, 1)
    if P.store_data and (P.store_data & X.w):
        n = max(n, 2)
    return n


class Asm:
    def __init__(self):
        self.items = []
        self.vm = 0
        self.lg = 0
        self.nops = 0
        self.uid = 0

    def _pad(self, X, hist):
        dist, req = 0, 0
        for P in reversed(hist):
            if not isinstance(P, Ins):
                continue
            req = max(req, need(P, X) - dist)
            dist += P.states
            if dist >= 21:
                break
        return req

    def __call__(self, text):
        for line in text.strip().split('\n'):
            line = line.strip()
            if not line or line.startswith(';'):
                if line:
                    self.items.append('    ' + line)
                continue
            if line.endswith(':') or line.startswith('.'):
                self.items.append(line)
                continue
            X = Ins(line)
            req = self._pad(X, self.items[-64:])
            while req > 0:
                k = min(req, 16)
                self.items.append(Ins(f's_nop {k - 1}'))
                self.nops += 1
                req -= k
            self.items.append(X)
            if X.vmem:
                self.vm += 1
            if X.ds:
                self.lg += 1
        return self

    def label(self, prefix='L'):
        self.uid += 1
        return f'{prefix}_{self.uid}'

    def wait_vm(self, idx):
        self(f's_waitcnt vmcnt({min(63, self.vm - idx)})')

    def wait_lg(self, idx):
        self(f's_waitcnt lgkmcnt({min(15, self.lg - idx)})')

    def check_branches(self):
        pos = {it[:-1]: i for i, it in enumerate(self.items) if isinstance(it, str) and it.endswith(':')}
        bad = []
        for i, it in enumerate(self.items):
            if isinstance(it, Ins) and it.branch:
                t = pos[it.branch]
                hist = list(self.items[max(0, i - 64):i + 1])
                cnt = 0
                for X in self.items[t:]:
                    if not isinstance(X, Ins):
                        continue
                    if self._pad(X, hist) > 0:
                        bad.append((it.text, X.text, self._pad(X, hist)))
                    hist.append(X)
                    cnt += X.states
                    if cnt > 21 or X.mn in ('s_branch', 's_endpgm'):
                        break
        return bad

    def text(self):
        return '\n'.join(('    ' + it.text) if isinstance(it, Ins) else it for it in self.items) + '\n'
```

```python
import sys, struct, math
from asmlib import Asm

NAME = 'interleave_layers__sliding_local_dilated__grouped_kv_mqa__prompt'

FLAG = 0x1000
KVFLAG = 0x12000
KVIMG = 0x20000
KVSTR = 0x28000
STATS = 0x80000
STSTR = 0x20000
WA_P = 0x100000
WS_P = 0x300000
WSSTR = 0xB4000
WKV_P = 0x520000
ACT = 0x600000
ACTB = 0x240000
WS_SIZE = 0x1800000
TILE = 18432
GRP = 18944
STEP = 2240
L_KVW = 90 * 1024
L_HALO = 126 * 1024
L_X = 144 * 1024
L_EX = L_X
L_VT = L_X + 9216
VT_P = 288
L_CS = 156 * 1024
L_ST = L_CS + 1024
L_KM = L_ST + 2048
LDS_BYTES = 160 * 1024
POLL_LIMIT = 40000
BTHR = 50.0


def f2u(x):
    return struct.unpack('<I', struct.pack('<f', x))[0]


def vr(b, n=4):
    return f'v[{b}:{b + n - 1}]' if n > 1 else f'v{b}'


def ar(b, n=4):
    return f'a[{b}:{b + n - 1}]' if n > 1 else f'a{b}'


M16 = 'v_mfma_f32_16x16x32_bf16'
M16H = 'v_mfma_f32_16x16x16_bf16'
M32 = 'v_mfma_f32_32x32x16_bf16'
M32H = 'v_mfma_f32_32x32x8_bf16'
WS = 's[4:7]'
ONES = 'v[16:19]'


class Gen:
    def __init__(self, stop=99, force_fallback=False):
        self.a = Asm()
        self.stop = stop
        self.force_fallback = force_fallback

    def exec_mask(self, m):
        a = self.a
        if m == -1:
            a('s_mov_b64 exec, -1')
        else:
            a(f's_mov_b32 exec_lo, 0x{m & 0xffffffff:x}')
            a(f's_mov_b32 exec_hi, 0x{m >> 32:x}')

    def poll(self, sbase, sneed, wide=False):
        a = self.a
        L, D = a.label('POLL'), a.label('POLLD')
        a('s_mov_b32 s70, 0')
        a(f'{L}:')
        if wide:
            a(f'buffer_load_dwordx2 v[248:249], v14, {WS}, {sbase} offen sc1')
            a('s_waitcnt vmcnt(0)')
            a(f'v_subrev_u32 v15, {sneed}, v248')
        else:
            a(f'buffer_load_dword v15, v14, {WS}, {sbase} offen sc1')
            a('s_waitcnt vmcnt(0)')
            a(f'v_subrev_u32 v15, {sneed}, v15')
        a('v_cmp_le_u32 vcc, 16, v15')
        a('s_add_u32 s70, s70, 1')
        a(f's_cmp_gt_u32 s70, {POLL_LIMIT}')
        a(f's_cbranch_scc1 {D}')
        a(f's_cbranch_vccnz {L}')
        a(f'{D}:')

    def signal(self, stag):
        a = self.a
        L = a.label('SIG')
        a('s_cmp_lg_u32 s17, 0')
        a(f's_cbranch_scc1 {L}')
        for i in range(4):
            a(f'v_mov_b32 v{252 + i}, {stag}')
        self.exec_mask(0xff)
        a(f'buffer_store_dwordx4 v[252:255], v0, {WS}, s27 offen sc1')
        a.vm -= 1
        self.exec_mask(-1)
        a('s_nop 1')
        a(f'{L}:')

    def dma_linear(self, ssrc, lds0, kb, rounds):
        a = self.a
        for i in rounds:
            a(f's_add_u32 s28, s17, {4 * i}')
            a('s_lshl_b32 s28, s28, 12')
            if (4 * i + 4) * 4 > kb:
                a(f's_min_u32 s28, s28, {(kb - 4) * 1024}')
            a(f's_add_u32 s29, s28, {ssrc}')
            a(f's_add_u32 m0, s28, {lds0}')
            for k in range(4):
                a(f'buffer_load_dwordx4 v0, {WS}, s29 offen offset:{k * 1024} sc1 lds')

    def load_frag(self, s, areg, stile):
        a = self.a
        so = f's{stile + s // 4}'
        if s < 16:
            a(f'buffer_load_dwordx4 {ar(areg)}, v0, {WS}, {so} offen offset:{(s % 4) * 1024} sc1')
        else:
            a(f'buffer_load_dwordx2 {ar(areg, 2)}, v2, {WS}, {so} offen offset:{(s % 4) * 1024} sc1')
            a(f'buffer_load_dwordx2 {ar(areg + 2, 2)}, v2, {WS}, {so} offen offset:{(s % 4) * 1024 + 128} sc1')

    def tile_sgprs(self, stile):
        for i in range(1, 5):
            self.a(f's_add_u32 s{stile + i}, s{stile}, {4096 * i}')

    def allred(self, x, t, op='v_add_f32', both=True, only32=False):
        a = self.a
        a(f'v_mov_b32 v{t}, v{x}')
        a(f'v_permlane32_swap_b32 v{x}, v{t}')
        a(f'{op} v{x}, v{x}, v{t}')
        if not only32:
            a(f'v_mov_b32 v{t}, v{x}')
            a(f'v_permlane16_swap_b32 v{x}, v{t}')
            a(f'{op} v{x}, v{x}, v{t}')

    def rowmax(self, x):
        for n in (8, 4, 2, 1):
            self.a(f'v_max_f32_dpp v{x}, v{x}, v{x} row_ror:{n} row_mask:0xf bank_mask:0xf')

    def stats_finish(self, raw, nm, rs, t):
        a = self.a
        a(f'v_add_f32 v{raw}, v{raw}, v{raw + 2}')
        a(f'v_add_f32 v{raw + 1}, v{raw + 1}, v{raw + 3}')
        self.allred(raw, t)
        self.allred(raw + 1, t)
        a(f'v_mul_f32 v{nm}, 0x{f2u(-1.0 / 576):x}, v{raw}')
        a(f'v_mul_f32 v{raw + 1}, 0x{f2u(1.0 / 576):x}, v{raw + 1}')
        a(f'v_fma_f32 v{raw + 1}, -v{nm}, v{nm}, v{raw + 1}')
        a(f'v_max_f32 v{raw + 1}, 0, v{raw + 1}')
        a(f'v_add_f32 v{raw + 1}, 0x{f2u(1e-5):x}, v{raw + 1}')
        a(f'v_rsq_f32 v{rs}, v{raw + 1}')

    def stats_emit(self, frags, tail, d1, d2, soff):
        a = self.a
        first = True
        for f in frags:
            a(f'{M16} {vr(d1)}, {f}, {f}, {"0" if first else vr(d1)}')
            a(f'{M16} {vr(d2)}, {ONES}, {f}, {"0" if first else vr(d2)}')
            first = False
        if tail:
            a(f'{M16H} {vr(d1)}, {tail}, {tail}, {vr(d1)}')
            a(f'{M16H} {vr(d2)}, v[16:17], {tail}, {vr(d2)}')

    def stats_store(self, d1, d2, soff, vaddr):
        a = self.a
        a(f'v_cndmask_b32 v{d2 + 1}, v{d1}, v{d1 + 1}, s[42:43]')
        a(f'v_cndmask_b32 v{d2 + 1}, v{d2 + 1}, v{d1 + 2}, s[44:45]')
        a(f'v_cndmask_b32 v{d2 + 1}, v{d2 + 1}, v{d1 + 3}, s[46:47]')
        a('s_mov_b64 exec, s[40:41]')
        a(f'buffer_store_dwordx2 {vr(d2, 2)}, {vaddr}, {WS}, {soff} offen sc1')
        self.exec_mask(-1)

    def gather_lds(self, vaddr, off, dst, tmp):
        for jj in range(8):
            self.a(f'ds_read_u16 v{tmp + jj}, v{vaddr} offset:{off + jj * 256}')

    def gather_pack(self, dst, tmp):
        for k in range(4):
            self.a(f'v_lshl_or_b32 v{dst + k}, v{tmp + 2 * k + 1}, 16, v{tmp + 2 * k}')

    def check_stop(self, n):
        if self.stop == n:
            self.a('s_waitcnt vmcnt(0)')
            self.a('s_branch L_END')

    def p0(self):
        a = self.a
        a(f'''
        s_cmp_ge_u32 s2, 256
        s_cbranch_scc1 L_EXIT
        s_load_dwordx16 s[48:63], s[0:1], 0
        s_load_dwordx2 s[12:13], s[0:1], 64
        s_load_dwordx2 s[4:5], s[0:1], 80
        v_lshrrev_b32 v14, 6, v0
        v_and_b32 v3, 63, v0
        v_lshlrev_b32 v0, 4, v3
        v_readfirstlane_b32 s17, v14
        v_lshlrev_b32 v1, 3, v3
        v_and_b32 v20, 15, v3
        v_lshrrev_b32 v21, 4, v3
        v_lshlrev_b32 v2, 8, v21
        v_lshl_add_u32 v2, v20, 3, v2
        s_and_b32 s28, s2, 7
        s_lshr_b32 s29, s2, 3
        s_lshl_b32 s16, s28, 5
        s_add_u32 s16, s16, s29
        s_lshr_b32 s20, s16, 3
        s_and_b32 s21, s16, 7
        s_lshr_b32 s22, s16, 4
        s_and_b32 s23, s16, 15
        s_lshl_b32 s27, s16, 8
        s_add_u32 s27, s27, {FLAG}
        s_mov_b32 s19, 0
        s_mov_b32 s24, {ACT}
        s_mov_b32 s25, {STATS}
        s_mov_b32 s40, 0x00f0000f
        s_mov_b32 s41, 0xf0000f00
        s_mov_b32 s42, 0x22222222
        s_mov_b32 s43, 0x22222222
        s_mov_b32 s44, 0x44444444
        s_mov_b32 s45, 0x44444444
        s_mov_b32 s46, 0x88888888
        s_mov_b32 s47, 0x88888888
        v_mov_b32 v16, 0x3f803f80
        v_mov_b32 v17, 0x3f803f80
        v_mov_b32 v18, 0x3f803f80
        v_mov_b32 v19, 0x3f803f80
        v_mov_b32 v22, 0
        s_mov_b32 s6, {WS_SIZE}
        s_mov_b32 s7, 0x20000
        s_mov_b32 s14, {2048 * 1152}
        s_mov_b32 s15, 0x20000
        s_mov_b32 s11, 0x20000
        s_mov_b32 s67, 0x20000
        s_waitcnt lgkmcnt(0)
        buffer_load_dword v23, v22, {WS}, 0 offen sc1
        ''')
        LA = a.label('NOWA')
        a(f'''
        s_cmp_ge_u32 s16, 144
        s_cbranch_scc1 {LA}
        s_mov_b32 s8, s50
        s_mov_b32 s9, s51
        s_mov_b32 s10, {576 * 3456}
        s_lshr_b32 s32, s20, 1
        s_mul_i32 s32, s32, 72
        s_and_b32 s33, s20, 1
        s_lshl_b32 s34, s33, 5
        s_add_u32 s32, s32, s34
        s_mul_i32 s33, s33, 288
        s_add_u32 s33, s33, 64
        s_cmp_lt_u32 s20, 16
        s_cselect_b32 s32, s32, s33
        s_cselect_b32 s34, 8, 72
        s_mul_i32 s34, s34, s17
        s_add_u32 s32, s32, s34
        s_mul_i32 s32, s32, 3456
        s_lshl_b32 s33, s21, 7
        s_add_u32 s32, s32, s33
        v_mul_u32_u24 v24, 3456, v21
        v_lshl_add_u32 v24, v20, 4, v24
        s_lshl_b32 s33, s17, 11
        ''')
        for sec in range(3):
            for i in range(2):
                a(f's_add_u32 s34, s32, {sec * 1152 + i * 4 * 3456}')
                a(f's_add_u32 m0, s33, {sec * 8192 + i * 1024}')
                a('buffer_load_dwordx4 v24, s[8:11], s34 offen lds')
        a(f'{LA}:')
        LX = a.label('NOX')
        LX2 = a.label('NOXT')
        a(f'''
        s_mov_b32 s64, s48
        s_mov_b32 s65, s49
        s_mov_b32 s66, {2048 * 1152}
        v_mul_u32_u24 v25, 1152, v20
        v_lshl_add_u32 v26, v21, 4, v25
        s_cmp_lt_u32 s16, 128
        s_cbranch_scc1 {LX}
        s_sub_u32 s35, s16, 128
        s_mul_i32 s36, s35, {TILE}
        s_lshr_b32 s37, s17, 1
        s_mul_i32 s37, s37, 144
        s_and_b32 s38, s17, 1
        s_lshl_b32 s38, s38, 6
        s_add_u32 s37, s37, s38
        s_add_u32 s37, s37, s36
        ''')
        for i in range(4):
            a(f'buffer_load_dwordx4 {vr(32 + 4 * i)}, v26, s[64:67], s37 offen offset:{288 * i}')
        a(f'''
        v_mov_b32 v48, 0
        v_mov_b32 v49, 0
        v_mov_b32 v50, 0
        v_mov_b32 v51, 0
        s_cmp_ge_u32 s17, 2
        s_cbranch_scc1 {LX2}
        v_mad_u32_u24 v27, v21, 64, v25
        v_mad_u32_u24 v27, v21, 64, v27
        v_lshl_add_u32 v27, v21, 4, v27
        s_mul_i32 s37, s17, 576
        s_add_u32 s37, s37, s36
        buffer_load_dwordx4 v[48:51], v27, s[64:67], s37 offen offset:128
        {LX2}:
        {LX}:
        ''')
        a(f'''
        s_lshl_b32 s37, s20, 2
        s_add_u32 s37, s37, s17
        s_mul_i32 s37, s37, {TILE}
        s_mul_i32 s38, s21, 144
        s_add_u32 s37, s37, s38
        v_lshl_add_u32 v27, v21, 3, v25
        v_mov_b32 v12, 0
        v_mov_b32 v13, 0
        buffer_load_dwordx4 v[4:7], v26, s[64:67], s37 offen
        buffer_load_dwordx4 v[8:11], v26, s[64:67], s37 offen offset:64
        ''')
        self.exec_mask(0xffffffff)
        a('buffer_load_dwordx2 v[12:13], v27, s[64:67], s37 offen offset:128')
        self.exec_mask(-1)
        LN, LKV, LW = a.label('P2NONE'), a.label('P2KV'), a.label('P2WAIT')
        a(f'''
        s_mov_b32 s68, 0
        s_lshl_b32 s39, s16, 1
        s_add_u32 s39, s39, s17
        s_sub_u32 s39, s39, 2
        s_cmp_lt_u32 s17, 2
        s_cbranch_scc1 {LN}
        s_cmp_ge_u32 s39, 450
        s_cbranch_scc1 {LN}
        s_cmp_ge_u32 s39, 432
        s_cbranch_scc1 {LKV}
        s_mov_b32 s68, 1
        s_cmp_ge_u32 s39, 144
        s_cselect_b32 s71, 1, 0
        s_cmp_ge_u32 s39, 288
        s_cselect_b32 s71, 2, s71
        s_mul_i32 s72, s71, 144
        s_sub_u32 s72, s39, s72
        s_lshr_b32 s73, s72, 3
        s_and_b32 s72, s72, 7
        s_cmp_eq_u32 s71, 0
        s_cselect_b32 s8, s52, s62
        s_cselect_b32 s9, s53, s63
        s_cmp_eq_u32 s71, 1
        s_cselect_b32 s8, s56, s8
        s_cselect_b32 s9, s57, s9
        s_mov_b32 s10, {576 * 1152}
        s_mul_i32 s74, s73, 36
        s_cmp_eq_u32 s71, 0
        s_cselect_b32 s75, 18, 8
        s_cselect_b32 s76, 4, 18
        s_cselect_b32 s77, 8, 4
        s_lshr_b32 s78, s73, 1
        s_mul_i32 s78, s78, 72
        s_and_b32 s79, s73, 1
        s_lshl_b32 s80, s79, 5
        s_add_u32 s78, s78, s80
        s_cmp_eq_u32 s71, 1
        s_cselect_b32 s74, s78, s74
        s_cselect_b32 s75, 4, s75
        s_cselect_b32 s76, 8, s76
        s_cselect_b32 s77, 16, s77
        s_cselect_b32 s78, 64, 16
        s_cselect_b32 s80, 4, 36
        s_cselect_b32 s81, 2, 18
        s_mul_i32 s79, s79, 288
        s_add_u32 s78, s78, s79
        s_cmp_ge_u32 s73, 16
        s_cselect_b32 s74, s78, s74
        s_cselect_b32 s75, s80, s75
        s_cselect_b32 s76, 72, s76
        s_cselect_b32 s77, 144, s77
        s_cselect_b32 s81, s81, 2
        s_mul_i32 s74, s74, 1152
        s_mul_i32 s75, s75, 1152
        s_mul_i32 s76, s76, 1152
        s_mul_i32 s77, s77, 1152
        s_lshl_b32 s78, s72, 7
        s_add_u32 s74, s74, s78
        v_lshrrev_b32 v28, 1, v21
        v_mul_u32_u24 v28, s81, v28
        v_and_b32 v29, 1, v21
        v_add_u32 v28, v28, v29
        v_mul_u32_u24 v28, 1152, v28
        v_lshl_add_u32 v28, v20, 4, v28
        s_sub_u32 s79, s17, 2
        s_lshl_b32 s79, s79, 13
        s_add_u32 s79, s79, {L_X}
        ''')
        for i in range(8):
            a('s_mov_b32 s78, s74')
            if i & 1: a('s_add_u32 s78, s78, s75')
            if i & 2: a('s_add_u32 s78, s78, s76')
            if i & 4: a('s_add_u32 s78, s78, s77')
            a(f's_add_u32 m0, s79, {i * 1024}')
            a('buffer_load_dwordx4 v28, s[8:11], s78 offen lds')
        a(f'''
        s_waitcnt vmcnt(11)
        s_branch {LW}
        {LKV}:
        s_mov_b32 s68, 2
        s_sub_u32 s73, s39, 432
        s_lshr_b32 s74, s73, 1
        s_mul_i32 s74, s74, 72
        s_and_b32 s75, s73, 1
        s_lshl_b32 s76, s75, 5
        s_add_u32 s74, s74, s76
        s_mul_i32 s75, s75, 288
        s_add_u32 s75, s75, 64
        s_cmp_lt_u32 s73, 16
        s_cselect_b32 s74, s74, s75
        s_cselect_b32 s76, 8, 72
        s_mul_i32 s76, s76, 36
        s_mul_i32 s74, s74, 36
        v_mul_u32_u24 v28, s76, v21
        v_and_b32 v29, 1, v20
        v_lshl_add_u32 v29, v29, 1, v28
        v_lshl_add_u32 v28, v20, 1, v28
        s_mov_b32 s8, s58
        s_mov_b32 s9, s59
        s_mov_b32 s10, {576 * 36}
        ''')
        for jj in range(8):
            a(f'v_mov_b32 v{80 + jj}, 0')
        for jj in range(8):
            a(f'buffer_load_ushort v{64 + jj}, v28, s[8:11], s74 offen offset:{36 * jj}')
        a('s_mov_b32 exec_lo, 0x00030003')
        a('s_mov_b32 exec_hi, 0x00030003')
        for jj in range(8):
            a(f'buffer_load_ushort v{80 + jj}, v29, s[8:11], s74 offen offset:{36 * jj + 32}')
        a('s_mov_b32 s8, s60')
        a('s_mov_b32 s9, s61')
        a('s_mov_b32 exec_lo, 0x000c000c')
        a('s_mov_b32 exec_hi, 0x000c000c')
        for jj in range(8):
            a(f'buffer_load_ushort v{80 + jj}, v29, s[8:11], s74 offen offset:{36 * jj + 32}')
        self.exec_mask(-1)
        for jj in range(8):
            a(f'buffer_load_ushort v{72 + jj}, v28, s[8:11], s74 offen offset:{36 * jj}')
        a(f'''
        s_waitcnt vmcnt(35)
        s_branch {LW}
        {LN}:
        s_waitcnt vmcnt(3)
        {LW}:
        v_readfirstlane_b32 s18, v23
        s_add_u32 s18, s18, 16
        ''')
        LA2, LA3 = a.label('NOWA2'), a.label('NOWAT')
        a(f'''
        s_cmp_ge_u32 s16, 144
        s_cbranch_scc1 {LA2}
        s_barrier
        s_mul_i32 s32, s17, 36
        s_lshl_b32 s33, s21, 4
        s_add_u32 s32, s32, s33
        v_lshlrev_b32 v24, 11, v21
        v_lshl_add_u32 v30, v20, 1, v24
        v_add_u32 v30, s32, v30
        s_lshl_b32 s34, s21, 1
        s_lshr_b32 s32, s17, 1
        s_add_u32 s34, s34, s32
        s_mul_i32 s34, s34, 18
        s_add_u32 s34, s34, s20
        s_mul_i32 s34, s34, 7
        s_and_b32 s32, s17, 1
        s_add_u32 s34, s34, s32
        s_lshl_b32 s34, s34, 10
        s_add_u32 s34, s34, {WA_P}
        s_add_u32 s32, s34, 4096
        ''')
        for sec in range(3):
            self.gather_lds(30, sec * 8192, 0, 96 + 8 * sec)
        for sec in range(3):
            a(f's_waitcnt lgkmcnt({min(15, 16 - 8 * sec)})')
            self.gather_pack(120 + 4 * sec, 96 + 8 * sec)
            if sec < 2:
                a(f'buffer_store_dwordx4 {vr(120 + 4 * sec)}, v0, {WS}, s34 offen offset:{sec * 2048} sc1')
            else:
                a(f'buffer_store_dwordx4 {vr(120 + 4 * sec)}, v0, {WS}, s32 offen sc1')
        a(f'''
        s_cmp_ge_u32 s17, 2
        s_cbranch_scc1 {LA3}
        v_bfe_u32 v31, v20, 1, 1
        v_bfe_u32 v132, v20, 2, 1
        v_cmp_le_u32 vcc, 8, v20
        v_cndmask_b32 v133, v132, v31, vcc
        v_cndmask_b32 v31, v31, 2, vcc
        v_lshlrev_b32 v31, 13, v31
        v_mad_u32_u24 v31, v133, 36, v31
        v_and_b32 v132, 1, v20
        v_lshl_add_u32 v31, v132, 1, v31
        v_add_u32 v31, v31, v24
        s_mul_i32 s32, s17, 72
        s_add_u32 s32, s32, s33
        s_add_u32 s32, s32, 32
        v_add_u32 v31, s32, v31
        s_lshl_b32 s34, s21, 1
        s_add_u32 s34, s34, s17
        s_mul_i32 s34, s34, 18
        s_add_u32 s34, s34, s20
        s_mul_i32 s34, s34, 7
        s_add_u32 s34, s34, 6
        s_lshl_b32 s34, s34, 10
        s_add_u32 s34, s34, {WA_P}
        ''')
        self.gather_lds(31, 0, 0, 136)
        a('s_waitcnt lgkmcnt(0)')
        self.gather_pack(144, 136)
        a('v_cmp_le_u32 vcc, 12, v20')
        for k in range(4):
            a(f'v_cndmask_b32 v{144 + k}, v{144 + k}, 0, vcc')
        a(f'buffer_store_dwordx4 v[144:147], v0, {WS}, s34 offen sc1')
        a(f'{LA3}:')
        a(f'{LA2}:')
        LX3, LX4 = a.label('NOX3'), a.label('NOX4')
        a(f'''
        s_cmp_lt_u32 s16, 128
        s_cbranch_scc1 {LX3}
        s_lshl_b32 s37, s17, 10
        s_add_u32 s37, s37, s36
        s_add_u32 s37, s37, {ACT}
        ''')
        for i in range(4):
            a(f'buffer_store_dwordx4 {vr(32 + 4 * i)}, v0, {WS}, s37 offen sc1')
            a('s_add_u32 s37, s37, 4096')
        a(f'''
        s_cmp_ge_u32 s17, 2
        s_cbranch_scc1 {LX4}
        buffer_store_dwordx2 v[48:49], v2, {WS}, s37 offen sc1
        buffer_store_dwordx2 v[50:51], v2, {WS}, s37 offen offset:128 sc1
        {LX4}:
        ''')
        self.stats_emit([vr(32 + 4 * i) for i in range(5)], None, 52, 56, None)
        a(f'''
        s_lshl_b32 s37, s35, 10
        s_lshl_b32 s38, s17, 7
        s_add_u32 s37, s37, s38
        s_add_u32 s37, s37, {STATS}
        v_lshlrev_b32 v60, 3, v20
        v_mov_b32 v62, 0
        v_mov_b32 v63, 0
        ''')
        self.stats_store(52, 56, 's37', 'v60')
        self.exec_mask(0xffff)
        a(f'buffer_store_dwordx2 v[62:63], v60, {WS}, s37 offen offset:512 sc1')
        self.exec_mask(-1)
        a(f'{LX3}:')
        a('s_waitcnt vmcnt(0)')
        a('s_barrier')
        a('s_add_u32 s28, s18, 1')
        self.signal('s28')
        LQ, LQK, LQE = a.label('Q2'), a.label('Q2K'), a.label('Q2E')
        a(f'''
        s_cmp_eq_u32 s68, 0
        s_cbranch_scc1 {LQE}
        s_cmp_eq_u32 s68, 2
        s_cbranch_scc1 {LQK}
        v_lshrrev_b32 v30, 2, v20
        v_lshlrev_b32 v30, 4, v30
        v_and_b32 v31, 3, v20
        v_lshl_add_u32 v30, v31, 1, v30
        v_lshlrev_b32 v31, 1, v20
        v_add_u32 v132, 128, v31
        v_bfe_u32 v133, v20, 1, 1
        v_bfe_u32 v134, v20, 2, 1
        v_lshl_add_u32 v133, v133, 1, v134
        v_mul_u32_u24 v133, 36, v133
        v_and_b32 v134, 1, v20
        v_lshl_add_u32 v133, v134, 1, v133
        v_add_u32 v133, 32, v133
        s_cmp_eq_u32 s71, 1
        s_cselect_b64 vcc, -1, 0
        s_cselect_b32 s74, 36, 8
        s_cselect_b32 s75, 72, 64
        s_add_u32 s76, s74, s75
        v_cndmask_b32 v30, v30, v31, vcc
        v_cndmask_b32 v132, v132, v133, vcc
        s_lshl_b32 s78, s72, 4
        s_add_u32 s78, s78, s79
        v_lshlrev_b32 v24, 11, v21
        v_add_u32 v24, s78, v24
        v_add_u32 v30, v30, v24
        v_add_u32 v132, v132, v24
        v_add_u32 v133, s74, v30
        v_add_u32 v134, s75, v30
        v_add_u32 v135, s76, v30
        s_mul_i32 s77, s72, 18
        s_add_u32 s77, s77, s73
        s_mul_i32 s77, s77, 5120
        s_mul_i32 s78, s71, {WSSTR}
        s_add_u32 s77, s77, s78
        s_add_u32 s77, s77, {WS_P}
        s_add_u32 s78, s77, 4096
        v_cmp_le_u32 vcc, 8, v20
        ''')
        addrs = [30, 133, 134, 135, 132]
        for t in range(5):
            self.gather_lds(addrs[t], 0, 0, 64 + 8 * t)
        a('s_waitcnt lgkmcnt(0)')
        for t in range(5):
            self.gather_pack(104 + 4 * t, 64 + 8 * t)
            if t < 4:
                a(f'buffer_store_dwordx4 {vr(104 + 4 * t)}, v0, {WS}, s77 offen offset:{t * 1024} sc1')
            else:
                for k in range(4):
                    a(f'v_cndmask_b32 v{120 + k}, v{120 + k}, 0, vcc')
                a(f'buffer_store_dwordx4 v[120:123], v0, {WS}, s78 offen sc1')
        a(f'''
        s_branch {LQE}
        {LQK}:
        s_mul_i32 s77, s73, 3072
        s_add_u32 s77, s77, {WKV_P}
        ''')
        for t in range(3):
            self.gather_pack(104 + 4 * t, 64 + 8 * t)
            a(f'buffer_store_dwordx4 {vr(104 + 4 * t)}, v0, {WS}, s77 offen offset:{t * 1024} sc1')
        LF = a.label('NOFILL')
        a(f'''
        {LQE}:
        s_lshl_b32 s28, s16, 1
        s_add_u32 s28, s28, s17
        s_cmp_ge_u32 s17, 2
        s_cbranch_scc1 {LF}
        s_cmp_ge_u32 s28, 320
        s_cbranch_scc1 {LF}
        s_lshl_b32 s28, s28, 10
        s_add_u32 s28, s28, {KVIMG}
        buffer_store_dwordx4 {ONES}, v0, {WS}, s28 offen sc1
        {LF}:
        s_waitcnt vmcnt(0)
        s_barrier
        s_add_u32 s28, s18, 2
        ''')
        self.signal('s28')
        self.check_stop(0)
        a(f'''
        v_min_u32 v14, 17, v3
        v_lshlrev_b32 v14, 11, v14
        s_lshr_b32 s30, s23, 1
        s_lshl_b32 s30, s30, 8
        s_add_u32 s30, s30, {FLAG}
        s_add_u32 s31, s18, 1
        ''')
        self.poll('s30', 's31')
        self.dma_wa(range(8))
        a(f'''
        s_add_u32 s26, s18, 3
        s_lshl_b32 s82, s22, 3
        s_add_u32 s82, s82, 127
        s_mov_b32 s83, 128
        s_mov_b32 s84, 8
        s_add_u32 s85, s18, 1
        ''')

    def dma_wa(self, rounds):
        a = self.a
        a(f's_mul_i32 s30, s23, {126 * 1024}')
        a(f's_add_u32 s30, s30, {WA_P}')
        self.dma_linear('s30', 0, 126, rounds)

    def dma_ws(self, m, rounds):
        a = self.a
        a(f's_mul_i32 s30, s21, {90 * 1024}')
        a(f's_add_u32 s30, s30, {WS_P + m * WSSTR}')
        self.dma_linear('s30', 0, 90, rounds)

    def p1(self):
        a = self.a
        ACC = lambda x, t: 20 + 28 * x + 4 * t
        H1, H2, RING = 76, 80, 84
        RAW, NM, PR = 120, 132, 138
        MP, MC, MPA = 162, 166, 170
        a(f'''
        v_min_u32 v14, s84, v3
        v_add_u32 v14, s82, v14
        v_max_i32 v14, s83, v14
        v_lshlrev_b32 v14, 8, v14
        s_mov_b32 s30, {FLAG}
        v_and_b32 v180, 15, v3
        v_lshrrev_b32 v181, 4, v3
        ''')
        for r in range(4):
            a(f'v_lshl_add_u32 v182, v181, 2, {r}')
            a('v_sub_u32 v183, v180, v182')
            a('v_and_b32 v184, 0x80000001, v183')
            a('v_cmp_eq_u32 vcc, 0, v184')
            a(f'v_mov_b32 v185, 0x{f2u(-1e30):x}')
            a(f'v_cndmask_b32 v{MC + r}, v185, 0, vcc')
            a('v_cmp_eq_u32 vcc, 0x80000000, v184')
            a(f'v_cndmask_b32 v{MP + r}, v185, 0, vcc')
        a('s_or_b32 s28, s22, s17')
        a('s_cmp_eq_u32 s28, 0')
        a('s_cselect_b64 vcc, -1, 0')
        for r in range(4):
            a(f'v_cndmask_b32 v{MPA + r}, v{MP + r}, v185, vcc')
        a(f'''
        v_add_u32 v174, {63 * 1024}, v0
        s_cmp_ge_u32 s17, 2
        s_cselect_b32 s28, 6, 2
        s_cselect_b32 s29, -2, 4
        s_cselect_b32 s31, 0, s17
        s_add_u32 s86, s28, s31
        s_add_u32 s87, s29, s17
        s_lshl_b32 s28, s86, 10
        s_lshl_b32 s29, s87, 10
        v_add_u32 v175, s28, v0
        v_add_u32 v176, s29, v0
        v_add_u32 v177, s28, v174
        v_add_u32 v178, s29, v174
        v_add_u32 v179, {L_HALO}, v0
        v_add_u32 v186, {L_HALO + 16384}, v2
        ''')
        self.poll('s30', 's85')
        a(f'''
        s_lshl_b32 s28, s22, 3
        s_lshl_b32 s29, s17, 1
        s_add_u32 s29, s29, s28
        s_mul_i32 s48, s29, {TILE}
        s_add_u32 s48, s48, s24
        s_add_u32 s53, s48, {TILE}
        s_lshl_b32 s58, s29, 10
        s_add_u32 s58, s58, s25
        s_sub_u32 s28, s28, 1
        s_max_i32 s28, s28, 0
        s_lshl_b32 s59, s28, 10
        s_add_u32 s59, s59, s25
        s_mul_i32 s60, s28, {TILE}
        s_add_u32 s60, s60, s24
        s_lshl_b32 s61, s17, 12
        s_add_u32 s62, s60, s61
        s_add_u32 m0, s61, {L_HALO}
        ''')
        self.exec_mask(0xfffefffefffefffe)
        for k in range(4):
            a(f'buffer_load_dwordx4 v0, {WS}, s62 offen offset:{k * 1024} sc1 lds')
        a(f'''
        s_and_b32 s61, s17, 1
        s_lshl_b32 s61, s61, 10
        s_add_u32 s61, s61, 16384
        s_add_u32 s62, s60, s61
        s_add_u32 m0, s61, {L_HALO}
        ''')
        self.exec_mask(0xfefefefefefefefe)
        a(f'buffer_load_dwordx4 v0, {WS}, s62 offen sc1 lds')
        self.exec_mask(-1)
        halo_id = a.vm
        for x, (so, off) in enumerate((('s58', 0), ('s58', 1024), ('s59', 0))):
            a(f'buffer_load_dwordx2 {vr(RAW + 4 * x, 2)}, v1, {WS}, {so} offen offset:{off} sc1')
            a(f'buffer_load_dwordx2 {vr(RAW + 4 * x + 2, 2)}, v1, {WS}, {so} offen offset:{off + 512} sc1')
        stat_id = a.vm
        self.tile_sgprs(48)
        self.tile_sgprs(53)
        aid = []
        for s in range(18):
            self.load_frag(s, 4 * s, 48)
            self.load_frag(s, 72 + 4 * s, 53)
            aid.append(a.vm)
        a(f'''
        s_lshl_b32 s61, s17, 14
        s_add_u32 s61, s61, {FLAG}
        v_lshlrev_b32 v14, 8, v3
        buffer_load_dword v15, v14, {WS}, s61 offen sc1
        ''')
        a(f'''
        v_lshlrev_b32 v182, 8, v3
        v_add_u32 v182, {L_HALO}, v182
        ds_write_b128 v182, {ONES}
        v_lshlrev_b32 v182, 7, v180
        v_add_u32 v182, {L_HALO + 16384}, v182
        ds_write_b128 v182, {ONES}
        v_mov_b32 v182, {L_VT + 4 * VT_P}
        v_min_u32 v183, 17, v3
        v_lshl_add_u32 v182, v183, 4, v182
        ds_write_b128 v182, {ONES}
        ''')
        a.wait_vm(halo_id)
        a('s_waitcnt lgkmcnt(0)')
        a('s_barrier')

        def reads(s):
            out = []
            hi = s >= 9
            o = (7 * (s - 9) if hi else 7 * s) * 1024
            for t in range(7):
                out.append(f'ds_read_b128 {ar(144 + 28 * (s % 4) + 4 * t)}, v{174 if hi else 0} offset:{o + t * 1024}')
            rb = RING + 12 * (s % 3)
            if s < 16:
                out.append(f'ds_read_b128 {vr(rb)}, v179 offset:{s * 1024}')
            else:
                out.append(f'ds_read_b64 {vr(rb, 2)}, v186 offset:{(s - 16) * 1024}')
                out.append(f'ds_read_b64 {vr(rb + 2, 2)}, v186 offset:{(s - 16) * 1024 + 128}')
            out.append(f'ds_read_b128 {vr(rb + 4)}, v{177 if hi else 175} offset:{o}')
            out.append(f'ds_read_b128 {vr(rb + 8)}, v{178 if hi else 176} offset:{o}')
            return out

        rid = {}
        for s in (0, 1):
            for r in reads(s):
                a(r)
            rid[s] = a.lg
        a.wait_vm(stat_id)
        for x in range(3):
            self.stats_finish(RAW + 4 * x, NM + 2 * x, NM + 2 * x + 1, 187)
        a(f'''
        s_lshl_b32 s28, s17, 9
        s_add_u32 s28, s28, {L_ST}
        v_lshl_add_u32 v182, v180, 2, s28
        v_lshl_add_u32 v183, v181, 4, s28
        ''')
        for x in range(3):
            a(f'ds_write_b32 v182, v{NM + 2 * x} offset:{128 * x}')
            a(f'ds_write_b32 v182, v{NM + 2 * x + 1} offset:{128 * x + 64}')
        for x in range(3):
            a(f'ds_read_b128 {vr(PR + 8 * x)}, v183 offset:{128 * x}')
            a(f'ds_read_b128 {vr(PR + 8 * x + 4)}, v183 offset:{128 * x + 64}')
        for s in range(18):
            a.wait_vm(aid[s])
            a.wait_lg(rid[s])
            nxt = reads(s + 2) if s + 2 < 18 else []
            ms = []
            for t in range(7):
                w = ar(144 + 28 * (s % 4) + 4 * t)
                for x in range(2):
                    xf = ar(72 * x + 4 * s)
                    c = '0' if s == 0 else vr(ACC(x, t))
                    if t in (4, 5):
                        ms.append(f'{M16} {vr(ACC(x, t))}, {xf}, {w}, {c}')
                    else:
                        ms.append(f'{M16} {vr(ACC(x, t))}, {w}, {xf}, {c}')
            rb = RING + 12 * (s % 3)
            ms.append(f'{M16} {vr(H1)}, {vr(rb + 4)}, {vr(rb)}, {"0" if s == 0 else vr(H1)}')
            ms.append(f'{M16} {vr(H2)}, {vr(rb)}, {vr(rb + 8)}, {"0" if s == 0 else vr(H2)}')
            for i, m in enumerate(ms):
                a(m)
                if i < len(nxt):
                    a(nxt[i])
            if nxt:
                rid[s + 2] = a.lg
        a(f'''
        s_lshl_b32 s28, s86, 6
        s_add_u32 s28, s28, {L_CS}
        s_lshl_b32 s29, s87, 6
        s_add_u32 s29, s29, {L_CS}
        v_lshl_add_u32 v182, v181, 4, s28
        v_lshl_add_u32 v183, v180, 2, s29
        s_add_u32 s31, s18, 2
        s_waitcnt vmcnt(0)
        v_subrev_u32 v15, s31, v15
        v_cmp_le_u32 vcc, 16, v15
        ''')
        LOK = a.label('P2OK')
        a(f's_cbranch_vccz {LOK}')
        self.poll('s61', 's31')
        a(f'{LOK}:')
        self.exec_mask(0x0001000100010001)
        a(f'ds_write_b128 v182, {vr(H1)}')
        self.exec_mask(0xffff)
        a(f'ds_write_b32 v183, v{H2}')
        self.exec_mask(-1)
        a('s_waitcnt lgkmcnt(0)')
        a('s_barrier')
        CS = 84
        a(f'v_lshl_add_u32 v184, v181, 4, 0')
        a(f'v_add_u32 v184, {L_CS}, v184')
        a(f'v_lshlrev_b32 v185, 2, v180')
        a(f'v_add_u32 v185, {L_CS}, v185')
        cs = {0: CS, 1: CS + 4, 2: CS + 8, 3: CS + 12, 6: CS + 16, 4: CS + 20, 5: CS + 21}
        for t in (2, 3, 6, 0, 1):
            a(f'ds_read_b128 {vr(cs[t])}, v184 offset:{64 * t}')
        for t in (4, 5):
            a(f'ds_read_b32 v{cs[t]}, v185 offset:{64 * t}')
        a(f'ds_read_b128 {vr(CS + 22)}, v182')
        a(f'ds_read_b32 v{CS + 26}, v183')
        self.dma_ws(0, range(6))
        LNK = a.label('NOKVW')
        a('s_cmp_lg_u32 s21, 0')
        a(f's_cbranch_scc1 {LNK}')
        vm0 = a.vm
        a(f's_mov_b32 s30, {WKV_P}')
        self.dma_linear('s30', L_KVW, 54, range(4))
        a.vm = vm0
        a(f'{LNK}:')
        a('s_waitcnt lgkmcnt(0)')

        QO = lambda x, h: 184 + 8 * x + 4 * h
        KO = lambda h, y: 200 + 12 * h + 4 * y
        VV = lambda h: 224 + 6 * h
        VT = lambda h: 236 + 6 * h

        def norm_n(acc, c, x):
            for r in range(4):
                a(f'v_fma_f32 v{acc + r}, v{c + r}, v{NM + 2 * x}, v{acc + r}')
            for r in range(4):
                a(f'v_mul_f32 v{acc + r}, v{acc + r}, v{NM + 2 * x + 1}')

        def norm_s(acc, c, x):
            for r in range(4):
                a(f'v_fma_f32 v{acc + r}, v{c}, v{PR + 8 * x + r}, v{acc + r}')
            for r in range(4):
                a(f'v_mul_f32 v{acc + r}, v{acc + r}, v{PR + 8 * x + 4 + r}')

        def pack(dst, acc):
            a(f'v_cvt_pk_bf16_f32 v{dst}, v{acc}, v{acc + 1}')
            a(f'v_cvt_pk_bf16_f32 v{dst + 1}, v{acc + 2}, v{acc + 3}')

        a(f'''
        s_mul_i32 s28, s17, 2304
        s_add_u32 s28, s28, {L_EX}
        v_add_u32 v183, s28, v1
        v_lshl_add_u32 v251, v3, 2, s28
        s_lshl_b32 s29, s17, 6
        s_add_u32 s29, s29, {L_VT}
        v_lshl_add_u32 v250, v180, 1, s29
        ''')
        for x in (1, 0):
            y = x + 1
            for h in range(2):
                norm_n(ACC(x, 2 + h), cs[2 + h], x)
                pack(KO(h, y), ACC(x, 2 + h))
                norm_s(ACC(x, 4 + h), cs[4 + h], x)
                pack(VV(h) + 2 * y, ACC(x, 4 + h))
            norm_n(ACC(x, 6), cs[6], x)
            a(f'v_cvt_pk_bf16_f32 v{248 + x}, v{ACC(x, 6)}, v{ACC(x, 6) + 1}')
            a(f'v_cvt_pk_bf16_f32 v{KO(0, y) + 2}, v{ACC(x, 6) + 2}, v{ACC(x, 6) + 3}')
            a(f'v_mov_b32 v{KO(1, y) + 2}, v{KO(0, y) + 2}')
            self.exec_mask(0x0000ffff00000000)
            o = 32 * y
            a(f'ds_write_b16 v250, v{248 + x} offset:{o}')
            a(f'ds_write_b16_d16_hi v250, v{248 + x} offset:{o + VT_P}')
            a(f'ds_write_b16 v250, v{KO(0, y) + 2} offset:{o + 2 * VT_P}')
            a(f'ds_write_b16_d16_hi v250, v{KO(0, y) + 2} offset:{o + 3 * VT_P}')
            self.exec_mask(-1)
            if x == 1:
                LS = a.label('NOEX')
                a('s_cmp_eq_u32 s17, 3')
                a(f's_cbranch_scc1 {LS}')
                for h in range(2):
                    a(f'ds_write_b64 v183, {vr(KO(h, 2), 2)} offset:{2304 + 512 * h}')
                    a(f'ds_write_b64 v183, {vr(VV(h) + 4, 2)} offset:{2304 + 1024 + 512 * h}')
                a(f'ds_write_b32 v251, v{KO(0, 2) + 2} offset:{2304 + 2048}')
                a(f'{LS}:')
                norm_n(H1, CS + 22, 2)
                norm_s(H2, CS + 26, 2)
                pack(H1, H1)
                pack(H2, H2)
                LH, LH2 = a.label('HT'), a.label('HE')
                a(f'''
                s_cmp_ge_u32 s17, 2
                s_cbranch_scc1 {LH}
                s_lshl_b32 s28, s17, 9
                s_add_u32 s28, s28, {L_EX}
                v_add_u32 v182, s28, v1
                ds_write_b64 v182, {vr(H1, 2)}
                ds_write_b64 v182, {vr(H2, 2)} offset:1024
                s_branch {LH2}
                {LH}:
                v_lshlrev_b32 v182, 2, v3
                v_add_u32 v182, {L_EX + 2048}, v182
                ds_write_b32 v182, v{H1 + 1}
                v_lshlrev_b32 v182, 1, v180
                v_add_u32 v182, {L_VT}, v182
                ''')
                self.exec_mask(0x0000ffff00000000)
                a(f'ds_write_b16 v182, v{H1}')
                a(f'ds_write_b16_d16_hi v182, v{H1} offset:{VT_P}')
                a(f'ds_write_b16 v182, v{H1 + 1} offset:{2 * VT_P}')
                a(f'ds_write_b16_d16_hi v182, v{H1 + 1} offset:{3 * VT_P}')
                self.exec_mask(-1)
                a(f'{LH2}:')
        a('s_waitcnt lgkmcnt(0)')
        a('s_barrier')
        for h in range(2):
            a(f'ds_read_b64 {vr(KO(h, 0), 2)}, v183 offset:{512 * h}')
            a(f'ds_read_b32 v{KO(h, 0) + 2}, v251 offset:2048')
            a(f'ds_read_b64 {vr(VV(h), 2)}, v183 offset:{1024 + 512 * h}')
        a(f'''
        v_cmp_gt_u32 vcc, 2, v180
        v_mul_u32_u24 v182, {VT_P}, v180
        v_add_u32 v250, {2 * VT_P}, v182
        v_mov_b32 v251, {4 * VT_P}
        v_cndmask_b32 v182, v251, v182, vcc
        v_cndmask_b32 v250, v251, v250, vcc
        v_lshl_add_u32 v251, v181, 3, s29
        v_add_u32 v182, v182, v251
        v_add_u32 v250, v250, v251
        ''')
        for h in range(2):
            for y in range(3):
                a(f'ds_read_b64 {vr(VT(h) + 2 * y, 2)}, v{182 if h == 0 else 250} offset:{32 * y}')
        a('s_mov_b32 s28, 0xffff')
        a('s_mov_b32 s29, 0')
        a('s_mov_b32 s30, 0xffff0000')
        a('s_mov_b32 s31, 0')
        for x in range(2):
            for h in range(2):
                norm_n(ACC(x, h), cs[h], x)
                pack(QO(x, h), ACC(x, h))
                a(f'v_cndmask_b32 v{QO(x, h) + 2}, 0, v{248 + x}, s[{28 + 2 * h}:{29 + 2 * h}]')
                a(f'v_mov_b32 v{QO(x, h) + 3}, 0')
        for h in range(2):
            for y in range(3):
                a(f'v_mov_b32 v{KO(h, y) + 3}, 0')
        a('s_waitcnt lgkmcnt(0)')
        units = [(x, h) for x in (1, 0) for h in range(2)]
        SS = lambda u: 20 + 8 * u
        PP = lambda u: 52 + 4 * u
        OM = lambda u: 84 + 8 * u
        TM = lambda u: 68 + 2 * u
        for u, (x, h) in enumerate(units):
            a(f'{M16} {vr(SS(u))}, {vr(KO(h, x))}, {vr(QO(x, h))}, {vr(MPA if x == 0 else MP)}')
            a(f'{M16} {vr(SS(u) + 4)}, {vr(KO(h, x + 1))}, {vr(QO(x, h))}, {vr(MC)}')
        cexp = 18 ** -0.5 * math.log2(math.e)
        a(f's_mov_b32 s28, 0x{f2u(cexp):x}')
        for u in range(4):
            S, m = SS(u), TM(u)
            a(f'v_max3_f32 v{m}, v{S}, v{S + 1}, v{S + 2}')
            a(f'v_max3_f32 v{m + 1}, v{S + 3}, v{S + 4}, v{S + 5}')
            a(f'v_max3_f32 v{m}, v{m}, v{S + 6}, v{S + 7}')
            a(f'v_max_f32 v{m}, v{m}, v{m + 1}')
        for sw in ('v_permlane32_swap_b32', 'v_permlane16_swap_b32'):
            for u in range(4):
                a(f'v_mov_b32 v{TM(u) + 1}, v{TM(u)}')
            for u in range(4):
                a(f'{sw} v{TM(u)}, v{TM(u) + 1}')
            for u in range(4):
                a(f'v_max_f32 v{TM(u)}, v{TM(u)}, v{TM(u) + 1}')
        for u in range(4):
            a(f'v_mul_f32 v{TM(u)}, s28, v{TM(u)}')
        for u, (x, h) in enumerate(units):
            S = SS(u)
            for i in range(8):
                a(f'v_fma_f32 v{S + i}, v{S + i}, s28, -v{TM(u)}')
            for i in range(8):
                a(f'v_exp_f32 v{S + i}, v{S + i}')
            for i in range(4):
                a(f'v_cvt_pk_bf16_f32 v{PP(u) + i}, v{S + 2 * i}, v{S + 2 * i + 1}')
            a(f'{M16} {vr(OM(u))}, {vr(VV(h) + 2 * x)}, {vr(PP(u))}, 0')
            a(f'{M16} {vr(OM(u) + 4)}, {vr(VT(h) + 2 * x)}, {vr(PP(u))}, 0')
        a(f'''
        s_lshl_b32 s28, s23, 10
        s_add_u32 s28, s28, s48
        s_add_u32 s28, s28, {ACTB}
        s_add_u32 s29, s28, {TILE}
        s_lshl_b32 s30, s23, 7
        s_add_u32 s30, s30, s48
        s_add_u32 s30, s30, {ACTB + 16384}
        s_add_u32 s31, s30, {TILE}
        ''')
        for u, (x, h) in enumerate(units):
            O = OM(u)
            a(f'v_rcp_f32 v{O + 7}, v{O + 6}')
            for i in range(6):
                a(f'v_mul_f32 v{O + i}, v{O + i}, v{O + 7}')
            d = 120 + 8 * x
            a(f'v_cvt_pk_bf16_f32 v{d + 2 * h}, v{O}, v{O + 1}')
            a(f'v_cvt_pk_bf16_f32 v{d + 2 * h + 1}, v{O + 2}, v{O + 3}')
            a(f'v_cvt_pk_bf16_f32 v{d + 4 + h}, v{O + 4}, v{O + 5}')
            if h == 1:
                a(f'buffer_store_dwordx4 {vr(d)}, v0, {WS}, s{28 + x} offen sc1')
                self.exec_mask(0xffff)
                a(f'buffer_store_dwordx2 {vr(d + 4, 2)}, v1, {WS}, s{30 + x} offen sc1')
                self.exec_mask(-1)
        a('s_waitcnt vmcnt(0)')
        a('s_barrier')
        self.signal('s26')

    def small_loads(self, src_off, with_stats=None):
        a = self.a
        a(f's_add_u32 s48, s88, s24')
        a(f's_add_u32 s48, s48, {src_off}')
        self.tile_sgprs(48)
        sid = None
        if with_stats is not None:
            raw, so = with_stats
            a(f'buffer_load_dwordx2 {vr(raw, 2)}, v1, {WS}, {so} offen sc1')
            a(f'buffer_load_dwordx2 {vr(raw + 2, 2)}, v1, {WS}, {so} offen offset:512 sc1')
            sid = a.vm
        ids = []
        for s in range(18):
            self.load_frag(s, 4 * s, 48)
            ids.append(a.vm)
        return ids, sid

    def small_gemm(self, aid, acc, init_zero, extra=None, pre=40):
        a = self.a
        NS = 46
        slot = lambda f: 72 + 4 * (f % NS)

        def rd(f):
            return f'ds_read_b128 {ar(slot(f))}, v{250 if f >= 60 else 0} offset:{(f % 60) * 1024}'
        a(f'v_add_u32 v250, {60 * 1024}, v0')
        rid = {}
        nf = 0
        for f in range(pre):
            a(rd(f)); rid[f] = a.lg
        nf = pre
        for s in range(18):
            if aid is not None:
                a.wait_vm(aid[s])
            a.wait_lg(rid[5 * s + 4])
            for t in range(5):
                f = 5 * s + t
                c = '0' if (init_zero and s == 0) else vr(acc + 4 * t)
                a(f'{M16} {vr(acc + 4 * t)}, {ar(slot(f))}, {ar(4 * s)}, {c}')
                if nf < 90 and nf - NS < 5 * s:
                    a(rd(nf)); rid[nf] = a.lg; nf += 1
            if extra:
                extra(s, slot)

    def proj(self, which):
        a = self.a
        ACCR = 20
        if which == 2:
            a(f'''
            v_min_u32 v14, 15, v3
            v_lshlrev_b32 v14, 8, v14
            s_lshl_b32 s30, s22, 12
            s_add_u32 s30, s30, {FLAG}
            s_mov_b32 s31, s26
            ''')
        else:
            a(f'''
            v_min_u32 v14, 7, v3
            v_lshlrev_b32 v14, 8, v14
            s_lshl_b32 s30, s20, 11
            s_add_u32 s30, s30, {FLAG}
            s_add_u32 s31, s26, 2
            ''')
        for i in range(10):
            a(f'v_lshlrev_b32 v{ACCR + 2 * i}, 16, v{4 + i}')
            a(f'v_and_b32 v{ACCR + 2 * i + 1}, 0xffff0000, v{4 + i}')
        self.poll('s30', 's31')
        aid, _ = self.small_loads(ACTB if which == 2 else 3 * ACTB)
        a('s_barrier')
        self.small_gemm(aid, ACCR, False)
        a('s_barrier')
        for i in range(10):
            a(f'v_cvt_pk_bf16_f32 v{4 + i}, v{ACCR + 2 * i}, v{ACCR + 2 * i + 1}')
        if which == 5:
            a('s_cmp_eq_u32 s19, 1')
            a('s_cbranch_scc1 L_FINAL')
        dst = 2 * ACTB if which == 2 else 4 * ACTB
        a(f'''
        s_add_u32 s28, s88, s24
        s_add_u32 s28, s28, {dst}
        s_lshl_b32 s29, s21, 8
        s_add_u32 s29, s29, s28
        s_add_u32 s29, s29, 16384
        s_lshl_b32 s31, s21, 11
        s_add_u32 s28, s28, s31
        buffer_store_dwordx4 v[4:7], v0, {WS}, s28 offen sc1
        buffer_store_dwordx4 v[8:11], v0, {WS}, s28 offen offset:1024 sc1
        ''')
        self.exec_mask(0xffffffff)
        a(f'buffer_store_dwordx2 v[12:13], v1, {WS}, s29 offen sc1')
        self.exec_mask(-1)
        self.stats_emit(['v[4:7]', 'v[8:11]'], 'v[12:13]', 40, 44, None)
        a(f'''
        s_lshl_b32 s28, s21, 7
        s_add_u32 s28, s28, s89
        s_add_u32 s28, s28, s25
        s_add_u32 s28, s28, {STSTR if which == 2 else 2 * STSTR}
        v_and_b32 v48, 0x78, v1
        ''')
        self.stats_store(40, 44, 's28', 'v48')
        st = a.vm
        if which == 2:
            LP = a.label('PRODW')
            a('s_cmp_eq_u32 s21, 0')
            a(f's_cbranch_scc1 {LP}')
            self.dma_ws(1, range(3))
            a.wait_vm(st)
            a(f'{LP}:')
            a('s_cmp_lg_u32 s21, 0')
            LP2 = a.label('PRODW')
            a(f's_cbranch_scc1 {LP2}')
            a('s_waitcnt vmcnt(0)')
            a(f'{LP2}:')
        else:
            self.dma_wa(range(3))
            a.wait_vm(st)
        a('s_barrier')
        a(f's_add_u32 s31, s26, {1 if which == 2 else 3}')
        self.signal('s31')
        if which == 2:
            LP = a.label('PRODW')
            a('s_cmp_eq_u32 s21, 0')
            a(f's_cbranch_scc1 {LP}')
            self.dma_ws(1, range(3, 6))
            a(f'{LP}:')
        else:
            self.dma_wa(range(3, 8))

    def p3(self):
        a = self.a
        QA, CQ, RAW, NM, RS, PR, KA, KC = 20, 40, 48, 52, 53, 54, 64, 80
        Q1, Q2 = 132, 140
        LNP, LJ = a.label('NOPROD'), a.label('JOIN')
        a(f'''
        v_min_u32 v14, 7, v3
        v_lshlrev_b32 v14, 8, v14
        s_lshl_b32 s32, s20, 11
        s_add_u32 s32, s32, {FLAG}
        s_add_u32 s33, s26, 1
        s_add_u32 s58, s89, s25
        s_add_u32 s58, s58, {STSTR}
        v_and_b32 v180, 15, v3
        v_lshrrev_b32 v181, 4, v3
        s_cmp_lg_u32 s21, 0
        s_cbranch_scc1 {LNP}
        ''')
        wreg = lambda f: ar(72 + 4 * f) if f < 46 else vr(184 + 4 * (f - 46))
        a(f'v_add_u32 v250, {L_KVW}, v0')
        rid = {}
        for f in range(54):
            a(f'ds_read_b128 {wreg(f)}, v250 offset:{f * 1024}')
            rid[f] = a.lg
            if f % 3 == 2 and f >= 14:
                s = f // 3 - 4
                self._kv_cs(s, wreg, KC, rid)
        for s in range(14, 18):
            self._kv_cs(s, wreg, KC, rid)
        self.poll('s32', 's33')
        aid, sid = self.small_loads(2 * ACTB, (RAW, 's58'))
        self.dma_ws(1, range(6))
        a.wait_vm(sid)
        self.stats_finish(RAW, NM, RS, 62)
        a(f'''
        s_lshl_b32 s28, s17, 9
        s_add_u32 s28, s28, {L_ST}
        v_lshl_add_u32 v182, v180, 2, s28
        v_lshl_add_u32 v183, v181, 4, s28
        ds_write_b32 v182, v{NM}
        ds_write_b32 v182, v{RS} offset:64
        ds_read_b128 {vr(PR)}, v183
        ds_read_b128 {vr(PR + 4)}, v183 offset:64
        s_lshr_b32 s28, s20, 2
        s_mul_i32 s28, s28, {GRP}
        s_mul_i32 s29, s19, {KVSTR}
        s_add_u32 s28, s28, s29
        s_add_u32 s28, s28, {KVIMG}
        s_and_b32 s29, s20, 3
        s_lshl_b32 s34, s29, 8
        s_add_u32 s34, s34, s28
        s_lshr_b32 s30, s17, 1
        s_lshl_b32 s31, s30, 2
        s_add_u32 s34, s34, s31
        s_and_b32 s31, s17, 1
        s_lshl_b32 s35, s31, 7
        s_add_u32 s34, s34, s35
        s_lshl_b32 s29, s29, 1
        s_add_u32 s29, s29, s30
        s_mul_i32 s29, s29, {STEP}
        s_add_u32 s28, s28, s29
        s_add_u32 s28, s28, 1024
        s_lshl_b32 s35, s31, 8
        s_add_u32 s35, s35, s28
        s_mul_i32 s36, s31, 608
        s_add_u32 s36, s36, s28
        s_add_u32 s36, s36, 1024
        v_mul_u32_u24 v182, 304, v181
        v_lshl_add_u32 v182, v180, 4, v182
        v_lshlrev_b32 v183, 8, v181
        v_lshl_add_u32 v183, v180, 4, v183
        ''')
        for s in range(18):
            a.wait_vm(aid[s])
            x = ar(4 * s)
            z = lambda i: '0' if s == 0 else vr(KA + 4 * i)
            a(f'{M16} {vr(KA)}, {wreg(3 * s)}, {x}, {z(0)}')
            a(f'{M16} {vr(KA + 4)}, {wreg(3 * s + 2)}, {x}, {z(1)}')
            a(f'{M16} {vr(KA + 8)}, {x}, {wreg(3 * s + 1)}, {z(2)}')
            a(f'{M16} {vr(KA + 12)}, {x}, {wreg(3 * s + 2)}, {z(3)}')
        a('s_waitcnt lgkmcnt(0)')
        for i in range(6):
            a(f'v_fma_f32 v{KA + i}, v{KC + i}, v{NM}, v{KA + i}')
        for i in range(6):
            a(f'v_mul_f32 v{KA + i}, v{KA + i}, v{RS}')
        a(f'''
        v_cvt_pk_bf16_f32 v96, v{KA}, v{KA + 1}
        v_cvt_pk_bf16_f32 v97, v{KA + 2}, v{KA + 3}
        v_cvt_pk_bf16_f32 v100, v{KA + 4}, v{KA + 5}
        v_mov_b32 v98, v96
        v_mov_b32 v99, v97
        ''')
        for i in range(8, 16):
            a(f'v_fma_f32 v{KA + i}, v{KC + i}, v{PR + i % 4}, v{KA + i}')
        a('v_dot2_f32_bf16 v101, v96, v96, 0')
        a('v_dot2_f32_bf16 v101, v97, v97, v101')
        a('v_dot2_f32_bf16 v101, v100, v100, v101')
        a('v_permlane16_swap_b32 v96, v98')
        a('v_permlane16_swap_b32 v97, v99')
        self.exec_mask(0x0000ffff0000ffff)
        a(f'buffer_store_dwordx4 v[96:99], v183, {WS}, s35 offen sc1')
        self.exec_mask(0xffff)
        a(f'buffer_store_dword v100, v1, {WS}, s34 offen sc1')
        self.exec_mask(-1)
        for i in range(8, 16):
            a(f'v_mul_f32 v{KA + i}, v{KA + i}, v{PR + 4 + i % 4}')
        for k in range(2):
            d = 104 + 4 * k
            a(f'v_cvt_pk_bf16_f32 v{d}, v{KA + 8 + 4 * k}, v{KA + 9 + 4 * k}')
            a(f'v_cvt_pk_bf16_f32 v{d + 1}, v{KA + 10 + 4 * k}, v{KA + 11 + 4 * k}')
            a(f'v_mov_b32 v{d + 2}, v{d}')
            a(f'v_mov_b32 v{d + 3}, v{d + 1}')
        for k in range(2):
            d = 104 + 4 * k
            a(f'v_permlane32_swap_b32 v{d}, v{d + 2}')
            a(f'v_permlane32_swap_b32 v{d + 1}, v{d + 3}')
        self.exec_mask(0xffffffff)
        a(f'buffer_store_dwordx4 v[104:107], v182, {WS}, s36 offen sc1')
        self.exec_mask(0x000c000c)
        a(f'buffer_store_dwordx4 v[108:111], v182, {WS}, s36 offen offset:224 sc1')
        self.exec_mask(-1)
        self.allred(101, 102)
        self.rowmax(101)
        a(f'''
        s_lshl_b32 s28, s17, 2
        s_add_u32 s28, s28, {L_KM}
        v_mov_b32 v102, s28
        ds_write_b32 v102, v101
        s_waitcnt vmcnt(0) lgkmcnt(0)
        s_barrier
        s_cmp_lg_u32 s17, 0
        s_cbranch_scc1 {LJ}
        ds_read_b128 v[104:107], v102
        s_add_u32 s28, s18, 1
        v_mov_b32 v108, s28
        v_mov_b32 v110, s28
        s_lshl_b32 s28, s19, 13
        s_lshl_b32 s29, s20, 8
        s_add_u32 s28, s28, s29
        s_add_u32 s28, s28, {KVFLAG}
        s_waitcnt lgkmcnt(0)
        v_max3_f32 v109, v104, v105, v106
        v_max_f32 v109, v109, v107
        v_mov_b32 v111, v109
        ''')
        self.exec_mask(0xff)
        a(f'buffer_store_dwordx4 v[108:111], v0, {WS}, s28 offen sc1')
        self.exec_mask(-1)
        a(f's_branch {LJ}')
        a(f'{LNP}:')
        self.poll('s32', 's33')
        aid, sid = self.small_loads(2 * ACTB, (RAW, 's58'))
        a.wait_vm(sid)
        self.stats_finish(RAW, NM, RS, 62)
        a('s_waitcnt vmcnt(0)')
        a('s_barrier')
        a(f'{LJ}:')

        def extra(s, slot):
            for t in range(5):
                a(f'{M16} {vr(64 + 4 * t)}, {ar(slot(5 * s + t))}, {ONES}, {"0" if s == 0 else vr(64 + 4 * t)}')
        self.small_gemm(None, QA, True, extra=extra, pre=15)
        a('s_barrier')
        qs = 18 ** -0.5 * math.log2(math.e)
        a(f'v_mul_f32 v{RS}, 0x{f2u(qs):x}, v{RS}')
        for i in range(20):
            a(f'v_fma_f32 v{QA + i}, v{64 + i}, v{NM}, v{QA + i}')
        for i in range(20):
            a(f'v_mul_f32 v{QA + i}, v{QA + i}, v{RS}')
        for c in range(2):
            for k in range(4):
                a(f'v_cvt_pk_bf16_f32 v{Q1 + 4 * c + k}, v{QA + 8 * c + 2 * k}, v{QA + 8 * c + 2 * k + 1}')
            b = Q2 + 8 * c
            a(f'v_cvt_pk_bf16_f32 v{b}, v{QA + 16 + 2 * c}, v{QA + 17 + 2 * c}')
            for k in (1, 2, 4, 5, 6):
                a(f'v_mov_b32 v{b + k}, 0')
            a(f'v_mov_b32 v{b + 3}, v{b}')
            a(f'v_mov_b32 v{b + 7}, v{b}')
        for c in range(2):
            b = Q2 + 8 * c
            a(f'v_permlane16_swap_b32 v{Q1 + 4 * c}, v{Q1 + 4 * c + 2}')
            a(f'v_permlane16_swap_b32 v{Q1 + 4 * c + 1}, v{Q1 + 4 * c + 3}')
            a(f'v_permlane32_swap_b32 v{b + 4}, v{b + 7}')
        for c in range(2):
            b = Q2 + 8 * c
            a(f'v_mov_b32 v{b + 7}, v{b + 4}')
            a(f'v_dot2_f32_bf16 v{156 + c}, v{b}, v{b}, 0')
            for k in range(4):
                a(f'v_dot2_f32_bf16 v{156 + c}, v{Q1 + 4 * c + k}, v{Q1 + 4 * c + k}, v{156 + c}')
        for c in range(2):
            self.allred(156 + c, 158, only32=True)

    def _kv_cs(self, s, wreg, KC, rid):
        a = self.a
        a.wait_lg(rid[3 * s + 2])
        z = lambda i: '0' if s == 0 else vr(KC + 4 * i)
        a(f'{M16} {vr(KC)}, {wreg(3 * s)}, {ONES}, {z(0)}')
        a(f'{M16} {vr(KC + 4)}, {wreg(3 * s + 2)}, {ONES}, {z(1)}')
        a(f'{M16} {vr(KC + 8)}, {ONES}, {wreg(3 * s + 1)}, {z(2)}')
        a(f'{M16} {vr(KC + 12)}, {ONES}, {wreg(3 * s + 2)}, {z(3)}')

    def p4(self):
        a = self.a
        S = (20, 36)
        SH = (52, 68)
        O = (84, 100)
        P = (116, 124)
        Q1 = (132, 136)
        Q2 = lambda c, t: 140 + 8 * c + 2 * (t % 4)
        K1 = lambda t: 4 * (t % 2)
        V0 = lambda t: 8 + 8 * (t % 2)
        V1 = lambda t: 12 + 8 * (t % 2)
        K2 = lambda t: 24 + 2 * ((t // 4) % 2)
        vK, vK2, vV = 160, 161, 162
        a(f'''
        v_and_b32 v14, 31, v3
        v_lshlrev_b32 v14, 8, v14
        s_lshl_b32 s30, s19, 13
        s_add_u32 s30, s30, {KVFLAG}
        s_add_u32 s31, s18, 1
        v_mov_b32 v{vK}, v0
        v_mov_b32 v{vK2}, v1
        v_and_b32 v163, 31, v3
        v_add_u32 v164, -20, v163
        v_cmp_gt_u32 vcc, 8, v164
        v_cndmask_b32 v164, 4, 0, vcc
        v_cmp_lt_u32 vcc, 18, v163
        v_cndmask_b32 v163, v163, v164, vcc
        v_lshrrev_b32 v164, 5, v3
        v_mul_u32_u24 v164, 304, v164
        v_lshl_add_u32 v{vV}, v163, 4, v164
        ''')
        for i in range(32):
            a(f'v_mov_b32 v{O[0] + i}, 0')
        for i in range(4):
            a(f'v_mov_b32 v{P[1] + 4 + i}, 0')
            a(f'v_accvgpr_write_b32 a{V1(1) + i}, 0')
        self.poll('s30', 's31', wide=True)
        a(f's_mul_i32 s30, s19, {KVSTR}')
        a(f's_add_u32 s30, s30, {KVIMG}')
        self.dma_linear('s30', 0, 148, range(2))
        first = a.vm
        self.dma_linear('s30', 0, 148, range(2, 10))
        self.allred(249, 158, op='v_max_f32')
        self.rowmax(249)
        for c in range(2):
            a(f'v_mul_f32 v{156 + c}, v{156 + c}, v249')
            a(f'v_sqrt_f32 v{156 + c}, v{156 + c}')
        for c in range(2):
            a(f'v_mul_f32 v{156 + c}, 0x{f2u(1.002):x}, v{156 + c}')
        thr = -1.0 if self.force_fallback else BTHR
        a(f'v_mov_b32 v158, 0x{f2u(thr):x}')
        a('v_cmp_nle_f32 s[28:29], v156, v158')
        a('v_cmp_nle_f32 vcc, v157, v158')
        a('s_or_b64 vcc, vcc, s[28:29]')
        a('s_mov_b32 s34, 0')
        a.wait_vm(first)
        a('s_barrier')
        LFB, LGO = a.label('FALLBACK'), a.label('GO')
        a(f's_cbranch_vccnz {LFB}')
        a(f'{LGO}:')
        for c in range(2):
            for i in range(16):
                a(f'v_sub_f32 v{SH[c] + i}, 0, v{156 + c}')
        koff = lambda t: (t // 8) * GRP + 1024 + (t % 8) * STEP
        k2off = lambda t: (t // 8) * GRP + ((t % 8) // 4) * 512
        a(f'ds_read_b64 {ar(K2(0), 2)}, v{vK2} offset:{k2off(0)}')
        a(f'ds_read_b128 {ar(K1(0))}, v{vK} offset:{koff(0)}')
        a(f'ds_read_b128 {ar(K1(1))}, v{vK} offset:{koff(1)}')
        a(f'ds_read_b128 {ar(V0(0))}, v{vV} offset:{koff(0) + 1024}')
        a(f'ds_read_b128 {ar(V1(0))}, v{vV} offset:{koff(0) + 1024 + 608}')
        a('s_waitcnt lgkmcnt(0)')
        a(f'{M32H} {vr(S[0], 16)}, {ar(K2(0), 2)}, {vr(Q2(0, 0), 2)}, {vr(SH[0], 16)}')
        a(f'{M32} {vr(S[0], 16)}, {ar(K1(0))}, {vr(Q1[0])}, {vr(S[0], 16)}')
        a('s_mov_b32 s35, 0')
        a('s_nop 9')
        LL = a.label('ATT')
        a('.p2align 6')
        a(f'{LL}:')
        e = lambda c, i: f'v_exp_f32 v{S[c] + i}, v{S[c] + i}'
        cv = lambda c, i: f'v_cvt_pk_bf16_f32 v{P[c] + i}, v{S[c] + 2 * i}, v{S[c] + 2 * i + 1}'
        for t in range(8):
            for c in range(2):
                n = 1 - c
                tn = t + c
                tp = t - 1 + c
                g = [[], [], [], []]
                if c == 0:
                    g[1].append(f'ds_read_b128 {ar(K1(t))}, v{vK} offset:{koff(t + 2)}')
                    g[2].append(f'ds_read_b128 {ar(V1(t + 1))}, v{vV} offset:{koff(t + 1) + 1024 + 608}')
                    g[3].append(f'ds_read_b128 {ar(V0(t + 1))}, v{vV} offset:{koff(t + 1) + 1024}')
                else:
                    if t in (1, 5):
                        g[1].append(f'ds_read_b64 {ar(K2(t + 3), 2)}, v{vK2} offset:{k2off(t + 3)}')
                    g[3].append('s_waitcnt lgkmcnt(0)')
                    if t == 7:
                        g[1].append('s_add_u32 s35, s35, 1')
                        g[2].append('s_cmp_eq_u32 s35, 8')
                a(f'{M32H} {vr(S[n], 16)}, {ar(K2(tn), 2)}, {vr(Q2(n, tn), 2)}, {vr(SH[n], 16)}')
                for x in g[0] + [e(c, 0), e(c, 1), e(c, 2), cv(c, 0), e(c, 3)]: a(x)
                a(f'{M32} {vr(S[n], 16)}, {ar(K1(tn))}, {vr(Q1[n])}, {vr(S[n], 16)}')
                for x in g[1] + [e(c, 4), cv(c, 1), e(c, 5), e(c, 6), cv(c, 2), e(c, 7)]: a(x)
                a(f'{M32} {vr(O[n], 16)}, {ar(V1(tp))}, {vr(P[n] + 4)}, {vr(O[n], 16)}')
                for x in g[2] + [e(c, 8), cv(c, 3), e(c, 9), e(c, 10), cv(c, 4), e(c, 11)]: a(x)
                a(f'{M32} {vr(O[c], 16)}, {ar(V0(t))}, {vr(P[c])}, {vr(O[c], 16)}')
                for x in g[3] + [e(c, 12), cv(c, 5), e(c, 13), e(c, 14), e(c, 15), cv(c, 6), cv(c, 7)]: a(x)
        LD, LB = a.label('ATTD'), a.label('ATTB')
        a(f'''
        s_cbranch_scc1 {LD}
        v_add_u32 v{vK}, {GRP}, v{vK}
        v_add_u32 v{vK2}, {GRP}, v{vK2}
        v_add_u32 v{vV}, {GRP}, v{vV}
        s_cmp_lg_u32 s34, 0
        s_cbranch_scc1 {LL}
        s_mov_b32 s34, 1
        s_waitcnt vmcnt(0)
        s_barrier
        s_branch {LL}
        ''')
        a(f'{LFB}:')
        a('s_mov_b32 s34, 1')
        a('s_waitcnt vmcnt(0)')
        a('s_barrier')
        a(f'v_mov_b32 v156, 0x{f2u(-3.0e38):x}')
        a(f'v_mov_b32 v157, 0x{f2u(-3.0e38):x}')
        a('s_mov_b32 s35, 0')
        LM = a.label('MAXL')
        a(f'{LM}:')
        for t in range(8):
            if t % 4 == 0:
                a(f'ds_read_b64 {ar(K2(t), 2)}, v{vK2} offset:{k2off(t)}')
            a(f'ds_read_b128 {ar(K1(t))}, v{vK} offset:{koff(t)}')
            a('s_waitcnt lgkmcnt(0)')
            for c in range(2):
                a(f'{M32H} {vr(S[c], 16)}, {ar(K2(t), 2)}, {vr(Q2(c, t), 2)}, 0')
                a(f'{M32} {vr(S[c], 16)}, {ar(K1(t))}, {vr(Q1[c])}, {vr(S[c], 16)}')
            for c in range(2):
                for i in range(8):
                    a(f'v_max3_f32 v{156 + c}, v{156 + c}, v{S[c] + 2 * i}, v{S[c] + 2 * i + 1}')
        a(f'''
        v_add_u32 v{vK}, {GRP}, v{vK}
        v_add_u32 v{vK2}, {GRP}, v{vK2}
        s_add_u32 s35, s35, 1
        s_cmp_lt_u32 s35, 8
        s_cbranch_scc1 {LM}
        v_mov_b32 v{vK}, v0
        v_mov_b32 v{vK2}, v1
        ''')
        for c in range(2):
            self.allred(156 + c, 158, op='v_max_f32', only32=True)
        a(f's_branch {LGO}')
        a(f'{LD}:')
        a('s_nop 1')
        a(f'{M32} {vr(O[1], 16)}, {ar(V1(7))}, {vr(P[1] + 4)}, {vr(O[1], 16)}')
        a('s_barrier')
        a(f'''
        s_add_u32 s32, s88, s24
        s_add_u32 s32, s32, {3 * ACTB}
        s_lshl_b32 s33, s21, 8
        s_add_u32 s33, s33, s32
        s_add_u32 s33, s33, 16384
        s_lshl_b32 s31, s21, 11
        s_add_u32 s32, s32, s31
        ''')
        for c in range(2):
            o = O[c]
            a(f'v_mov_b32 v{o + 11}, v{o + 10}')
            a(f'v_permlane32_swap_b32 v{o + 10}, v{o + 11}')
            a(f'v_rcp_f32 v{o + 10}, v{o + 10}')
            for i in range(10):
                a(f'v_mul_f32 v{o + i}, v{o + i}, v{o + 10}')
            for k in range(4):
                a(f'v_cvt_pk_bf16_f32 v{20 + 4 * c + k}, v{o + 2 * k}, v{o + 2 * k + 1}')
            a(f'v_cvt_pk_bf16_f32 v{28 + c}, v{o + 8}, v{o + 9}')
            a(f'buffer_store_dwordx4 {vr(20 + 4 * c)}, v0, {WS}, s32 offen offset:{1024 * c} sc1')
        a('v_permlane16_swap_b32 v28, v29')
        self.exec_mask(0xffffffff)
        a(f'buffer_store_dwordx2 v[28:29], v1, {WS}, s33 offen sc1')
        self.exec_mask(-1)
        st = a.vm
        self.dma_ws(2, range(3))
        a.wait_vm(st)
        a('s_barrier')
        a('s_add_u32 s31, s26, 2')
        self.signal('s31')
        self.dma_ws(2, range(3, 6))

    def stop_in_loop(self, n):
        a = self.a
        if self.stop in (n, n + 5):
            L = a.label('NOSTOP')
            a(f's_cmp_lg_u32 s19, {0 if self.stop == n else 1}')
            a(f's_cbranch_scc1 {L}')
            a('s_waitcnt vmcnt(0)')
            a('s_branch L_END')
            a(f'{L}:')

    def build(self):
        a = self.a
        self.p0()
        a(f'''
        s_lshl_b32 s89, s20, 2
        s_add_u32 s89, s89, s17
        s_mul_i32 s88, s89, {TILE}
        s_lshl_b32 s89, s89, 10
        L_LAYER:
        ''')
        self.p1(); self.stop_in_loop(1)
        self.proj(2); self.stop_in_loop(2)
        self.p3(); self.stop_in_loop(3)
        self.p4(); self.stop_in_loop(4)
        self.proj(5); self.stop_in_loop(5)
        a(f'''
        s_mov_b32 s19, 1
        s_add_u32 s85, s26, 3
        s_add_u32 s26, s26, 4
        s_add_u32 s24, s24, {4 * ACTB}
        s_add_u32 s25, s25, {2 * STSTR}
        s_lshl_b32 s82, s22, 4
        s_sub_u32 s82, s82, 8
        s_mov_b32 s83, 0
        s_mov_b32 s84, 23
        s_branch L_LAYER
        L_FINAL:
        v_and_b32 v20, 15, v3
        v_lshrrev_b32 v21, 4, v3
        v_mul_u32_u24 v20, 1152, v20
        v_lshl_add_u32 v22, v21, 4, v20
        v_lshl_add_u32 v23, v21, 3, v20
        s_mul_i32 s28, s21, 144
        s_add_u32 s28, s28, s88
        buffer_store_dwordx4 v[4:7], v22, s[12:15], s28 offen
        buffer_store_dwordx4 v[8:11], v22, s[12:15], s28 offen offset:64
        ''')
        self.exec_mask(0xffffffff)
        a('buffer_store_dwordx2 v[12:13], v23, s[12:15], s28 offen offset:128')
        self.exec_mask(-1)
        a(f'''
        L_END:
        s_or_b32 s28, s16, s17
        s_cmp_lg_u32 s28, 0
        s_cbranch_scc1 L_EXIT
        v_mov_b32 v20, s18
        v_mov_b32 v21, 0
        s_mov_b64 exec, 1
        buffer_store_dword v20, v21, {WS}, 0 offen sc1
        L_EXIT:
        s_endpgm
        ''')
        bad = a.check_branches()
        for b in bad:
            print('BRANCH HAZARD', b, file=sys.stderr)
        head = open(f'cdna_kernels/{NAME}.s.ref').read().split('; Override launch')[0]
        return f'''{head}; @launch grid=(256,1,1) block=(256,1,1) lds={LDS_BYTES}
.amdgcn_target "amdgcn-amd-amdhsa--gfx950"
.text
.globl {NAME}_kernel
.p2align 8
.type {NAME}_kernel,@function
{NAME}_kernel:
{a.text()}.section .rodata,"a"
.p2align 6
.amdhsa_kernel {NAME}_kernel
  .amdhsa_next_free_vgpr 512
  .amdhsa_next_free_sgpr 102
  .amdhsa_accum_offset 256
  .amdhsa_group_segment_fixed_size 0
  .amdhsa_kernarg_size 88
  .amdhsa_user_sgpr_count 2
  .amdhsa_user_sgpr_kernarg_segment_ptr 1
  .amdhsa_system_sgpr_workgroup_id_x 1
.end_amdhsa_kernel
'''


if __name__ == '__main__':
    import argparse
    ap = argparse.ArgumentParser()
    ap.add_argument('-o', default=f'cdna_kernels/{NAME}.s')
    ap.add_argument('--stop', type=int, default=99)
    ap.add_argument('--fallback', action='store_true')
    args = ap.parse_args()
    g = Gen(args.stop, args.fallback)
    txt = g.build()
    open(args.o, 'w').write(txt)
    print('nops inserted:', g.a.nops, 'lines:', txt.count('\n'))
```

```python
import re

REG_RE = re.compile(r'(?<![\w.])([vas])(?:(\d+)|\[(\d+):(\d+)\])(?![\w])')
TRANS = ('v_exp_f32', 'v_log_f32', 'v_rcp_f32', 'v_rsq_f32', 'v_sqrt_f32', 'v_sin_f32', 'v_cos_f32')


def regs_of(op):
    out = set()
    for m in REG_RE.finditer(op):
        k = m.group(1)
        if m.group(2) is not None:
            out.add((k, int(m.group(2))))
        else:
            for i in range(int(m.group(3)), int(m.group(4)) + 1):
                out.add((k, i))
    if re.search(r'\bvcc\b', op):
        out |= {('s', 'vcc')}
    if re.search(r'\bm0\b', op):
        out |= {('s', 'm0')}
    if re.search(r'\bexec(_lo|_hi)?\b', op):
        out |= {('s', 'exec')}
    return out


def split_ops(s):
    ops, depth, cur = [], 0, ''
    for ch in s:
        if ch in '[(':
            depth += 1
        if ch in '])':
            depth -= 1
        if ch == ',' and depth == 0:
            ops.append(cur.strip()); cur = ''
        else:
            cur += ch
    if cur.strip():
        ops.append(cur.strip())
    return ops


class Ins:
    def __init__(self, text):
        self.text = text
        t = text.split(';')[0].strip()
        parts = t.split(None, 1)
        self.mn = mn = parts[0]
        ops = split_ops(parts[1]) if len(parts) > 1 else []
        self.ops = ops
        self.mfma = mn.startswith('v_mfma')
        self.valu = mn.startswith('v_') and not self.mfma
        self.ds = mn.startswith('ds_')
        self.vmem = mn.startswith('buffer_') or mn.startswith('global_')
        self.salu = mn.startswith('s_')
        self.trans = mn in TRANS
        self.dot = mn.startswith('v_dot')
        self.permlane = mn.startswith('v_permlane')
        self.dpp = '_dpp' in mn
        self.readlane = mn in ('v_readfirstlane_b32', 'v_readlane_b32')
        self.ldsdma = self.vmem and bool(re.search(r'\blds\b', t))
        self.states = 1
        if mn == 's_nop':
            self.states = int(ops[0], 0) + 1
        R = [regs_of(o) for o in ops]
        w, r = set(), set()
        self.store_data = set()
        if self.mfma:
            w = R[0]; self.A, self.B, self.C = R[1], R[2], R[3]
            r = R[1] | R[2] | R[3]
            self.passes = 16 if '_2b_' in mn else (8 if '32x32' in mn else 4)
        elif self.valu:
            if self.permlane:
                w = R[0] | R[1]; r = set(w)
            elif '_co_' in mn:
                w = R[0] | R[1]; r = set().union(*R[2:])
            else:
                w = R[0]; r = set().union(*R[1:]) if len(R) > 1 else set()
                if 'fmac' in mn or 'dot2c' in mn or self.dpp:
                    r |= R[0]
        elif self.ds:
            if 'read' in mn or 'permute' in mn or 'swizzle' in mn or '_rtn' in mn:
                w = R[0]; r = set().union(*R[1:])
            else:
                r = set().union(*R)
        elif self.vmem:
            if 'load' in mn and not self.ldsdma:
                w = R[0]; r = set().union(*R[1:])
            else:
                r = set().union(*R)
                if self.ldsdma:
                    r |= {('s', 'm0')}
                if 'store' in mn and ('x4' in mn or 'x3' in mn):
                    self.store_data = R[0]
        elif self.salu:
            if mn.startswith(('s_cmp', 's_cbranch', 's_branch', 's_waitcnt', 's_nop', 's_barrier', 's_endpgm',
                              's_sleep', 's_bitcmp', 's_setprio')):
                r = set().union(*R) if R else set()
                if 'vcc' in mn:
                    r |= {('s', 'vcc')}
            else:
                w = R[0]; r = set().union(*R[1:]) if len(R) > 1 else set()
        self.w, self.r = w, r
        self.branch = ops[0] if mn.startswith(('s_cbranch', 's_branch')) else None


def vec(s):
    return {x for x in s if x[0] in 'va'}


def sca(s):
    return {x for x in s if x[0] == 's'}


def need(P, X):
    n = 0
    if P.valu:
        wv, ws = vec(P.w), sca(P.w)
        if wv & X.r:
            if X.mfma:
                n = max(n, 2)
            if X.permlane or X.dpp:
                n = max(n, 2)
            if X.readlane:
                n = max(n, 1)
            if P.trans:
                n = max(n, 1)
        if P.dot and (wv & (X.r | X.w)):
            same_c = X.dot and X.mn == P.mn and not (wv & set().union(*[regs_of(o) for o in X.ops[1:3]]))
            if not same_c:
                n = max(n, 3)
        if ws & X.r:
            if X.valu:
                n = max(n, 4 if X.mn in ('v_readlane_b32', 'v_writelane_b32') else 2)
            if X.vmem:
                n = max(n, 5)
            if X.salu:
                n = max(n, 1)
    if P.mfma:
        D = P.w
        big = {4: 8, 8: 12, 16: 20}[P.passes]
        if X.mfma:
            if D & (X.A | X.B):
                n = max(n, big)
            if D & X.C:
                if not (X.C == D and X.passes == P.passes):
                    n = max(n, big - 2)
            elif D & X.w:
                n = max(n, big - 2)
        elif X.valu or X.vmem or X.ds:
            if D & (X.r | X.w):
                n = max(n, big)
        if (X.valu or X.ds or X.vmem) and (vec(P.C) & X.w):
            n = max(n, {4: 3, 8: 7, 16: 15}[P.passes])
    if P.salu and ('s', 'm0') in P.w and X.ldsdma:
        n = max(n, 1)
    if P.store_data and (P.store_data & X.w):
        n = max(n, 2)
    return n


class Capture:
    def __init__(self, a):
        self.a = a

    def __enter__(self):
        self.prev = self.a.cap
        self.a.cap = []
        return self.a.cap

    def __exit__(self, *e):
        self.a.cap = self.prev


def groups(items, heads=('buffer_',)):
    out, cur, closed = [], [], False
    for it in items:
        trailing = callable(it) or it.startswith('s_mov_b64 exec, -1')
        if closed and not trailing:
            out.append(cur); cur = []; closed = False
        cur.append(it)
        if not callable(it) and it.startswith(heads):
            closed = True
    if cur:
        out.append(cur)
    return out


def weave(a, main, side, every, start=0):
    side = list(side)
    n = 0
    masked = False
    for it in main:
        a.emit(it)
        if callable(it):
            continue
        if it.startswith(('s_mov_b32 exec', 's_mov_b64 exec')):
            masked = not it.startswith('s_mov_b64 exec, -1')
        if it.startswith(('s_cmp', 's_cbranch', 's_branch')) or it.endswith(':'):
            raise ValueError('control flow inside a woven stream: ' + it)
        n += 1
        if side and not masked and n >= start + every:
            for x in side.pop(0):
                a.emit(x)
            n = start
    return side


class Asm:
    def __init__(self):
        self.items = []
        self.vm = 0
        self.lg = 0
        self.nops = 0
        self.uid = 0
        self.cap = None
        self.marks = {}

    def _pad(self, X, hist):
        dist, req = 0, 0
        for P in reversed(hist):
            if not isinstance(P, Ins):
                continue
            req = max(req, need(P, X) - dist)
            dist += P.states
            if dist >= 21:
                break
        return req

    def capture(self):
        return Capture(self)

    def emit(self, item):
        if callable(item):
            item()
        else:
            self(item)

    def mark_vm(self, key):
        if self.cap is not None:
            self.cap.append(lambda: self.mark_vm(key))
        else:
            self.marks[key] = self.vm

    def mark_lg(self, key):
        if self.cap is not None:
            self.cap.append(lambda: self.mark_lg(key))
        else:
            self.marks[key] = self.lg

    def wvm(self, key):
        if self.cap is not None:
            self.cap.append(lambda: self.wvm(key))
        else:
            self.wait_vm(self.marks[key])

    def wlg(self, key):
        if self.cap is not None:
            self.cap.append(lambda: self.wlg(key))
        else:
            self.wait_lg(self.marks[key])

    def __call__(self, text):
        if self.cap is not None:
            for line in text.strip().split('\n'):
                if line.strip():
                    self.cap.append(line.strip())
            return self
        for line in text.strip().split('\n'):
            line = line.strip()
            if not line or line.startswith(';'):
                if line:
                    self.items.append('    ' + line)
                continue
            if line.endswith(':') or line.startswith('.'):
                self.items.append(line)
                continue
            X = Ins(line)
            req = self._pad(X, self.items[-64:])
            while req > 0:
                k = min(req, 16)
                self.items.append(Ins(f's_nop {k - 1}'))
                self.nops += 1
                req -= k
            self.items.append(X)
            if X.vmem:
                self.vm += 1
            if X.ds:
                self.lg += 1
        return self

    def label(self, prefix='L'):
        self.uid += 1
        return f'{prefix}_{self.uid}'

    def wait_vm(self, idx):
        self(f's_waitcnt vmcnt({min(63, self.vm - idx)})')

    def wait_lg(self, idx):
        self(f's_waitcnt lgkmcnt({min(15, self.lg - idx)})')

    def check_branches(self):
        pos = {it[:-1]: i for i, it in enumerate(self.items) if isinstance(it, str) and it.endswith(':')}
        bad = []
        for i, it in enumerate(self.items):
            if isinstance(it, Ins) and it.branch:
                t = pos[it.branch]
                hist = list(self.items[max(0, i - 64):i + 1])
                cnt = 0
                for X in self.items[t:]:
                    if not isinstance(X, Ins):
                        continue
                    if self._pad(X, hist) > 0:
                        bad.append((it.text, X.text, self._pad(X, hist)))
                    hist.append(X)
                    cnt += X.states
                    if cnt > 21 or X.mn in ('s_branch', 's_endpgm'):
                        break
        return bad

    def text(self):
        return '\n'.join(('    ' + it.text) if isinstance(it, Ins) else it for it in self.items) + '\n'
```

```python
import sys, struct, math
from asmlib import Asm, groups, weave

NAME = 'interleave_layers__sliding_local_dilated__grouped_kv_mqa__prompt'

FLAG = 0x1000
KVFLAG = 0x12000
HFLAG = 0x16000
KVIMG = 0x20000
KVSTR = 0x28000
STATS = 0x80000
STSTR = 0x20000
WA_P = 0x100000
WS_P = 0x300000
WSSTR = 0xB4000
WKV_P = 0x520000
PCS = 0x540000
HALO = 0x550000
HSLOT = 0x5000
ACT = 0x600000
ACTB = 0x240000
PROF = 0x1800000
WS_SIZE = 0x1900000
TILE = 18432
GRP = 18944
STEP = 2240
L_KVW = 90 * 1024
L_HALO = 126 * 1024
L_X = 144 * 1024
L_EX = L_X
L_VT = L_X + 9216
L_CS = L_X + 13056
L_ST = L_CS + 1024
L_KM = L_ST + 2048
L_CNT = L_KM + 16
LDS_BYTES = 160 * 1024
BLOCK = 512
POLL_LIMIT = 40000
BTHR = 50.0


def f2u(x):
    return struct.unpack('<I', struct.pack('<f', x))[0]


def vr(b, n=4):
    return f'v[{b}:{b + n - 1}]' if n > 1 else f'v{b}'


M16 = 'v_mfma_f32_16x16x32_bf16'
M16H = 'v_mfma_f32_16x16x16_bf16'
M32 = 'v_mfma_f32_32x32x16_bf16'
M32H = 'v_mfma_f32_32x32x8_bf16'
WS = 's[4:7]'
ONES = 'v[16:19]'


class Gen:
    def __init__(self, force_fallback=False, prof=False, no_local=False, sep=False):
        self.no_local = no_local
        self.B = [i * ACTB for i in range(5)] if sep else [0, ACTB, 0, ACTB, 0]
        self.ST = [i * STSTR for i in range(3)] if sep else [0, 0, 0]
        self.prof = prof
        self.stamps = []
        self.hstamps = []
        self.a = Asm()
        self.force_fallback = force_fallback
        self.bars = {'C': [], 'H': []}
        self.who = 'C'

    def bar(self, name, log=True):
        if self.who == 'H' or name in ('t1', 't2', 'c1', 'c2', 'c3', 'v2'):
            self.stamp('>' + name)
        self.a('s_barrier')
        if log:
            self.bars[self.who].append(name)

    def run(self, g):
        for x in g:
            self.a.emit(x)

    def exec_mask(self, m):
        a = self.a
        if m == -1:
            a('s_mov_b64 exec, -1')
        elif m < (1 << 31):
            a(f's_mov_b64 exec, 0x{m:x}')
        else:
            a(f's_mov_b32 exec_lo, 0x{m & 0xffffffff:x}')
            a(f's_mov_b32 exec_hi, 0x{m >> 32:x}')

    def poll(self, sbase, sneed, wide=None):
        a = self.a
        L, D = a.label('POLL'), a.label('POLLD')
        a('s_mov_b32 s70, 0')
        a(f'{L}:')
        if wide:
            a(f'buffer_load_dwordx2 {vr(wide, 2)}, v14, {WS}, {sbase} offen sc1')
            a('s_waitcnt vmcnt(0)')
            a(f'v_subrev_u32 v15, {sneed}, v{wide}')
        else:
            a(f'buffer_load_dword v15, v14, {WS}, {sbase} offen sc1')
            a('s_waitcnt vmcnt(0)')
            a(f'v_subrev_u32 v15, {sneed}, v15')
        a('v_cmp_le_u32 vcc, 16, v15')
        a('s_add_u32 s70, s70, 1')
        a(f's_cmp_gt_u32 s70, {POLL_LIMIT}')
        a(f's_cbranch_scc1 {D}')
        a(f's_cbranch_vccnz {L}')
        a(f'{D}:')

    def poll_early(self, sbase, sneed, between):
        a = self.a
        D = a.label('POLLE')
        a(f'buffer_load_dword v15, v14, {WS}, {sbase} offen sc1')
        between()
        a('s_waitcnt vmcnt(0)')
        a(f'v_subrev_u32 v15, {sneed}, v15')
        a('v_cmp_le_u32 vcc, 16, v15')
        a(f's_cbranch_vccz {D}')
        self.poll(sbase, sneed)
        a(f'{D}:')

    def arrive(self, skip, cnt=0, mask=3, wait=True):
        a = self.a
        a(f'v_mov_b32 v252, {L_CNT + 4 * cnt}')
        a('v_mov_b32 v253, 1')
        a('s_mov_b64 exec, 1')
        if wait:
            a('s_waitcnt vmcnt(0)')
        a('ds_add_rtn_u32 v253, v252, v253')
        a('s_waitcnt lgkmcnt(0)')
        a('v_readfirstlane_b32 s28, v253')
        a('s_mov_b64 exec, -1')
        a(f's_and_b32 s28, s28, {mask}')
        a(f's_cmp_lg_u32 s28, {mask}')
        a(f's_cbranch_scc1 {skip}')

    def scoped(self, fn, sel):
        a = self.a
        if sel is None:
            fn(' sc1')
            return
        LL, LE = a.label('LOC'), a.label('LOCE')
        a(f's_cmp_lg_u32 {sel}, 0')
        a(f's_cbranch_scc1 {LL}')
        vm = a.vm
        fn(' sc1')
        a(f's_branch {LE}')
        a(f'{LL}:')
        a.vm = vm
        fn('')
        a(f'{LE}:')

    def signal(self, stag, cnt=0, off=0, sel=None, second=None, mask=3, wait=True):
        a = self.a
        L = a.label('SIG')
        a(f'v_mov_b32 v254, {stag}')
        a(f'v_mov_b32 v255, {second or stag}')
        self.arrive(L, cnt, mask, wait)
        self.exec_mask(0xffff)
        self.scoped(lambda f: a(f'buffer_store_dwordx2 v[254:255], v1, {WS}, s27 offen offset:{off}{f}'), sel)
        a.vm -= 1
        self.exec_mask(-1)
        a(f'{L}:')

    def dma_linear(self, ssrc, lds0, kb, rounds, first_kb=0):
        a = self.a
        for i in rounds:
            a(f's_add_u32 s96, s100, {16384 * i + first_kb * 1024}')
            if first_kb + (4 * i + 4) * 4 > kb:
                a(f's_min_u32 s96, s96, {(kb - 4) * 1024}')
            a(f's_add_u32 s97, s96, {ssrc}')
            a(f's_add_u32 m0, s96, {lds0}')
            for k in range(4):
                a(f'buffer_load_dwordx4 v0, {WS}, s97 offen offset:{k * 1024} sc1 lds')

    def reg_load(self, ssrc, kb, rounds, base):
        a = self.a
        for i in rounds:
            a(f's_add_u32 s96, s100, {16384 * i}')
            if (4 * i + 4) * 4 > kb:
                a(f's_min_u32 s96, s96, {(kb - 4) * 1024}')
            a(f's_add_u32 s97, s96, {ssrc}')
            for k in range(4):
                a(f'buffer_load_dwordx4 {vr(base + 16 * i + 4 * k)}, v0, {WS}, s97 offen offset:{k * 1024} sc1')

    def reg_dump(self, kb, rounds, base, lds0=0):
        a = self.a
        for i in rounds:
            a(f's_add_u32 s96, s100, {16384 * i}')
            if (4 * i + 4) * 4 > kb:
                a(f's_min_u32 s96, s96, {(kb - 4) * 1024}')
            if lds0:
                a(f's_add_u32 s96, s96, {lds0}')
            a(f'v_add_u32 v{25 + i % 2}, s96, v0')
            for k in range(4):
                a(f'ds_write_b128 v{25 + i % 2}, {vr(base + 16 * i + 4 * k)} offset:{k * 1024}')

    def load_frag(self, s, reg, stile):
        a = self.a
        so = f's{stile + s // 4}'
        if s < 16:
            a(f'buffer_load_dwordx4 {vr(reg)}, v0, {WS}, {so} offen offset:{(s % 4) * 1024} sc1')
        else:
            a(f'buffer_load_dwordx2 {vr(reg, 2)}, v2, {WS}, {so} offen offset:{(s % 4) * 1024} sc1')
            a(f'buffer_load_dwordx2 {vr(reg + 2, 2)}, v2, {WS}, {so} offen offset:{(s % 4) * 1024 + 128} sc1')

    def tile_sgprs(self, stile):
        for i in range(1, 5):
            self.a(f's_add_u32 s{stile + i}, s{stile}, {4096 * i}')

    def allred(self, x, t, op='v_add_f32', only32=False):
        a = self.a
        a(f'v_mov_b32 v{t}, v{x}')
        a(f'v_permlane32_swap_b32 v{x}, v{t}')
        a(f'{op} v{x}, v{x}, v{t}')
        if not only32:
            a(f'v_mov_b32 v{t}, v{x}')
            a(f'v_permlane16_swap_b32 v{x}, v{t}')
            a(f'{op} v{x}, v{x}, v{t}')

    def rowmax(self, x):
        for n in (8, 4, 2, 1):
            self.a(f'v_max_f32_dpp v{x}, v{x}, v{x} row_ror:{n} row_mask:0xf bank_mask:0xf')

    def stats_finish(self, raw):
        a = self.a
        a(f'v_add_f32 v{raw}, v{raw}, v{raw + 2}')
        a(f'v_add_f32 v{raw + 1}, v{raw + 1}, v{raw + 3}')
        for sw in ('v_permlane32_swap_b32', 'v_permlane16_swap_b32'):
            a(f'v_mov_b32 v{raw + 2}, v{raw}')
            a(f'v_mov_b32 v{raw + 3}, v{raw + 1}')
            a(f'{sw} v{raw}, v{raw + 2}')
            a(f'{sw} v{raw + 1}, v{raw + 3}')
            a(f'v_add_f32 v{raw}, v{raw}, v{raw + 2}')
            a(f'v_add_f32 v{raw + 1}, v{raw + 1}, v{raw + 3}')
        a(f'v_mul_f32 v{raw + 2}, 0x{f2u(-1.0 / 576):x}, v{raw}')
        a(f'v_mul_f32 v{raw + 1}, 0x{f2u(1.0 / 576):x}, v{raw + 1}')
        a(f'v_fma_f32 v{raw + 1}, -v{raw + 2}, v{raw + 2}, v{raw + 1}')
        a(f'v_max_f32 v{raw + 1}, 0, v{raw + 1}')
        a(f'v_add_f32 v{raw + 1}, 0x{f2u(1e-5):x}, v{raw + 1}')
        a(f'v_rsq_f32 v{raw + 3}, v{raw + 1}')

    def stats_emit(self, frags, tail, d1, d2):
        a = self.a
        first = True
        for f in frags:
            a(f'{M16} {vr(d1)}, {f}, {f}, {"0" if first else vr(d1)}')
            a(f'{M16} {vr(d2)}, {ONES}, {f}, {"0" if first else vr(d2)}')
            first = False
        if tail:
            a(f'{M16H} {vr(d1)}, {tail}, {tail}, {vr(d1)}')
            a(f'{M16H} {vr(d2)}, v[16:17], {tail}, {vr(d2)}')

    def stats_store(self, d1, d2, soff, vaddr, f=' sc1'):
        a = self.a
        a(f'v_cndmask_b32 v{d1}, v{d1}, v{d1 + 1}, s[42:43]')
        a(f'v_cndmask_b32 v{d1 + 2}, v{d1 + 2}, v{d1 + 3}, s[42:43]')
        a(f'v_cndmask_b32 v{d2 + 1}, v{d1}, v{d1 + 2}, s[44:45]')
        a('s_mov_b64 exec, s[40:41]')
        a(f'buffer_store_dwordx2 {vr(d2, 2)}, {vaddr}, {WS}, {soff} offen{f}')
        self.exec_mask(-1)

    def gather_lds(self, vaddr, off, tmp):
        for jj in range(8):
            self.a(f'ds_read_u16 v{tmp + jj}, v{vaddr} offset:{off + jj * 256}')

    def gather_pack(self, dst, tmp):
        for k in range(4):
            self.a(f'v_lshl_or_b32 v{dst + k}, v{tmp + 2 * k + 1}, 16, v{tmp + 2 * k}')

    def stamp(self, name, again=False):
        if not self.prof:
            return
        a = self.a
        names = self.stamps if self.who == 'C' else self.hstamps
        idx = names.index(name) if name in names else len(names)
        if name not in names:
            names.append(name)
        assert idx < 32
        r0 = 254 if self.who == 'C' else 50
        a('s_memtime s[92:93]')
        a('s_memrealtime s[94:95]')
        a('s_lshl_b32 s90, s16, 2')
        a('s_add_u32 s90, s90, s17')
        a('s_lshl_b32 s90, s90, 9')
        a('s_lshl_b32 s91, s19, 8')
        a('s_add_u32 s90, s90, s91')
        a(f's_add_u32 s90, s90, {PROF + idx * 8 + (0 if r0 == 254 else 0x80000)}')
        a('s_waitcnt lgkmcnt(0)')
        a(f'v_mov_b32 v{r0}, s92')
        a(f'v_mov_b32 v{r0 + 1}, s94')
        a('s_mov_b64 exec, 1')
        a(f'buffer_store_dwordx2 {vr(r0, 2)}, v0, {WS}, s90 offen')
        a.vm -= 1
        a('s_mov_b64 exec, -1')

    def next_layer(self):
        self.a(f'''
        s_mov_b32 s19, 1
        s_add_u32 s85, s26, 3
        s_add_u32 s26, s26, 4
        s_add_u32 s24, s24, {self.B[4]}
        s_add_u32 s25, s25, {self.ST[2]}
        ''')

    def entry(self):
        a = self.a
        a(f'''
        s_cmp_ge_u32 s2, 256
        s_cbranch_scc1 L_EXIT
        s_load_dwordx16 s[48:63], s[0:1], 0
        s_load_dwordx2 s[12:13], s[0:1], 64
        s_load_dwordx2 s[4:5], s[0:1], 80
        v_lshrrev_b32 v14, 6, v0
        v_and_b32 v3, 63, v0
        v_lshlrev_b32 v0, 4, v3
        v_readfirstlane_b32 s69, v14
        v_lshlrev_b32 v1, 3, v3
        v_and_b32 v20, 15, v3
        v_lshrrev_b32 v21, 4, v3
        v_lshlrev_b32 v2, 8, v21
        v_lshl_add_u32 v2, v20, 3, v2
        s_and_b32 s17, s69, 3
        s_and_b32 s28, s2, 7
        s_lshr_b32 s29, s2, 3
        s_lshl_b32 s16, s28, 5
        s_add_u32 s16, s16, s29
        s_lshr_b32 s20, s16, 3
        s_and_b32 s21, s16, 7
        s_lshr_b32 s22, s16, 4
        s_and_b32 s23, s16, 15
        s_lshl_b32 s27, s16, 8
        s_add_u32 s27, s27, {FLAG}
        s_mov_b32 s19, 0
        s_getreg_b32 s84, hwreg(HW_REG_XCC_ID)
        s_lshl_b32 s100, s17, 12
        s_mov_b32 s24, {ACT}
        s_mov_b32 s25, {STATS}
        s_mov_b32 s40, 0x00f0000f
        s_mov_b32 s41, 0xf0000f00
        s_mov_b32 s42, 0xaaaaaaaa
        s_mov_b32 s43, 0xaaaaaaaa
        s_mov_b32 s44, 0xcccccccc
        s_mov_b32 s45, 0xcccccccc
        v_mov_b32 v16, 0x3f803f80
        v_mov_b32 v17, 0x3f803f80
        v_mov_b32 v18, 0x3f803f80
        v_mov_b32 v19, 0x3f803f80
        v_mov_b32 v22, 0
        s_mov_b32 s6, {WS_SIZE}
        s_mov_b32 s7, 0x20000
        s_mov_b32 s14, {2048 * 1152}
        s_mov_b32 s15, 0x20000
        s_mov_b32 s11, 0x20000
        s_mov_b32 s67, 0x20000
        s_waitcnt lgkmcnt(0)
        buffer_load_dword v23, v22, {WS}, 0 offen sc1
        s_cmp_ge_u32 s69, 4
        s_cbranch_scc1 L_HELPER
        ''')

    def nonce(self):
        self.a('''
        v_readfirstlane_b32 s18, v23
        s_add_u32 s18, s18, 16
        s_add_u32 s26, s18, 3
        s_add_u32 s85, s18, 1
        ''')

    def p0(self):
        a = self.a
        self.stamp('start')
        a('s_and_b32 s80, s16, 31')
        a('s_lshr_b32 s81, s16, 5')
        LA = a.label('NOWA')
        a(f'''
        s_cmp_ge_u32 s80, 18
        s_cbranch_scc1 {LA}
        s_mov_b32 s8, s50
        s_mov_b32 s9, s51
        s_mov_b32 s10, {576 * 3456}
        s_lshr_b32 s32, s80, 1
        s_mul_i32 s32, s32, 72
        s_and_b32 s33, s80, 1
        s_lshl_b32 s34, s33, 5
        s_add_u32 s32, s32, s34
        s_mul_i32 s33, s33, 288
        s_add_u32 s33, s33, 64
        s_cmp_lt_u32 s80, 16
        s_cselect_b32 s32, s32, s33
        s_cselect_b32 s34, 8, 72
        s_mul_i32 s34, s34, s17
        s_add_u32 s32, s32, s34
        s_mul_i32 s32, s32, 3456
        s_lshl_b32 s33, s81, 7
        s_add_u32 s32, s32, s33
        v_mul_u32_u24 v24, 3456, v21
        v_lshl_add_u32 v24, v20, 4, v24
        s_lshl_b32 s33, s17, 11
        ''')
        for sec in range(3):
            for i in range(2):
                a(f's_add_u32 s34, s32, {sec * 1152 + i * 4 * 3456}')
                a(f's_add_u32 m0, s33, {sec * 8192 + i * 1024}')
                a('buffer_load_dwordx4 v24, s[8:11], s34 offen lds')
        LJ = a.label('P0J')
        a(f'''
        s_branch {LJ}
        {LA}:
        s_sub_u32 s39, s80, 18
        s_mul_i32 s38, s81, 14
        s_add_u32 s39, s39, s38
        s_lshl_b32 s39, s39, 2
        s_add_u32 s39, s39, s17
        s_mul_i32 s39, s39, 1536
        v_lshlrev_b32 v24, 7, v3
        s_mov_b32 s10, {576 * 1152}
        s_mov_b64 exec, 0xfff
        ''')
        for p in (52, 56, 62):
            a(f's_mov_b32 s8, s{p}')
            a(f's_mov_b32 s9, s{p + 1}')
            a(f'buffer_load_dword v25, v24, s[8:11], s39 offen')
        a(f's_mov_b32 s10, {576 * 36}')
        for p in (58, 60):
            a(f's_mov_b32 s8, s{p}')
            a(f's_mov_b32 s9, s{p + 1}')
            a(f'buffer_load_dword v25, v24, s[8:11], s39 offen')
        a('s_mov_b64 exec, -1')
        a(f'{LJ}:')
        a(f'''
        s_lshl_b32 s89, s20, 2
        s_add_u32 s89, s89, s17
        s_mul_i32 s88, s89, {TILE}
        s_lshl_b32 s89, s89, 10
        s_waitcnt vmcnt(0)
        ''')
        self.nonce()
        self.stamp('p0.loaded')
        self.bar('b0a')
        LA2, LA3 = a.label('NOWA2'), a.label('NOWAT')
        a(f'''
        s_cmp_ge_u32 s80, 18
        s_cbranch_scc1 {LA2}
        s_mul_i32 s32, s17, 36
        s_lshl_b32 s33, s81, 4
        s_add_u32 s32, s32, s33
        v_lshlrev_b32 v24, 11, v21
        v_lshl_add_u32 v30, v20, 1, v24
        v_add_u32 v30, s32, v30
        s_lshl_b32 s34, s81, 1
        s_lshr_b32 s32, s17, 1
        s_add_u32 s34, s34, s32
        s_mul_i32 s34, s34, 18
        s_add_u32 s34, s34, s80
        s_mul_i32 s34, s34, 7
        s_and_b32 s32, s17, 1
        s_add_u32 s34, s34, s32
        s_lshl_b32 s34, s34, 10
        s_add_u32 s34, s34, {WA_P}
        s_add_u32 s32, s34, 4096
        ''')
        for sec in range(3):
            self.gather_lds(30, sec * 8192, 96 + 8 * sec)
        for sec in range(3):
            a(f's_waitcnt lgkmcnt({min(15, 16 - 8 * sec)})')
            self.gather_pack(120 + 4 * sec, 96 + 8 * sec)
            if sec < 2:
                a(f'buffer_store_dwordx4 {vr(120 + 4 * sec)}, v0, {WS}, s34 offen offset:{sec * 2048} sc1')
            else:
                a(f'buffer_store_dwordx4 {vr(120 + 4 * sec)}, v0, {WS}, s32 offen sc1')
        a(f'''
        s_cmp_ge_u32 s17, 2
        s_cbranch_scc1 {LA3}
        v_bfe_u32 v31, v20, 1, 1
        v_bfe_u32 v132, v20, 2, 1
        v_cmp_le_u32 vcc, 8, v20
        v_cndmask_b32 v133, v132, v31, vcc
        v_cndmask_b32 v31, v31, 2, vcc
        v_lshlrev_b32 v31, 13, v31
        v_mad_u32_u24 v31, v133, 36, v31
        v_and_b32 v132, 1, v20
        v_lshl_add_u32 v31, v132, 1, v31
        v_add_u32 v31, v31, v24
        s_mul_i32 s32, s17, 72
        s_add_u32 s32, s32, s33
        s_add_u32 s32, s32, 32
        v_add_u32 v31, s32, v31
        s_lshl_b32 s34, s81, 1
        s_add_u32 s34, s34, s17
        s_mul_i32 s34, s34, 18
        s_add_u32 s34, s34, s80
        s_mul_i32 s34, s34, 7
        s_add_u32 s34, s34, 6
        s_lshl_b32 s34, s34, 10
        s_add_u32 s34, s34, {WA_P}
        ''')
        self.gather_lds(31, 0, 136)
        a('s_waitcnt lgkmcnt(0)')
        self.gather_pack(144, 136)
        a('v_cmp_le_u32 vcc, 12, v20')
        for k in range(4):
            a(f'v_cndmask_b32 v{144 + k}, v{144 + k}, 0, vcc')
        a(f'buffer_store_dwordx4 v[144:147], v0, {WS}, s34 offen sc1')
        a(f'{LA2}:')
        a(f'{LA3}:')
        self.bar('b0b')
        self.signal('s85', cnt=2, mask=7)
        self.stamp('p0.flag1')
        a(f'''
        s_mov_b32 s82, {FLAG}
        s_mov_b32 s68, 0
        ''')

    def p1(self):
        a = self.a
        ACC = lambda x, t: 20 + 28 * x + 4 * t
        WR = lambda s, t: 84 + 28 * (s % 2) + 4 * t
        AR = lambda s, x: 164 + 8 * (s % 8) + 4 * x
        RAW, PR = 228, 140
        NR = lambda x: vr(RAW + 4 * x + 2, 2)
        QC = lambda x: 156 + 2 * x
        TQD = (160, 244)
        MP, MC, MPA, PM = 180, 184, 188, 192
        xK, xT, xV, cN, cS, vTR = 196, 197, 198, 199, 200, 201
        vW, TOK, GG = 248, 249, 250
        QO = lambda x, h: 204 + 8 * x + 4 * h
        KO = lambda h, y: 112 + 12 * h + 4 * y
        VV = lambda h: 164 + 6 * h
        VT = (220, 106)
        cexp = 18 ** -0.5 * math.log2(math.e)
        a(f'''
        s_lshl_b32 s30, s22, 12
        s_add_u32 s30, s30, s82
        v_and_b32 v{TOK}, 15, v3
        v_lshlrev_b32 v14, 8, v{TOK}
        v_lshrrev_b32 v{GG}, 4, v3
        v_mov_b32 v{vW}, v0
        s_lshl_b32 s28, s22, 3
        s_lshl_b32 s29, s17, 1
        s_add_u32 s29, s29, s28
        s_mul_i32 s48, s29, {TILE}
        s_add_u32 s48, s48, s24
        s_add_u32 s53, s48, {TILE}
        s_lshl_b32 s58, s29, 10
        s_add_u32 s58, s58, s25
        ''')
        self.tile_sgprs(48)
        self.tile_sgprs(53)
        self.poll('s30', 's85')
        self.stamp('p1.polled')
        G = {}
        for s in range(18):
            with a.capture() as L:
                self.load_frag(s, AR(s, 0), 48)
                self.load_frag(s, AR(s, 1), 53)
                a.mark_vm(('p1', s))
            G[s] = groups(L)
        with a.capture() as L:
            for x in range(2):
                a(f'buffer_load_dwordx2 {vr(RAW + 4 * x, 2)}, v1, {WS}, s58 offen offset:{1024 * x} sc1')
                a(f'buffer_load_dwordx2 {vr(RAW + 4 * x + 2, 2)}, v1, {WS}, s58 offen offset:{1024 * x + 512} sc1')
            a.mark_vm(('p1', 'st'))
        GS = groups(L)

        def reads(s):
            o = (7 * (s % 9)) * 1024
            out = [f'v_add_u32 v{vW}, {63 * 1024}, v{vW}'] if s == 9 else []
            return out + [f'ds_read_b128 {vr(WR(s, t))}, v{vW} offset:{o + t * 1024}' for t in range(7)]

        for s in range(4):
            for g in G[s]:
                self.run(g)
        self.bar('c0')
        self.stamp('p1.bar')
        rid = {}

        def emit_read(s, r):
            a(r)
            if r.startswith('ds_read'):
                rid.setdefault(s, []).append(a.lg)
        for r in reads(0):
            emit_read(0, r)
        queue = G[4] + G[5] + G[6] + G[7] + GS
        with a.capture() as side:
            a(f'''
            s_lshl_b32 s60, s17, 9
            s_add_u32 s60, s60, {L_ST}
            v_lshl_add_u32 v240, v{TOK}, 2, s60
            v_lshl_add_u32 v241, v{GG}, 4, s60
            v_cmp_gt_u32 vcc, 32, v3
            ''')
            a.wvm(('p1', 'st'))
            for x in range(2):
                self.stats_finish(RAW + 4 * x)
            for x in range(2):
                a(f'ds_write_b32 v240, v{RAW + 4 * x + 2} offset:{128 * x}')
                a(f'ds_write_b32 v240, v{RAW + 4 * x + 3} offset:{128 * x + 64}')
                a(f'v_cndmask_b32 v{QC(x)}, v{RAW + 4 * x + 3}, 1.0, vcc')
                a(f'v_mul_f32 v{QC(x) + 1}, 0x{f2u(cexp):x}, v{RAW + 4 * x + 3}')
            for x in range(2):
                a(f'ds_read_b128 {vr(PR + 8 * x)}, v241 offset:{128 * x}')
                a(f'ds_read_b128 {vr(PR + 8 * x + 4)}, v241 offset:{128 * x + 64}')
                a(f'v_mov_b32 v{TQD[x] + 1}, v16')
                a(f'v_mov_b32 v{TQD[x] + 3}, v16')
            a(f'''
            s_lshl_b32 s34, s23, 10
            s_add_u32 s34, s34, s48
            s_add_u32 s34, s34, {ACTB}
            s_add_u32 s35, s34, {TILE}
            s_lshl_b32 s36, s23, 7
            s_add_u32 s36, s36, s48
            s_add_u32 s36, s36, {ACTB + 16384}
            s_add_u32 s37, s36, {TILE}
            s_mov_b32 s72, 0xffff
            s_mov_b32 s73, 0
            s_mov_b32 s74, 0xffff0000
            s_mov_b32 s75, 0
            s_or_b32 s28, s22, s17
            v_mov_b32 v242, s28
            v_cmp_eq_u32 s[62:63], 0, v242
            s_mul_i32 s32, s17, 2304
            s_add_u32 s32, s32, {L_EX}
            s_lshl_b32 s33, s17, 9
            s_add_u32 s33, s33, {L_VT}
            ''')
        with a.capture() as side2:
            a(f'v_mov_b32 v243, 0x{f2u(-1e30):x}')
            a(f'v_and_b32 v242, 1, v{TOK}')
            a('v_cmp_eq_u32 vcc, 0, v242')
            a('v_mov_b32 v240, 0xffff0000')
            a('v_mov_b32 v251, 0xffff')
            a('v_cndmask_b32 v240, v240, v251, vcc')
            for r in range(4):
                a(f'v_lshl_add_u32 v241, v{GG}, 2, {r}')
                a(f'v_sub_u32 v241, v{TOK}, v241')
                if r % 2 == 0:
                    a('v_cmp_le_i32 vcc, 0, v241')
                    a(f'v_cndmask_b32 v{PM + 2 + r // 2}, 0, v240, vcc')
                    a(f'v_cndmask_b32 v{PM + r // 2}, v240, 0, vcc')
                a('v_and_b32 v241, 0x80000001, v241')
                a('v_cmp_eq_u32 vcc, 0, v241')
                a(f'v_cndmask_b32 v{MC + r}, v243, 0, vcc')
                a('v_cmp_eq_u32 vcc, 0x80000000, v241')
                a(f'v_cndmask_b32 v{MP + r}, v243, 0, vcc')
                a(f'v_cndmask_b32 v{MPA + r}, v{MP + r}, v243, s[62:63]')
            a(f'''
            v_add_u32 v{xK}, s32, v1
            v_lshl_add_u32 v{xT}, v3, 2, s32
            v_lshl_add_u32 v{xV}, v{TOK}, 4, s33
            v_lshlrev_b32 v{cN}, 4, v{GG}
            v_add_u32 v{cN}, {L_CS}, v{cN}
            v_lshlrev_b32 v{cS}, 2, v{TOK}
            v_add_u32 v{cS}, {L_CS}, v{cS}
            v_and_b32 v{vTR}, 60, v3
            v_lshl_add_u32 v{vTR}, v{vTR}, 2, s33
            ''')
            for u in range(4):
                a(f'v_mov_b32 v{204 + 4 * u + 3}, 0')
        for s in range(18):
            if s in (2, 6, 11):
                LB = a.label('NOBAR')
                a('s_cmp_eq_u32 s19, 1')
                a(f's_cbranch_scc1 {LB}')
                self.bar(f'c{(2, 6, 11).index(s) + 1}')
                a(f'{LB}:')
            if 1 <= s <= 10:
                queue += G[s + 7]
            a.wvm(('p1', s))
            nxt = reads(s + 1) if s < 17 else []
            order = (2, 4, 3, 5, 6, 0, 1) if s == 17 else range(7)
            ms = []
            for t in order:
                w = vr(WR(s, t))
                for x in (1, 0):
                    xf = vr(AR(s, x))
                    c = '0' if s == 0 else vr(ACC(x, t))
                    if t in (4, 5):
                        ms.append(f'{M16} {vr(ACC(x, t))}, {xf}, {w}, {c}')
                    else:
                        ms.append(f'{M16} {vr(ACC(x, t))}, {w}, {xf}, {c}')
            for i, m in enumerate(ms):
                if i == 0:
                    a.wait_lg(rid[s][-1 if s == 17 else 3])
                if i == 6 and s < 17:
                    a.wait_lg(rid[s][-1])
                a(m)
                if i % 4 == 1 and queue:
                    self.run(queue.pop(0))
                elif nxt:
                    emit_read(s + 1, nxt.pop(0))
                if s >= 5 and side:
                    a.emit(side.pop(0))
                elif s >= 12 and side2:
                    a.emit(side2.pop(0))
                    if s >= 15 and side2:
                        a.emit(side2.pop(0))
        assert not queue and not side and not side2
        self.stamp('p1.mfma')
        CS = 84
        cs = {0: CS, 1: CS + 4, 2: CS + 8, 3: CS + 12, 6: CS + 16, 4: CS + 20, 5: CS + 21}
        self.bar('t1')
        a(f'ds_read_b128 {vr(cs[2])}, v{cN} offset:{64 * 2}')
        a(f'ds_read2_b32 {vr(cs[4], 2)}, v{cS} offset0:{16 * 4} offset1:{16 * 5}')
        for t in (3, 6, 0, 1):
            a(f'ds_read_b128 {vr(cs[t])}, v{cN} offset:{64 * t}')

        def cen_n(acc, c, x):
            for r in (0, 2):
                a(f'v_pk_fma_f32 {vr(acc + r, 2)}, {vr(c + r, 2)}, {NR(x)}, {vr(acc + r, 2)} op_sel_hi:[1,0,1]')

        def scl_n(acc, x):
            for r in (0, 2):
                a(f'v_pk_mul_f32 {vr(acc + r, 2)}, {vr(acc + r, 2)}, {NR(x)} op_sel:[0,1] op_sel_hi:[1,1]')

        def norm_s(acc, h, x):
            for r in (0, 2):
                a(f'v_pk_fma_f32 {vr(acc + r, 2)}, {vr(PR + 8 * x + r, 2)}, {vr(cs[4], 2)}, {vr(acc + r, 2)} '
                  f'op_sel:[0,{h},0] op_sel_hi:[1,{h},1]')
            for r in (0, 2):
                a(f'v_pk_mul_f32 {vr(acc + r, 2)}, {vr(acc + r, 2)}, {vr(PR + 8 * x + 4 + r, 2)}')

        def pack(dst, acc):
            a(f'v_cvt_pk_bf16_f32 v{dst}, v{acc}, v{acc + 1}')
            a(f'v_cvt_pk_bf16_f32 v{dst + 1}, v{acc + 2}, v{acc + 3}')

        def tail_tile(x):
            T = ACC(x, 6)
            cen_n(T, cs[6], x)
            a(f'v_pk_mul_f32 {vr(T, 2)}, {vr(T, 2)}, {vr(QC(x), 2)} op_sel_hi:[1,0]')
            a(f'v_pk_mul_f32 {vr(T + 2, 2)}, {vr(T + 2, 2)}, {NR(x)} op_sel:[0,1] op_sel_hi:[1,1]')
            a(f'v_cvt_pk_bf16_f32 v{TQD[x]}, v{T}, v{T + 1}')
            for d in (TQD[x] + 2, KO(0, x + 1) + 2, KO(1, x + 1) + 2):
                a(f'v_cvt_pk_bf16_f32 v{d}, v{T + 2}, v{T + 3}')

        def kv_head(x, h):
            cen_n(ACC(x, 2 + h), cs[2 + h], x)
            norm_s(ACC(x, 4 + h), h, x)
            scl_n(ACC(x, 2 + h), x)
            pack(VV(h) + 2 * x + 2, ACC(x, 4 + h))
            pack(KO(h, x + 1), ACC(x, 2 + h))

        a('s_waitcnt lgkmcnt(4)')
        kv_head(1, 0)
        a('s_waitcnt lgkmcnt(2)')
        kv_head(1, 1)
        tail_tile(1)
        LS = a.label('NOEX')
        a('s_cmp_eq_u32 s17, 3')
        a(f's_cbranch_scc1 {LS}')
        for h in range(2):
            a(f'ds_write_b64 v{xK}, {vr(KO(h, 2), 2)} offset:{2304 + 512 * h}')
            a(f'ds_write_b64 v{xK}, {vr(VV(h) + 4, 2)} offset:{2304 + 1024 + 512 * h}')
        a(f'ds_write_b32 v{xT}, v{KO(0, 2) + 2} offset:{2304 + 2048}')
        a(f'{LS}:')
        tail_tile(0)
        self.exec_mask(0x0000ffff00000000)
        a(f'ds_write_b128 v{xV}, {vr(TQD[1])} offset:512')
        a(f'ds_write_b128 v{xV}, {vr(TQD[0])} offset:256')
        self.exec_mask(-1)
        kv_head(0, 0)
        kv_head(0, 1)
        a('s_waitcnt lgkmcnt(0)')
        self.bar('t2')
        for h in range(2):
            a(f'ds_read_b64 {vr(KO(h, 0), 2)}, v{xK} offset:{512 * h}')
            a(f'ds_read_b32 v{KO(h, 0) + 2}, v{xT} offset:2048')
        for h in range(2):
            a(f'ds_read_b64 {vr(VV(h), 2)}, v{xK} offset:{1024 + 512 * h}')
            for y in range(3):
                a(f'ds_read_b64_tr_b16 {vr(VT[h] + 2 * y, 2)}, v{vTR} offset:{256 * y + 8 * h}')
        units = [(x, h) for x in (1, 0) for h in range(2)]
        SS = lambda u: (56, 64, 28, 36)[u]
        PP = lambda u: (48, 52, 20, 24)[u]
        OM = lambda u: 112 + 8 * u
        TM = lambda u: 72 + 2 * u

        def qk(u):
            x, h = units[u]
            a(f'{M16} {vr(SS(u))}, {vr(KO(h, x))}, {vr(QO(x, h))}, {vr(MPA if x == 0 else MP)}')
            a(f'{M16} {vr(SS(u) + 4)}, {vr(KO(h, x + 1))}, {vr(QO(x, h))}, {vr(MC)}')
        for u, (x, h) in enumerate(units):
            cen_n(ACC(x, h), cs[h], x)
            a(f'v_cndmask_b32 v{QO(x, h) + 2}, 0, v{TQD[x]}, s[{72 + 2 * h}:{73 + 2 * h}]')
            pack(QO(x, h), ACC(x, h))
            if u == 3:
                a('s_waitcnt lgkmcnt(8)')
            if u >= 1:
                qk(u - 1)

        def mx(u):
            S, m = SS(u), TM(u)
            a(f'v_max3_f32 v{S}, v{S}, v{S + 1}, v{S + 4}')
            a(f'v_max3_f32 v{S + 2}, v{S + 2}, v{S + 3}, v{S + 6}')
            a(f'v_max_f32 v{S}, v{S}, v{S + 5}')
            a(f'v_max_f32 v{S + 2}, v{S + 2}, v{S + 7}')
            a(f'v_max_f32 v{m}, v{S}, v{S + 2}')
            a(f'v_max_f32 v{m + 1}, v{S}, v{S + 2}')
        qk(3)
        for u in range(4):
            mx(u)
        for u in range(4):
            a(f'v_permlane32_swap_b32 v{TM(u)}, v{TM(u) + 1}')
        for u in range(4):
            a(f'v_max_f32 v{TM(u)}, v{TM(u)}, v{TM(u) + 1}')
        for u in range(4):
            a(f'v_mov_b32 v{TM(u) + 1}, v{TM(u)}')
        for u in range(4):
            a(f'v_permlane16_swap_b32 v{TM(u)}, v{TM(u) + 1}')
        for u in range(4):
            a(f'v_max_f32 v{TM(u)}, v{TM(u)}, v{TM(u) + 1}')
        for u in range(4):
            for i in (0, 2):
                a(f'v_sub_f32 v{SS(u) + i}, v{SS(u) + i}, v{TM(u)}')
        for u in range(4):
            for i in (0, 2):
                a(f'v_mul_f32 v{SS(u) + i}, v{SS(u) + i}, v{QC(units[u][0]) + 1}')
        for u in range(4):
            for i in (0, 2):
                a(f'v_exp_f32 v{SS(u) + i}, v{SS(u) + i}')
        a('s_waitcnt lgkmcnt(0)')

        def pv(u):
            x, h = units[u]
            a(f'{M16} {vr(OM(u) + 4)}, {vr(VT[h] + 2 * x)}, {vr(PP(u))}, 0')
            a(f'{M16} {vr(OM(u))}, {vr(VV(h) + 2 * x)}, {vr(PP(u))}, 0')
        for u in range(4):
            S = SS(u)
            for i in (0, 2):
                a(f'v_cvt_pk_bf16_f32 v{S + i}, v{S + i}, v{S + i}')
            for k in range(4):
                a(f'v_and_b32 v{PP(u) + k}, v{S + 2 * (k % 2)}, v{PM + k}')
            if u >= 1:
                pv(u - 1)
        a(f'v_rcp_f32 v{OM(0) + 6}, v{OM(0) + 6}')
        pv(3)

        def fin(u):
            x, h = units[u]
            O = OM(u)
            d = 84 + 8 * x
            if u < 3:
                a(f'v_rcp_f32 v{OM(u + 1) + 6}, v{OM(u + 1) + 6}')
            for i in (0, 2, 4):
                a(f'v_pk_mul_f32 {vr(O + i, 2)}, {vr(O + i, 2)}, {vr(O + 6, 2)} op_sel_hi:[1,0]')
            a(f'v_cvt_pk_bf16_f32 v{d + 2 * h}, v{O}, v{O + 1}')
            a(f'v_cvt_pk_bf16_f32 v{d + 2 * h + 1}, v{O + 2}, v{O + 3}')
            a(f'v_cvt_pk_bf16_f32 v{d + 4 + h}, v{O + 4}, v{O + 5}')
        for u in range(4):
            fin(u)

        def st(f):
            for x in range(2):
                a(f'buffer_store_dwordx4 {vr(84 + 8 * x)}, v0, {WS}, s{34 + x} offen{f}')
            self.exec_mask(0xffff)
            for x in range(2):
                a(f'buffer_store_dwordx2 {vr(88 + 8 * x, 2)}, v1, {WS}, s{36 + x} offen{f}')
            self.exec_mask(-1)
        self.scoped(st, 's68')
        LR = a.label('NORES')
        a(f'''
        s_cmp_lg_u32 s19, 0
        s_cbranch_scc1 {LR}
        s_lshl_b32 s28, s21, 11
        s_add_u32 s29, s88, {ACT}
        s_add_u32 s28, s28, s29
        s_lshl_b32 s30, s21, 8
        s_add_u32 s29, s29, s30
        s_add_u32 s29, s29, 16384
        v_mov_b32 v12, 0
        v_mov_b32 v13, 0
        buffer_load_dwordx4 v[4:7], v0, {WS}, s28 offen sc1
        buffer_load_dwordx4 v[8:11], v0, {WS}, s28 offen offset:1024 sc1
        s_mov_b32 exec_hi, 0
        buffer_load_dwordx2 v[12:13], v1, {WS}, s29 offen sc1
        s_mov_b64 exec, -1
        v_and_b32 v14, 31, v3
        v_lshlrev_b32 v14, 8, v14
        s_and_b32 s28, s16, 0xe0
        s_lshl_b32 s28, s28, 8
        s_add_u32 s28, s28, {FLAG + 132}
        buffer_load_dword v50, v14, {WS}, s28 offen sc1
        {LR}:
        ''')
        self.stamp('p1.att')

    def a_groups(self, key, src_off, stats=None):
        a = self.a
        a('s_add_u32 s48, s88, s24')
        a(f's_add_u32 s48, s48, {src_off}')
        self.tile_sgprs(48)
        with a.capture() as L:
            if stats is not None:
                raw, so = stats
                a(f'buffer_load_dwordx2 {vr(raw, 2)}, v1, {WS}, {so} offen sc1')
                a(f'buffer_load_dwordx2 {vr(raw + 2, 2)}, v1, {WS}, {so} offen offset:512 sc1')
                a.mark_vm((key, 'st'))
            for s in range(18):
                self.load_frag(s, 52 + 4 * s, 48)
                a.mark_vm((key, s))
        return groups(L)

    def proj(self, which):
        a = self.a
        ACCR, NS = 20, 30
        slot = lambda f: 132 + 4 * (f % NS)
        rd = lambda f: f'ds_read_b128 {vr(slot(f))}, v{49 if f >= 60 else 0} offset:{(f % 60) * 1024}'
        dst = self.B[2] if which == 2 else self.B[4]
        a(f'''
        v_min_u32 v14, {15 if which == 2 else 7}, v3
        v_lshlrev_b32 v14, 8, v14
        s_lshl_b32 s30, {'s22, 12' if which == 2 else 's20, 11'}
        s_add_u32 s30, s30, {FLAG}
        s_add_u32 s31, s26, {0 if which == 2 else 2}
        v_add_u32 v49, {60 * 1024}, v0
        s_add_u32 s34, s88, s24
        s_add_u32 s34, s34, {dst}
        s_lshl_b32 s35, s21, 8
        s_add_u32 s35, s35, s34
        s_add_u32 s35, s35, 16384
        s_lshl_b32 s36, s21, 11
        s_add_u32 s34, s34, s36
        s_lshl_b32 s36, s21, 7
        s_add_u32 s36, s36, s89
        s_add_u32 s36, s36, s25
        s_add_u32 s36, s36, {self.ST[1] if which == 2 else self.ST[2]}
        v_and_b32 v48, 0x78, v1
        ''')
        AG = self.a_groups(which, self.B[1] if which == 2 else self.B[3])
        self.signal('s31', sel='s68')
        if which == 2:
            a(f'''
            v_cmp_ne_u32 vcc, s84, v50
            s_cmp_eq_u64 vcc, 0
            s_cselect_b32 s28, {0 if self.no_local else 1}, 0
            s_cmp_eq_u32 s19, 0
            s_cselect_b32 s68, s28, s68
            ''')
        self.stamp('p1.flag' if which == 2 else 'p4.flag')
        self.bar(f'v{which}')
        rid = {}
        for f in range(10):
            a(rd(f)); rid[f] = a.lg
            a(f'v_lshlrev_b32 v{ACCR + 2 * f}, 16, v{4 + f}')
            a(f'v_and_b32 v{ACCR + 2 * f + 1}, 0xffff0000, v{4 + f}')

        def more():
            for f in range(10, 20):
                a(rd(f)); rid[f] = a.lg
        self.poll_early('s30', 's31', more)
        self.stamp(f'p{which}.polled')
        for i in range(11):
            self.run(AG.pop(0))
            if i < 10:
                a(rd(20 + i)); rid[20 + i] = a.lg
        nf = NS
        for s in range(18):
            a.wvm((which, s))
            a.wait_lg(rid[5 * s + 4])
            if s == 17:
                self.bar(f'm{which}')
            for t in range(5):
                a(f'{M16} {vr(ACCR + 4 * t)}, {vr(slot(5 * s + t))}, {vr(52 + 4 * s)}, {vr(ACCR + 4 * t)}')
                if t == 0:
                    if AG:
                        self.run(AG.pop(0))
                elif nf < 90:
                    a(rd(nf)); rid[nf] = a.lg; nf += 1
        self.stamp(f'p{which}.mfma')
        for i in range(10):
            a(f'v_cvt_pk_bf16_f32 v{4 + i}, v{ACCR + 2 * i}, v{ACCR + 2 * i + 1}')
        if which == 5:
            a('s_cmp_eq_u32 s19, 1')
            a('s_cbranch_scc1 L_FINAL')
        self.stats_emit(['v[4:7]', 'v[8:11]'], 'v[12:13]', 40, 44)

        def st(f):
            a(f'buffer_store_dwordx4 v[4:7], v0, {WS}, s34 offen{f}')
            a(f'buffer_store_dwordx4 v[8:11], v0, {WS}, s34 offen offset:1024{f}')
            a('s_mov_b32 exec_hi, 0')
            a(f'buffer_store_dwordx2 v[12:13], v1, {WS}, s35 offen{f}')
            self.exec_mask(-1)
            a('s_nop 2')
            self.stats_store(40, 44, 's36', 'v48', f)
        self.scoped(st, 's68')

    def p3(self):
        a = self.a
        QA, RAW, NM, RS, PR, KA, KC = 20, 40, 42, 43, 44, 124, 140
        Q1, Q2 = 132, 140
        TOK, GG = 168, 169
        NS = 19
        slot = lambda f: 176 + 4 * (f % NS)
        LNP, LJ = a.label('NOPROD'), a.label('JOIN')
        a(f'''
        v_min_u32 v14, 7, v3
        v_lshlrev_b32 v14, 8, v14
        s_lshl_b32 s32, s20, 11
        s_add_u32 s32, s32, {FLAG}
        s_add_u32 s33, s26, 1
        s_add_u32 s58, s89, s25
        s_add_u32 s58, s58, {self.ST[1]}
        v_and_b32 v{TOK}, 15, v3
        v_lshrrev_b32 v{GG}, 4, v3
        s_cmp_lg_u32 s21, 0
        s_cbranch_scc1 {LNP}
        ''')
        rdk = lambda f: f'ds_read_b128 {vr(slot(f))}, v170 offset:{f * 1024}'
        a(f'''
        v_add_u32 v170, {L_KVW}, v0
        v_lshlrev_b32 v171, 4, v{GG}
        v_lshlrev_b32 v172, 2, v{TOK}
        v_add_u32 v171, {L_CS + 12 * 64}, v171
        v_add_u32 v172, {L_CS + 12 * 64}, v172
        ds_read_b128 {vr(KC)}, v171
        ds_read_b128 {vr(KC + 4)}, v171 offset:128
        ds_read_b32 v{KC + 8}, v172 offset:64
        ds_read_b32 v{KC + 9}, v172 offset:128
        s_lshl_b32 s28, s17, 9
        s_add_u32 s28, s28, {L_ST}
        v_lshl_add_u32 v171, v{TOK}, 2, s28
        v_lshl_add_u32 v172, v{GG}, 4, s28
        s_lshr_b32 s28, s20, 2
        s_mul_i32 s28, s28, {GRP}
        s_mul_i32 s29, s19, {KVSTR}
        s_add_u32 s28, s28, s29
        s_add_u32 s28, s28, {KVIMG}
        s_and_b32 s29, s20, 3
        s_lshl_b32 s34, s29, 8
        s_add_u32 s34, s34, s28
        s_lshr_b32 s30, s17, 1
        s_lshl_b32 s31, s30, 2
        s_add_u32 s34, s34, s31
        s_and_b32 s31, s17, 1
        s_lshl_b32 s35, s31, 7
        s_add_u32 s34, s34, s35
        s_lshl_b32 s29, s29, 1
        s_add_u32 s29, s29, s30
        s_mul_i32 s29, s29, {STEP}
        s_add_u32 s28, s28, s29
        s_add_u32 s28, s28, 1024
        s_lshl_b32 s35, s31, 8
        s_add_u32 s35, s35, s28
        s_mul_i32 s36, s31, 608
        s_add_u32 s36, s36, s28
        s_add_u32 s36, s36, 1024
        v_mul_u32_u24 v173, 304, v{GG}
        v_lshl_add_u32 v173, v{TOK}, 4, v173
        v_lshlrev_b32 v174, 8, v{GG}
        v_lshl_add_u32 v174, v{TOK}, 4, v174
        s_lshl_b32 s28, s17, 2
        s_add_u32 s28, s28, {L_KM}
        v_mov_b32 v175, s28
        ''')
        AG = self.a_groups('3p', self.B[2], (RAW, 's58'))
        self.signal('s33', sel='s68')
        self.stamp('p2.flag')
        rid = {}
        for f in range(6):
            a(rdk(f)); rid[f] = a.lg
        self.poll('s32', 's33')
        self.stamp('p3.polled')
        for i in range(14):
            self.run(AG.pop(0))
            if i < 12:
                a(rdk(6 + i)); rid[6 + i] = a.lg
        with a.capture() as stat:
            self.stats_finish(RAW)
            a(f'''
            ds_write_b32 v171, v{NM}
            ds_write_b32 v171, v{RS} offset:64
            ds_read_b128 {vr(PR)}, v172
            ds_read_b128 {vr(PR + 4)}, v172 offset:64
            ''')
        nf = 18
        for s in range(18):
            a.wvm(('3p', s))
            a.wait_lg(rid[3 * s + 2])
            x = vr(52 + 4 * s)
            z = lambda i: '0' if s == 0 else vr(KA + 4 * i)
            w = lambda t: vr(slot(3 * s + t))
            ms = [f'{M16} {vr(KA)}, {w(0)}, {x}, {z(0)}', f'{M16} {vr(KA + 8)}, {x}, {w(1)}, {z(2)}',
                  f'{M16} {vr(KA + 4)}, {w(2)}, {x}, {z(1)}', f'{M16} {vr(KA + 12)}, {x}, {w(2)}, {z(3)}']
            for i, m in enumerate(ms):
                a(m)
                if i == 0:
                    if AG:
                        self.run(AG.pop(0))
                elif nf < 54:
                    a(rdk(nf)); rid[nf] = a.lg; nf += 1
                if stat:
                    a.emit(stat.pop(0))
        assert not stat and not AG
        a('s_waitcnt lgkmcnt(0)')
        for i in (0, 1, 2, 3, 8, 9, 10, 11, 4, 5, 12, 13, 14, 15):
            a(f'v_fmac_f32 v{KA + i}, v{KC + (i if i < 8 else 6 + i // 4)}, v{NM if i < 8 else PR + i % 4}')
        for i in (0, 1, 2, 3, 4, 5, 8, 9, 10, 11, 12, 13, 14, 15):
            a(f'v_mul_f32 v{KA + i}, v{KA + i}, v{RS if i < 8 else PR + 4 + i % 4}')
        for d, src in ((152, KA), (156, KA + 8), (160, KA + 12)):
            for k in range(4):
                a(f'v_cvt_pk_bf16_f32 v{d + k}, v{src + 2 * (k % 2)}, v{src + 2 * (k % 2) + 1}')
        a(f'v_cvt_pk_bf16_f32 v150, v{KA + 4}, v{KA + 5}')
        a('v_dot2_f32_bf16 v151, v152, v152, 0')
        a('v_dot2_f32_bf16 v151, v153, v153, v151')
        a('v_permlane16_swap_b32 v152, v154')
        a('v_permlane16_swap_b32 v153, v155')
        for d in (156, 160):
            a(f'v_permlane32_swap_b32 v{d}, v{d + 2}')
            a(f'v_permlane32_swap_b32 v{d + 1}, v{d + 3}')
        self.exec_mask(0x0000ffff0000ffff)
        a(f'buffer_store_dwordx4 v[152:155], v174, {WS}, s35 offen sc1')
        self.exec_mask(0xffffffff)
        a(f'buffer_store_dwordx4 v[156:159], v173, {WS}, s36 offen sc1')
        a('s_mov_b32 exec_lo, 0xffff')
        a(f'buffer_store_dword v150, v1, {WS}, s34 offen sc1')
        a('s_mov_b32 exec_lo, 0x000c000c')
        a(f'buffer_store_dwordx4 v[160:163], v173, {WS}, s36 offen offset:224 sc1')
        self.exec_mask(-1)
        a('v_dot2_f32_bf16 v151, v150, v150, v151')
        self.allred(151, 164)
        self.rowmax(151)
        a('ds_write_b32 v175, v151')
        a(f's_branch {LJ}')
        a(f'{LNP}:')
        AG = self.a_groups('3n', self.B[2], (RAW, 's58'))
        self.signal('s33', sel='s68')
        self.stamp('p2.flag', again=True)
        self.poll('s32', 's33')
        self.stamp('p3.polled', again=True)
        for g in AG:
            self.run(g)
        a.wvm(('3n', 'st'))
        self.stats_finish(RAW)
        a(f'{LJ}:')
        self.stamp('p3.join')
        self.bar('v3')
        rd = lambda f: f'ds_read_b128 {vr(slot(f))}, v{170 if f >= 60 else 0} offset:{(f % 60) * 1024}'
        rid = {}
        for nf in range(NS - 1):
            a(rd(nf)); rid[nf] = a.lg
        nf = NS - 1
        a(f'''
        v_add_u32 v170, {60 * 1024}, v0
        v_lshlrev_b32 v171, 4, v{GG}
        v_add_u32 v171, {L_CS + 7 * 64}, v171
        ''')
        for s in range(18):
            if s == 3:
                LS = a.label('KVSIG')
                a('s_cmp_lg_u32 s21, 0')
                a(f's_cbranch_scc1 {LS}')
                self.arrive(LS)
                a(f'''
                v_mov_b32 v164, {L_KM}
                ds_read_b128 v[164:167], v164
                s_add_u32 s28, s18, 1
                v_mov_b32 v254, s28
                s_lshl_b32 s28, s19, 13
                s_lshl_b32 s29, s20, 8
                s_add_u32 s28, s28, s29
                s_add_u32 s28, s28, {KVFLAG}
                s_waitcnt lgkmcnt(0)
                v_max3_f32 v255, v164, v165, v166
                v_max_f32 v255, v255, v167
                ''')
                a.lg -= 2
                self.exec_mask(0xffff)
                a(f'buffer_store_dwordx2 v[254:255], v1, {WS}, s28 offen sc1')
                a.vm -= 1
                self.exec_mask(-1)
                a(f'{LS}:')
            a.wvm(('3n', s))
            a.wait_lg(rid[5 * s + 4])
            for t in range(5):
                a(f'{M16} {vr(QA + 4 * t)}, {vr(slot(5 * s + t))}, {vr(52 + 4 * s)}, {"0" if s == 0 else vr(QA + 4 * t)}')
                if nf < 90:
                    a(rd(nf)); rid[nf] = a.lg; nf += 1
                elif nf < 95:
                    a(f'ds_read_b128 {vr(52 + 4 * (nf - 90))}, v171 offset:{64 * (nf - 90)}'); nf += 1
        qs = 18 ** -0.5 * math.log2(math.e)
        self.stamp('p3.done')
        a(f'v_mov_b32 v165, {L_KM + 32}')
        self.bar('k0')
        self.stamp('p4.polled')
        a('ds_read_b32 v165, v165')
        a(f'v_mul_f32 v{RS}, 0x{f2u(qs):x}, v{RS}')
        for c in range(2):
            for k in (1, 2, 4, 5, 6):
                a(f'v_mov_b32 v{Q2 + 8 * c + k}, 0')
        a('s_waitcnt lgkmcnt(0)')
        for i in range(20):
            a(f'v_fmac_f32 v{QA + i}, v{52 + i}, v{NM}')
        for i in range(16, 20):
            a(f'v_mul_f32 v{QA + i}, v{QA + i}, v{RS}')
        for c in range(2):
            b = Q2 + 8 * c
            for k in (0, 3, 7):
                a(f'v_cvt_pk_bf16_f32 v{b + k}, v{QA + 16 + 2 * c}, v{QA + 17 + 2 * c}')
        for i in range(16):
            a(f'v_mul_f32 v{QA + i}, v{QA + i}, v{RS}')
        for c in range(2):
            a(f'v_permlane32_swap_b32 v{Q2 + 8 * c + 4}, v{Q2 + 8 * c + 7}')
        for k in range(8):
            a(f'v_cvt_pk_bf16_f32 v{Q1 + k}, v{QA + 2 * k}, v{QA + 2 * k + 1}')
        for c in range(2):
            b = Q2 + 8 * c
            a(f'v_mov_b32 v{b + 7}, v{b + 4}')
            a(f'v_dot2_f32_bf16 v{156 + c}, v{b}, v{b}, 0')
        for c in range(2):
            a(f'v_permlane16_swap_b32 v{Q1 + 4 * c}, v{Q1 + 4 * c + 2}')
            a(f'v_permlane16_swap_b32 v{Q1 + 4 * c + 1}, v{Q1 + 4 * c + 3}')
        for k in range(4):
            for c in range(2):
                a(f'v_dot2_f32_bf16 v{156 + c}, v{Q1 + 4 * c + k}, v{Q1 + 4 * c + k}, v{156 + c}')

    def kv_poll_setup(self):
        self.a(f'''
        v_and_b32 v14, 31, v3
        v_lshlrev_b32 v14, 8, v14
        s_lshl_b32 s30, s19, 13
        s_add_u32 s30, s30, {KVFLAG}
        s_add_u32 s31, s18, 1
        ''')

    def p4(self):
        a = self.a
        S = (20, 36)
        SH = (52, 68)
        O = (84, 100)
        P = (116, 124)
        Q1 = (132, 136)
        Q2 = lambda c, t: 140 + 8 * c + 2 * (t % 4)
        K1 = lambda t: 168 + 4 * (t % 2)
        V0 = lambda t: 176 + 8 * (t % 2)
        V1 = lambda t: 180 + 8 * (t % 2)
        K2 = lambda t: 192 + 2 * ((t // 4) % 2)
        vK, vK2, vV = 160, 161, 162
        a(f'''
        v_mov_b32 v{vK}, v0
        v_mov_b32 v{vK2}, v1
        v_and_b32 v163, 31, v3
        v_lshrrev_b32 v164, 5, v3
        v_mul_u32_u24 v164, 304, v164
        v_lshl_add_u32 v{vV}, v163, 4, v164
        v_mov_b32 v164, 0x400000
        v_cmp_lt_u32 vcc, 18, v163
        v_cndmask_b32 v{vV}, v{vV}, v164, vcc
        s_add_u32 s32, s88, s24
        s_add_u32 s32, s32, {self.B[3]}
        s_lshl_b32 s33, s21, 8
        s_add_u32 s33, s33, s32
        s_add_u32 s33, s33, 16384
        s_lshl_b32 s34, s21, 11
        s_add_u32 s32, s32, s34
        ''')
        for c in range(2):
            self.allred(156 + c, 158, only32=True)
        for i in range(32):
            a(f'v_mov_b32 v{O[0] + i}, 0')
        for i in range(4):
            a(f'v_mov_b32 v{P[1] + 4 + i}, 0')
            a(f'v_mov_b32 v{V1(1) + i}, 0')
        for c in range(2):
            a(f'v_mul_f32 v{156 + c}, v{156 + c}, v165')
            a(f'v_sqrt_f32 v{156 + c}, v{156 + c}')
        thr = -1.0 if self.force_fallback else BTHR
        a(f'v_mov_b32 v158, 0x{f2u(thr):x}')
        for c in range(2):
            a(f'v_mul_f32 v{156 + c}, 0x{f2u(1.002):x}, v{156 + c}')
        a('v_cmp_nle_f32 s[28:29], v156, v158')
        a('v_cmp_nle_f32 vcc, v157, v158')
        a('s_mov_b32 s34, 1')
        a('s_or_b64 vcc, vcc, s[28:29]')
        LFB, LGO = a.label('FALLBACK'), a.label('GO')
        a(f's_cbranch_vccnz {LFB}')
        for c in range(2):
            for i in range(16):
                a(f'v_sub_f32 v{SH[c] + i}, 0, v{156 + c}')
        self.bar('k1')
        a(f'{LGO}:')
        koff = lambda t: (t // 8) * GRP + 1024 + (t % 8) * STEP
        k2off = lambda t: (t // 8) * GRP + ((t % 8) // 4) * 512
        a(f'ds_read_b64 {vr(K2(0), 2)}, v{vK2} offset:{k2off(0)}')
        a(f'ds_read_b128 {vr(K1(0))}, v{vK} offset:{koff(0)}')
        a(f'ds_read_b128 {vr(K1(1))}, v{vK} offset:{koff(1)}')
        a(f'ds_read_b128 {vr(V0(0))}, v{vV} offset:{koff(0) + 1024}')
        a(f'ds_read_b128 {vr(V1(0))}, v{vV} offset:{koff(0) + 1024 + 608}')
        a('s_waitcnt lgkmcnt(3)')
        a(f'{M32H} {vr(S[0], 16)}, {vr(K2(0), 2)}, {vr(Q2(0, 0), 2)}, {vr(SH[0], 16)}')
        a(f'{M32} {vr(S[0], 16)}, {vr(K1(0))}, {vr(Q1[0])}, {vr(S[0], 16)}')
        self.stamp('p4.start')
        LA, LD = a.label('ATT'), a.label('ATTD')
        a('s_mov_b32 s35, 0')
        a('s_waitcnt lgkmcnt(0)')
        a('s_nop 8')
        a('.p2align 6')
        a(f'{LA}:')
        e = lambda c, i: f'v_exp_f32 v{S[c] + i}, v{S[c] + i}'
        cv = lambda c, i: f'v_cvt_pk_bf16_f32 v{P[c] + i}, v{S[c] + 2 * i}, v{S[c] + 2 * i + 1}'
        for t in range(8):
            for c in range(2):
                n = 1 - c
                tn = t + c
                tp = t - 1 + c
                g = [[], [], [], []]
                if c == 0:
                    g[1].append(f'ds_read_b128 {vr(K1(t))}, v{vK} offset:{koff(t + 2)}')
                    g[2].append(f'ds_read_b128 {vr(V1(t + 1))}, v{vV} offset:{koff(t + 1) + 1024 + 608}')
                    g[3].append(f'ds_read_b128 {vr(V0(t + 1))}, v{vV} offset:{koff(t + 1) + 1024}')
                else:
                    if t in (1, 5):
                        g[1].append(f'ds_read_b64 {vr(K2(t + 3), 2)}, v{vK2} offset:{k2off(t + 3)}')
                    g[3].append('s_waitcnt lgkmcnt(0)')
                    if t == 7:
                        g[1].append('s_add_u32 s35, s35, 1')
                        g[2].append('s_cmp_lg_u32 s35, s34')
                a(f'{M32H} {vr(S[n], 16)}, {vr(K2(tn), 2)}, {vr(Q2(n, tn), 2)}, {vr(SH[n], 16)}')
                for x in g[0] + [e(c, 0), e(c, 1), e(c, 2), cv(c, 0), e(c, 3)]: a(x)
                a(f'{M32} {vr(S[n], 16)}, {vr(K1(tn))}, {vr(Q1[n])}, {vr(S[n], 16)}')
                for x in g[1] + [e(c, 4), cv(c, 1), e(c, 5), e(c, 6), cv(c, 2), e(c, 7)]: a(x)
                a(f'{M32} {vr(O[n], 16)}, {vr(V1(tp))}, {vr(P[n] + 4)}, {vr(O[n], 16)}')
                for x in g[2] + [e(c, 8), cv(c, 3), e(c, 9), e(c, 10), cv(c, 4), e(c, 11)]: a(x)
                a(f'{M32} {vr(O[c], 16)}, {vr(V0(t))}, {vr(P[c])}, {vr(O[c], 16)}')
                for x in g[3] + [e(c, 12), cv(c, 5), e(c, 13), e(c, 14), e(c, 15), cv(c, 6), cv(c, 7)]: a(x)
        a(f'''
        v_add_u32 v{vK}, {GRP}, v{vK}
        v_add_u32 v{vK2}, {GRP}, v{vK2}
        v_add_u32 v{vV}, {GRP}, v{vV}
        s_cbranch_scc1 {LA}
        s_cmp_eq_u32 s35, 8
        s_cbranch_scc1 {LD}
        s_cmp_eq_u32 s35, 1
        s_cselect_b32 s34, 5, 8
        ''')
        self.bar('k2')
        self.bars['C'].append('k3')
        a(f's_branch {LA}')
        a(f'{LFB}:')
        self.bar('k1', log=False)
        self.bar('k2', log=False)
        a('s_mov_b32 s34, 5')
        a(f'v_mov_b32 v156, 0x{f2u(-3.0e38):x}')
        a(f'v_mov_b32 v157, 0x{f2u(-3.0e38):x}')
        a('s_mov_b32 s35, 0')
        LM = a.label('MAXL')
        a(f'{LM}:')
        for t in range(8):
            if t % 4 == 0:
                a(f'ds_read_b64 {vr(K2(t), 2)}, v{vK2} offset:{k2off(t)}')
            a(f'ds_read_b128 {vr(K1(t))}, v{vK} offset:{koff(t)}')
            a('s_waitcnt lgkmcnt(0)')
            for c in range(2):
                a(f'{M32H} {vr(S[c], 16)}, {vr(K2(t), 2)}, {vr(Q2(c, t), 2)}, 0')
                a(f'{M32} {vr(S[c], 16)}, {vr(K1(t))}, {vr(Q1[c])}, {vr(S[c], 16)}')
            for c in range(2):
                for i in range(8):
                    a(f'v_max3_f32 v{156 + c}, v{156 + c}, v{S[c] + 2 * i}, v{S[c] + 2 * i + 1}')
        a(f'''
        v_add_u32 v{vK}, {GRP}, v{vK}
        v_add_u32 v{vK2}, {GRP}, v{vK2}
        s_add_u32 s35, s35, 1
        s_cmp_lt_u32 s35, 8
        s_cbranch_scc1 {LM}
        v_mov_b32 v{vK}, v0
        v_mov_b32 v{vK2}, v1
        ''')
        for c in range(2):
            self.allred(156 + c, 158, op='v_max_f32', only32=True)
        for c in range(2):
            for i in range(16):
                a(f'v_sub_f32 v{SH[c] + i}, 0, v{156 + c}')
        a(f's_branch {LGO}')
        a(f'{LD}:')
        a(f'{M32} {vr(O[1], 16)}, {vr(V1(7))}, {vr(P[1] + 4)}, {vr(O[1], 16)}')
        self.stamp('p4.loop')
        for c in range(2):
            o = O[c]
            a(f'v_mov_b32 v{o + 11}, v{o + 10}')
            a(f'v_permlane32_swap_b32 v{o + 10}, v{o + 11}')
            a(f'v_rcp_f32 v{o + 10}, v{o + 10}')
            for i in range(10):
                a(f'v_mul_f32 v{o + i}, v{o + i}, v{o + 10}')
            for k in range(4):
                a(f'v_cvt_pk_bf16_f32 v{116 + 4 * c + k}, v{o + 2 * k}, v{o + 2 * k + 1}')
            a(f'v_cvt_pk_bf16_f32 v{124 + c}, v{o + 8}, v{o + 9}')
        a('v_permlane16_swap_b32 v124, v125')

        def st(f):
            for c in range(2):
                a(f'buffer_store_dwordx4 {vr(116 + 4 * c)}, v0, {WS}, s32 offen offset:{1024 * c}{f}')
            a('s_mov_b32 exec_hi, 0')
            a(f'buffer_store_dwordx2 v[124:125], v1, {WS}, s33 offen{f}')
            self.exec_mask(-1)
        self.scoped(st, 's68')

    def x0_load(self):
        a = self.a
        LX = a.label('NOXT')
        a(f'''
        s_mov_b32 s64, s48
        s_mov_b32 s65, s49
        s_mov_b32 s66, {2048 * 1152}
        v_mul_u32_u24 v25, 1152, v20
        v_lshl_add_u32 v26, v21, 4, v25
        s_lshr_b32 s35, s16, 1
        s_mul_i32 s36, s35, {TILE}
        s_and_b32 s34, s16, 1
        s_lshl_b32 s33, s34, 2
        s_add_u32 s33, s33, s17
        s_mul_i32 s37, s33, 144
        s_add_u32 s37, s37, s36
        buffer_load_dwordx4 v[140:143], v26, s[64:67], s37 offen
        buffer_load_dwordx4 v[144:147], v26, s[64:67], s37 offen offset:64
        v_mov_b32 v148, 0
        v_mov_b32 v149, 0
        v_mov_b32 v150, 0
        v_mov_b32 v151, 0
        s_cmp_lg_u32 s17, 0
        s_cbranch_scc1 {LX}
        v_mad_u32_u24 v27, v21, 64, v25
        v_mad_u32_u24 v27, v21, 64, v27
        v_lshl_add_u32 v27, v21, 4, v27
        buffer_load_dwordx4 v[148:151], v27, s[64:67], s37 offen offset:128
        {LX}:
        ''')

    def x0_store(self):
        a = self.a
        LE, LL, LX4 = a.label('XE'), a.label('XST'), a.label('NOX4')
        self.stats_emit([vr(140 + 4 * i) for i in range(3)], None, 52, 56)
        a(f'''
        s_add_u32 s37, s36, {ACT}
        s_lshl_b32 s38, s35, 10
        s_add_u32 s38, s38, {STATS}
        v_lshlrev_b32 v60, 3, v20
        s_and_b32 s39, s35, 7
        s_lshl_b32 s31, s33, 11
        s_lshl_b32 s32, s33, 7
        s_lshl_b32 s34, s34, 10
        s_add_u32 s34, s34, 16384
        v_cndmask_b32 v52, v52, v53, s[42:43]
        v_cndmask_b32 v54, v54, v55, s[42:43]
        v_cndmask_b32 v57, v52, v54, s[44:45]
        {LL}:
        s_add_u32 s28, s37, s31
        s_add_u32 s29, s37, s34
        s_add_u32 s38, s38, s32
        buffer_store_dwordx4 v[140:143], v0, {WS}, s28 offen sc1
        buffer_store_dwordx4 v[144:147], v0, {WS}, s28 offen offset:1024 sc1
        s_cmp_lg_u32 s17, 0
        s_cbranch_scc1 {LX4}
        buffer_store_dwordx2 v[148:149], v2, {WS}, s29 offen sc1
        buffer_store_dwordx2 v[150:151], v2, {WS}, s29 offen offset:128 sc1
        {LX4}:
        s_mov_b64 exec, s[40:41]
        buffer_store_dwordx2 v[56:57], v60, {WS}, s38 offen sc1
        s_mov_b64 exec, -1
        s_cmp_lg_u32 s39, 7
        s_cbranch_scc1 {LE}
        s_mov_b32 s39, 0
        s_add_u32 s37, s22, 1
        s_and_b32 s37, s37, 15
        s_mul_i32 s37, s37, {HSLOT}
        s_add_u32 s37, s37, {HALO}
        s_add_u32 s38, s37, {TILE}
        s_branch {LL}
        {LE}:
        ''')

    def pcs(self, n):
        a = self.a
        a('s_lshl_b32 s78, s73, 6')
        a('s_add_u32 s77, s77, s78')
        a('v_lshlrev_b32 v30, 2, v3')
        for t in range(n):
            a(f'{M16} {vr(64 + 4 * t)}, {ONES}, {vr(104 + 4 * t)}, 0')
        self.exec_mask(0xffff)
        for t in range(n):
            a(f'buffer_store_dword v{64 + 4 * t}, v30, {WS}, s77 offen sc1')
            a('s_add_u32 s77, s77, 1152')
        self.exec_mask(-1)

    def mat_load(self):
        a = self.a
        a(f'''
        s_cmp_ge_u32 s39, 144
        s_cselect_b32 s71, 1, 0
        s_cmp_ge_u32 s39, 288
        s_cselect_b32 s71, 2, s71
        s_mul_i32 s72, s71, 144
        s_sub_u32 s72, s39, s72
        s_lshr_b32 s73, s72, 3
        s_and_b32 s72, s72, 7
        s_cmp_eq_u32 s71, 0
        s_cselect_b32 s8, s52, s62
        s_cselect_b32 s9, s53, s63
        s_cmp_eq_u32 s71, 1
        s_cselect_b32 s8, s56, s8
        s_cselect_b32 s9, s57, s9
        s_mov_b32 s10, {576 * 1152}
        s_mul_i32 s74, s73, 36
        s_cmp_eq_u32 s71, 0
        s_cselect_b32 s75, 18, 8
        s_cselect_b32 s76, 4, 18
        s_cselect_b32 s77, 8, 4
        s_lshr_b32 s78, s73, 1
        s_mul_i32 s78, s78, 72
        s_and_b32 s79, s73, 1
        s_lshl_b32 s80, s79, 5
        s_add_u32 s78, s78, s80
        s_cmp_eq_u32 s71, 1
        s_cselect_b32 s74, s78, s74
        s_cselect_b32 s75, 4, s75
        s_cselect_b32 s76, 8, s76
        s_cselect_b32 s77, 16, s77
        s_cselect_b32 s78, 64, 16
        s_cselect_b32 s80, 4, 36
        s_cselect_b32 s81, 2, 18
        s_mul_i32 s79, s79, 288
        s_add_u32 s78, s78, s79
        s_cmp_ge_u32 s73, 16
        s_cselect_b32 s74, s78, s74
        s_cselect_b32 s75, s80, s75
        s_cselect_b32 s76, 72, s76
        s_cselect_b32 s77, 144, s77
        s_cselect_b32 s81, s81, 2
        s_mul_i32 s74, s74, 1152
        s_mul_i32 s75, s75, 1152
        s_mul_i32 s76, s76, 1152
        s_mul_i32 s77, s77, 1152
        s_lshl_b32 s78, s72, 7
        s_add_u32 s74, s74, s78
        v_lshrrev_b32 v28, 1, v21
        v_mul_u32_u24 v28, s81, v28
        v_and_b32 v29, 1, v21
        v_add_u32 v28, v28, v29
        v_mul_u32_u24 v28, 1152, v28
        v_lshl_add_u32 v28, v20, 4, v28
        s_mul_i32 s79, s17, {26 * 1024}
        s_add_u32 s79, s79, {118 * 1024}
        ''')
        for i in range(8):
            a('s_mov_b32 s78, s74')
            if i & 1: a('s_add_u32 s78, s78, s75')
            if i & 2: a('s_add_u32 s78, s78, s76')
            if i & 4: a('s_add_u32 s78, s78, s77')
            a(f's_add_u32 m0, s79, {i * 1024}')
            a('buffer_load_dwordx4 v28, s[8:11], s78 offen lds')
        a(f'''
        v_lshrrev_b32 v30, 2, v20
        v_lshlrev_b32 v30, 4, v30
        v_and_b32 v31, 3, v20
        v_lshl_add_u32 v30, v31, 1, v30
        v_lshlrev_b32 v31, 1, v20
        v_add_u32 v132, 128, v31
        v_bfe_u32 v133, v20, 1, 1
        v_bfe_u32 v134, v20, 2, 1
        v_lshl_add_u32 v133, v133, 1, v134
        v_mul_u32_u24 v133, 36, v133
        v_and_b32 v134, 1, v20
        v_lshl_add_u32 v133, v134, 1, v133
        v_add_u32 v133, 32, v133
        s_cmp_eq_u32 s71, 1
        s_cselect_b64 vcc, -1, 0
        s_cselect_b32 s74, 36, 8
        s_cselect_b32 s75, 72, 64
        s_add_u32 s76, s74, s75
        v_cndmask_b32 v30, v30, v31, vcc
        v_cndmask_b32 v132, v132, v133, vcc
        s_lshl_b32 s78, s72, 4
        s_add_u32 s78, s78, s79
        v_lshlrev_b32 v24, 11, v21
        v_add_u32 v24, s78, v24
        v_add_u32 v30, v30, v24
        v_add_u32 v132, v132, v24
        v_add_u32 v133, s74, v30
        v_add_u32 v134, s75, v30
        v_add_u32 v135, s76, v30
        s_mul_i32 s77, s72, 18
        s_add_u32 s77, s77, s73
        s_mul_i32 s77, s77, 5120
        s_mul_i32 s78, s71, {WSSTR}
        s_add_u32 s77, s77, s78
        s_add_u32 s77, s77, {WS_P}
        s_add_u32 s78, s77, 4096
        v_cmp_le_u32 vcc, 8, v20
        ''')

    def mat_store(self, done):
        a = self.a
        addrs = [30, 133, 134, 135, 132]
        for t in range(5):
            self.gather_lds(addrs[t], 0, 64 + 8 * t)
        a('s_waitcnt lgkmcnt(0)')
        for t in range(5):
            self.gather_pack(104 + 4 * t, 64 + 8 * t)
            if t < 4:
                a(f'buffer_store_dwordx4 {vr(104 + 4 * t)}, v0, {WS}, s77 offen offset:{t * 1024} sc1')
            else:
                for k in range(4):
                    a(f'v_cndmask_b32 v{120 + k}, v{120 + k}, 0, vcc')
                a(f'buffer_store_dwordx4 v[120:123], v0, {WS}, s78 offen sc1')

        a(f'''
        s_cmp_lg_u32 s71, 1
        s_cbranch_scc1 {done}
        s_mul_i32 s77, s72, {5 * 1152}
        s_add_u32 s77, s77, {PCS}
        ''')
        self.pcs(5)

    def kv_load(self):
        a = self.a
        a(f'''
        s_lshr_b32 s74, s73, 1
        s_mul_i32 s74, s74, 72
        s_and_b32 s75, s73, 1
        s_lshl_b32 s76, s75, 5
        s_add_u32 s74, s74, s76
        s_mul_i32 s75, s75, 288
        s_add_u32 s75, s75, 64
        s_cmp_lt_u32 s73, 16
        s_cselect_b32 s74, s74, s75
        s_cselect_b32 s76, 8, 72
        s_mul_i32 s76, s76, 36
        s_mul_i32 s74, s74, 36
        v_mul_u32_u24 v28, s76, v21
        v_and_b32 v29, 1, v20
        v_lshl_add_u32 v29, v29, 1, v28
        v_lshl_add_u32 v28, v20, 1, v28
        s_mov_b32 s8, s58
        s_mov_b32 s9, s59
        s_mov_b32 s10, {576 * 36}
        ''')
        for jj in range(8):
            a(f'v_mov_b32 v{80 + jj}, 0')
        for jj in range(8):
            a(f'buffer_load_ushort v{64 + jj}, v28, s[8:11], s74 offen offset:{36 * jj}')
        self.exec_mask(0x0003000300030003)
        for jj in range(8):
            a(f'buffer_load_ushort v{80 + jj}, v29, s[8:11], s74 offen offset:{36 * jj + 32}')
        a('s_mov_b32 s8, s60')
        a('s_mov_b32 s9, s61')
        self.exec_mask(0x000c000c000c000c)
        for jj in range(8):
            a(f'buffer_load_ushort v{80 + jj}, v29, s[8:11], s74 offen offset:{36 * jj + 32}')
        self.exec_mask(-1)
        for jj in range(8):
            a(f'buffer_load_ushort v{72 + jj}, v28, s[8:11], s74 offen offset:{36 * jj}')

    def kv_store(self):
        a = self.a
        a('s_mul_i32 s77, s73, 3072')
        a(f's_add_u32 s77, s77, {WKV_P}')
        for t in range(3):
            self.gather_pack(104 + 4 * t, 64 + 8 * t)
            a(f'buffer_store_dwordx4 {vr(104 + 4 * t)}, v0, {WS}, s77 offen offset:{t * 1024} sc1')
        a(f's_mov_b32 s77, {PCS + 40 * 1152}')
        self.pcs(3)

    def halo_setup(self):
        a = self.a
        a(f'''
        s_lshl_b32 s28, s19, 4
        s_add_u32 s28, s28, s22
        s_mul_i32 s47, s28, {HSLOT}
        s_add_u32 s47, s47, {HALO}
        v_lshlrev_b32 v24, 8, v3
        v_add_u32 v24, {L_HALO}, v24
        ds_write_b128 v24, {ONES}
        v_lshlrev_b32 v24, 7, v20
        v_add_u32 v24, {L_HALO + 16384}, v24
        ds_write_b128 v24, {ONES}
        s_cmp_ge_u32 s17, 2
        s_cselect_b32 s28, 6, 2
        s_cselect_b32 s29, -2, 4
        s_cselect_b32 s86, 0, s17
        s_add_u32 s86, s28, s86
        s_add_u32 s87, s29, s17
        ''')

    def halo_regs(self):
        self.a(f'''
        s_lshl_b32 s28, s86, 10
        s_lshl_b32 s29, s87, 10
        v_add_u32 v56, s28, v0
        v_add_u32 v57, s29, v0
        v_add_u32 v58, {L_HALO}, v0
        v_add_u32 v59, {L_HALO + 16384}, v2
        s_add_u32 s28, s47, {TILE}
        buffer_load_dwordx2 v[52:53], v1, {WS}, s28 offen sc1
        buffer_load_dwordx2 v[54:55], v1, {WS}, s28 offen offset:512 sc1
        ''')

    def halo_steps(self, lo, hi):
        a = self.a
        rid = {}

        def rd(hs):
            o = (7 * (hs % 9)) * 1024
            rb = 112 + 12 * (hs % 6)
            if hs == 9:
                a(f'v_add_u32 v56, {63 * 1024}, v56')
                a(f'v_add_u32 v57, {63 * 1024}, v57')
            if hs < 16:
                a(f'ds_read_b128 {vr(rb)}, v58 offset:{hs * 1024}')
            else:
                a(f'ds_read_b64 {vr(rb, 2)}, v59 offset:{(hs - 16) * 1024}')
                a(f'ds_read_b64 {vr(rb + 2, 2)}, v59 offset:{(hs - 16) * 1024 + 128}')
            a(f'ds_read_b128 {vr(rb + 4)}, v56 offset:{o}')
            a(f'ds_read_b128 {vr(rb + 8)}, v57 offset:{o}')
            rid[hs] = a.lg
        for hs in range(lo, lo + 4):
            rd(hs)
        for hs in range(lo, hi):
            if hs + 4 < hi:
                rd(hs + 4)
            a.wait_lg(rid[hs])
            rb = 112 + 12 * (hs % 6)
            a(f'{M16} v[184:187], {vr(rb + 4)}, {vr(rb)}, {"0" if hs == 0 else "v[184:187]"}')
            a(f'{M16} v[188:191], {vr(rb)}, {vr(rb + 8)}, {"0" if hs == 0 else "v[188:191]"}')

    def halo_stats(self):
        a = self.a
        self.stats_finish(52)
        a(f'''
        s_lshl_b32 s28, s17, 9
        s_add_u32 s28, s28, {L_ST + 256}
        v_lshl_add_u32 v60, v20, 2, s28
        v_lshl_add_u32 v61, v21, 4, s28
        ds_write_b32 v60, v54
        ds_write_b32 v60, v55 offset:64
        s_lshl_b32 s28, s86, 6
        s_add_u32 s28, s28, {L_CS}
        s_lshl_b32 s29, s87, 6
        s_add_u32 s29, s29, {L_CS}
        v_lshl_add_u32 v62, v21, 4, s28
        v_lshl_add_u32 v63, v20, 2, s29
        ''')

    def halo_finish(self):
        a = self.a
        self.exec_mask(0x0001000100010001)
        a('ds_write_b128 v62, v[184:187]')
        self.exec_mask(0xffff)
        a('ds_write_b32 v63, v188')
        self.exec_mask(-1)
        LH, LE = a.label('HT'), a.label('HE')
        a(f'''
        ds_read_b128 v[168:171], v62
        ds_read_b32 v172, v63
        ds_read_b128 v[160:163], v61
        ds_read_b128 v[164:167], v61 offset:64
        v_mov_b32 v177, v16
        v_mov_b32 v179, v16
        s_lshl_b32 s28, s17, 9
        s_add_u32 s28, s28, {L_EX}
        v_add_u32 v173, s28, v1
        v_lshlrev_b32 v174, 2, v3
        v_add_u32 v174, {L_EX + 2048}, v174
        v_lshlrev_b32 v175, 4, v20
        v_add_u32 v175, {L_VT}, v175
        s_waitcnt lgkmcnt(0)
        ''')
        for r in range(4):
            a(f'v_fmac_f32 v{184 + r}, v{168 + r}, v54')
            a(f'v_fmac_f32 v{188 + r}, v172, v{160 + r}')
        for r in range(4):
            a(f'v_mul_f32 v{184 + r}, v{184 + r}, v55')
            a(f'v_mul_f32 v{188 + r}, v{188 + r}, v{164 + r}')
        a(f'''
        s_cmp_ge_u32 s17, 2
        s_cbranch_scc1 {LH}
        v_cvt_pk_bf16_f32 v180, v184, v185
        v_cvt_pk_bf16_f32 v181, v186, v187
        v_cvt_pk_bf16_f32 v182, v188, v189
        v_cvt_pk_bf16_f32 v183, v190, v191
        ds_write_b64 v173, v[180:181]
        ds_write_b64 v173, v[182:183] offset:1024
        s_branch {LE}
        {LH}:
        v_cvt_pk_bf16_f32 v176, v184, v185
        v_cvt_pk_bf16_f32 v178, v186, v187
        ds_write_b32 v174, v178
        ''')
        self.exec_mask(0x0000ffff00000000)
        a('ds_write_b128 v175, v[176:179]')
        self.exec_mask(-1)
        a(f'{LE}:')

    def touch_setup(self):
        a = self.a
        a(f'''
        v_and_b32 v34, 7, v3
        v_lshlrev_b32 v34, 7, v34
        s_lshl_b32 s28, s23, 10
        v_add_u32 v34, s28, v34
        s_lshl_b32 s28, s23, 7
        s_add_u32 s28, s28, 16384
        v_mov_b32 v35, s28
        v_cmp_gt_u32 vcc, 8, v20
        v_cndmask_b32 v32, v35, v34, vcc
        v_and_b32 v34, 1, v21
        s_lshl_b32 s28, s22, 3
        s_lshl_b32 s29, s17, 1
        s_add_u32 s28, s28, s29
        v_add_u32 v34, s28, v34
        v_mul_u32_u24 v34, {TILE}, v34
        v_add_u32 v32, v32, v34
        v_lshlrev_b32 v34, 7, v20
        s_lshl_b32 s28, s21, 11
        v_add_u32 v34, s28, v34
        v_and_b32 v35, 1, v3
        v_lshlrev_b32 v35, 7, v35
        s_lshl_b32 s28, s21, 8
        s_add_u32 s28, s28, 16384
        v_add_u32 v35, s28, v35
        v_cmp_gt_u32 vcc, 16, v3
        v_cndmask_b32 v33, v35, v34, vcc
        s_lshl_b32 s28, s20, 2
        s_add_u32 s28, s28, s17
        s_lshl_b32 s89, s28, 10
        s_mul_i32 s28, s28, {TILE}
        v_add_u32 v33, s28, v33
        s_lshl_b32 s28, s21, 7
        s_add_u32 s89, s89, s28
        ''')

    def touch(self, reg, buf, stats=None):
        a = self.a
        a(f's_add_u32 s28, s24, {self.B[buf]}')
        a(f'buffer_load_dword v36, v{reg}, {WS}, s28 offen')
        if stats is not None:
            a('s_add_u32 s28, s89, s25')
            a(f's_add_u32 s28, s28, {self.ST[stats]}')
            a(f'buffer_load_dword v37, v22, {WS}, s28 offen')

    def halo_dma(self, soff, tail):
        a = self.a
        a(f's_add_u32 s97, s47, {soff}')
        a(f's_add_u32 m0, {soff}, {L_HALO}')
        self.exec_mask(0xfefefefefefefefe if tail else 0xfffefffefffefffe)
        a(f'buffer_load_dwordx4 v0, {WS}, s97 offen sc1 lds')
        self.exec_mask(-1)

    def helper(self):
        a = self.a
        self.who = 'H'
        a('L_HELPER:')
        self.x0_load()
        a(f'''
        s_getpc_b64 s[8:9]
        L_PC:
        s_sub_u32 s8, s8, L_PC-{NAME}_kernel
        s_subb_u32 s9, s9, 0
        s_mov_b32 s10, L_CODE_END-{NAME}_kernel
        s_lshl_b32 s37, s2, 8
        s_and_b32 s37, s37, 0xf800
        v_lshl_add_u32 v31, v3, 3, s37
        s_lshl_b32 s37, s17, 9
        buffer_load_dwordx2 v[250:251], v31, s[8:11], s37 offen
        s_lshr_b32 s30, s23, 1
        s_lshl_b32 s30, s30, 5
        v_add_u32 v14, s30, v3
        s_lshl_b32 s30, s22, 4
        s_sub_u32 s30, s30, 2
        s_and_b32 s30, s30, 255
        v_and_b32 v15, 1, v3
        v_add_u32 v15, s30, v15
        v_cmp_gt_u32 vcc, 18, v3
        v_cndmask_b32 v14, v15, v14, vcc
        v_lshlrev_b32 v14, 8, v14
        s_mov_b32 s30, {FLAG}
        buffer_load_dword v249, v14, {WS}, s30 offen sc1
        v_mov_b32 v24, {L_CNT}
        v_mov_b32 v28, 0
        v_mov_b32 v29, 0
        v_mov_b32 v30, 0
        v_mov_b32 v31, 0
        ds_write_b128 v24, v[28:31]
        s_lshl_b32 s28, s17, 8
        s_add_u32 s28, s28, s16
        s_lshl_b32 s29, s28, 10
        s_add_u32 s29, s29, {KVIMG}
        s_cmp_lt_u32 s28, 320
        s_cselect_b32 s29, s29, 0x7f000000
        buffer_store_dwordx4 {ONES}, v0, {WS}, s29 offen sc1
        ''')
        self.halo_setup()
        self.touch_setup()
        a('s_waitcnt vmcnt(3) lgkmcnt(0)')
        self.nonce()
        self.x0_store()
        self.bar('b0a')
        self.bar('b0b')
        self.signal('s85', cnt=2, mask=7)
        a(f'''
        s_lshl_b32 s82, s17, 10
        s_and_b32 s83, s17, 1
        s_lshl_b32 s83, s83, 10
        s_add_u32 s83, s83, 16384
        s_mul_i32 s98, s23, {126 * 1024}
        s_add_u32 s98, s98, {WA_P}
        s_lshl_b32 s39, s16, 1
        s_add_u32 s39, s39, s17
        s_cmp_ge_u32 s17, 2
        s_cselect_b32 s39, 999, s39
        ''')
        LK, LJ = a.label('PKV'), a.label('PJ')
        a(f'''
        s_cmp_ge_u32 s39, 450
        s_cbranch_scc1 {LJ}
        s_cmp_ge_u32 s39, 432
        s_cbranch_scc1 {LK}
        ''')
        self.mat_load()
        a('s_waitcnt vmcnt(0)')
        self.mat_store(LJ)
        a(f's_branch {LJ}')
        a(f'{LK}:')
        a('s_sub_u32 s73, s39, 432')
        self.kv_load()
        a('s_waitcnt vmcnt(0)')
        self.kv_store()
        a(f'{LJ}:')
        self.poll('s30', 's85')

        def hal():
            for k in range(4):
                a(f's_add_u32 s96, s82, {4096 * k}')
                self.halo_dma('s96', False)
            self.halo_dma('s83', True)
            self.halo_regs()
        HQ, HK, HA = 64, 192, 64
        self.dma_linear('s98', 0, 126, range(4))
        a('s_waitcnt vmcnt(8)')
        self.bar('c0')
        self.signal('s85', cnt=1, off=128, second='s84', wait=False)
        self.dma_linear('s98', 0, 126, range(4, 6))
        hal()
        a('s_waitcnt vmcnt(15)')
        self.bar('c1')
        self.dma_linear('s98', 0, 126, range(6, 8))
        a(f'''
        v_lshlrev_b32 v14, 8, v3
        s_lshl_b32 s30, s17, 14
        s_add_u32 s30, s30, {FLAG + 128}
        s_mul_i32 s34, s21, 5
        s_add_u32 s35, s34, 4
        s_add_u32 s34, s34, s17
        s_add_u32 s36, s17, 39
        s_cmp_eq_u32 s17, 0
        s_cselect_b32 s35, s35, s36
        s_mul_i32 s34, s34, 1152
        s_mul_i32 s35, s35, 1152
        s_add_u32 s34, s34, {PCS}
        s_add_u32 s35, s35, {PCS}
        v_lshlrev_b32 v24, 2, v3
        s_mul_i32 s99, s21, {90 * 1024}
        s_add_u32 s99, s99, {WS_P}
        s_add_u32 s98, s99, {WSSTR}
        s_waitcnt vmcnt(8)
        ''')
        self.bar('c2')
        self.halo_stats()
        self.poll_early('s30', 's85', lambda: self.halo_steps(0, 12))
        self.bar('c3')
        for k in range(2):
            for i in range(5):
                a(f'buffer_load_dword v{40 + 5 * k + i}, v24, {WS}, s{34 + k} offen offset:{256 * i} sc1')
        self.reg_load('s98', 90, range(1), HQ)
        self.halo_steps(12, 18)
        self.halo_finish()
        self.reg_load('s98', 90, range(1, 3), HQ)
        a('L_HLAYER:')
        a('s_waitcnt lgkmcnt(0)')
        self.bar('t1')
        self.dma_linear('s99', 0, 90, range(2))
        self.bar('t2')
        self.dma_linear('s99', 0, 90, range(2, 6))
        a('s_waitcnt vmcnt(0)')
        self.bar('v2')
        LQ = a.label('HAVEQ')
        a('s_cmp_eq_u32 s19, 1')
        a(f's_cbranch_scc1 {LQ}')
        self.reg_load('s98', 90, range(3, 6), HQ)
        a(f'''
        s_mov_b32 s98, {WKV_P}
        s_cmp_lg_u32 s21, 0
        s_cselect_b32 s98, 0x7f000000, s98
        ''')
        self.reg_load('s98', 54, range(4), HK)
        a('s_waitcnt vmcnt(0)')
        a('v_cmp_gt_u32 vcc, 32, v3')
        for k in range(2):
            b = 40 + 5 * k
            a(f'v_cndmask_b32 v{b + 4}, 0, v{b + 4}, vcc')
            a(f'v_add_f32 v{b}, v{b}, v{b + 1}')
            a(f'v_add_f32 v{b + 2}, v{b + 2}, v{b + 3}')
            a(f'v_add_f32 v{b}, v{b}, v{b + 4}')
            a(f'v_add_f32 v{b}, v{b}, v{b + 2}')
            self.allred(b, b + 1)
        a(f'''
        s_lshl_b32 s28, s17, 6
        s_add_u32 s28, s28, {L_CS + 7 * 64}
        v_lshl_add_u32 v24, v20, 2, s28
        ds_write_b32 v24, v40
        ds_write_b32 v24, v45 offset:256
        {LQ}:
        ''')
        LNK = a.label('NOKVW')
        a('s_cmp_lg_u32 s21, 0')
        a(f's_cbranch_scc1 {LNK}')
        self.reg_dump(54, range(4), HK, L_KVW)
        a(f'{LNK}:')
        a('s_waitcnt vmcnt(0) lgkmcnt(0)')
        self.bar('m2')
        self.reg_dump(90, range(6), HQ)
        self.kv_poll_setup()
        a(f'''
        s_mul_i32 s98, s19, {KVSTR}
        s_add_u32 s98, s98, {KVIMG}
        s_add_u32 s99, s99, {2 * WSSTR}
        s_waitcnt lgkmcnt(0)
        ''')
        self.bar('v3')
        LP = a.label('NOPOLL')
        a('s_cmp_lg_u32 s17, 0')
        a(f's_cbranch_scc1 {LP}')
        self.poll('s30', 's31', wide=38)
        self.allred(39, 38, op='v_max_f32')
        self.rowmax(39)
        a(f'v_mov_b32 v38, {L_KM + 32}')
        a('ds_write_b32 v38, v39')
        a('s_waitcnt lgkmcnt(0)')
        a(f'{LP}:')
        self.bar('k0')
        self.dma_linear('s98', 0, 148, range(2))
        a('s_waitcnt vmcnt(0)')
        self.bar('k1')
        self.dma_linear('s98', 0, 148, range(2, 10))
        a('s_waitcnt vmcnt(0)')
        self.bar('k2')
        a(f's_mul_i32 s98, s23, {126 * 1024}')
        a(f's_add_u32 s98, s98, {WA_P}')
        LN = a.label('NOWA')
        a('s_cmp_eq_u32 s19, 1')
        a(f's_cbranch_scc1 {LN}')
        self.reg_load('s98', 126, range(8), HA)
        a(f'{LN}:')
        self.bar('k3')
        self.touch(33, 3)
        self.touch(33, 4, 2)
        self.dma_linear('s99', 0, 90, range(6))
        a('s_waitcnt vmcnt(0)')
        self.bar('v5')
        LE = a.label('HLAST')
        a('s_cmp_eq_u32 s19, 1')
        a(f's_cbranch_scc1 {LE}')
        self.next_layer()
        self.halo_setup()
        self.reg_dump(126, range(6, 8), HA)
        a(f'''
        v_and_b32 v14, 7, v3
        v_lshlrev_b32 v14, 8, v14
        s_lshl_b32 s30, s22, 11
        s_add_u32 s30, s30, {HFLAG}
        s_sub_u32 s98, s99, {WSSTR}
        ''')
        self.bar('m5')
        self.reg_dump(126, range(6), HA)
        a('s_waitcnt lgkmcnt(0)')
        self.bar('c0', log=False)
        self.poll('s30', 's85')
        hal()
        self.reg_load('s98', 90, range(3), HQ)
        LS, LD = a.label('HS'), a.label('HSD')
        a(f'''
        s_sub_u32 s99, s98, {WSSTR}
        v_mov_b32 v60, {L_CNT + 12}
        v_mov_b32 v61, 1
        s_mov_b32 s70, 0
        s_waitcnt vmcnt(12)
        s_mov_b64 exec, 1
        ds_add_u32 v60, v61
        s_mov_b64 exec, -1
        {LS}:
        ds_read_b32 v61, v60
        s_add_u32 s70, s70, 1
        s_cmp_gt_u32 s70, {POLL_LIMIT * 8}
        s_cbranch_scc1 {LD}
        s_waitcnt lgkmcnt(0)
        v_cmp_gt_u32 vcc, 4, v61
        s_cbranch_vccnz {LS}
        {LD}:
        s_waitcnt lgkmcnt(0)
        ''')
        self.halo_stats()
        self.halo_steps(0, 18)
        self.halo_finish()
        self.reg_load('s98', 90, range(3, 6), HQ)
        a('s_branch L_HLAYER')
        a(f'{LE}:')
        self.bar('m5', log=False)
        a('s_endpgm')

    def build(self):
        a = self.a
        self.entry()
        self.p0()
        a('L_LAYER:')
        self.p1()
        self.proj(2)
        self.p3()
        self.p4()
        self.proj(5)
        LH, LH2, LH3 = a.label('NOH'), a.label('NOH'), a.label('NOH')
        a(f'''
        s_add_u32 s31, s26, 3
        s_and_b32 s37, s20, 1
        s_lshl_b32 s37, s37, 2
        s_add_u32 s37, s37, s17
        s_cmp_lg_u32 s37, 7
        s_cbranch_scc1 {LH}
        s_add_u32 s38, s22, 1
        s_and_b32 s38, s38, 15
        s_mul_i32 s34, s38, {HSLOT}
        s_add_u32 s34, s34, {HALO + 16 * HSLOT}
        s_lshl_b32 s35, s21, 8
        s_add_u32 s35, s35, s34
        s_add_u32 s35, s35, 16384
        s_lshl_b32 s36, s21, 7
        s_add_u32 s36, s36, s34
        s_add_u32 s36, s36, {TILE}
        s_lshl_b32 s28, s21, 11
        s_add_u32 s34, s34, s28
        buffer_store_dwordx4 v[4:7], v0, {WS}, s34 offen sc1
        buffer_store_dwordx4 v[8:11], v0, {WS}, s34 offen offset:1024 sc1
        s_mov_b32 exec_hi, 0
        buffer_store_dwordx2 v[12:13], v1, {WS}, s35 offen sc1
        s_mov_b64 exec, s[40:41]
        buffer_store_dwordx2 v[44:45], v48, {WS}, s36 offen sc1
        s_mov_b64 exec, -1
        s_waitcnt vmcnt(4)
        s_branch {LH2}
        {LH}:
        s_waitcnt vmcnt(0)
        {LH2}:
        ''')
        self.signal('s31', sel='s68', wait=False)
        a(f'''
        s_cmp_lg_u32 s37, 7
        s_cbranch_scc1 {LH3}
        s_lshl_b32 s38, s38, 3
        s_add_u32 s38, s38, s21
        s_lshl_b32 s38, s38, 8
        s_add_u32 s38, s38, {HFLAG}
        s_waitcnt vmcnt(0)
        s_mov_b64 exec, 0xffff
        buffer_store_dwordx2 v[254:255], v1, {WS}, s38 offen sc1
        s_mov_b64 exec, -1
        {LH3}:
        ''')
        self.stamp('p5.flag')
        self.next_layer()
        a(f'''
        s_mov_b32 s82, {FLAG}
        s_branch L_LAYER
        L_FINAL:
        v_and_b32 v20, 15, v3
        v_lshrrev_b32 v21, 4, v3
        v_mul_u32_u24 v20, 1152, v20
        v_lshl_add_u32 v22, v21, 4, v20
        v_lshl_add_u32 v23, v21, 3, v20
        s_mul_i32 s28, s21, 144
        s_add_u32 s28, s28, s88
        buffer_store_dwordx4 v[4:7], v22, s[12:15], s28 offen
        buffer_store_dwordx4 v[8:11], v22, s[12:15], s28 offen offset:64
        s_mov_b32 exec_hi, 0
        buffer_store_dwordx2 v[12:13], v23, s[12:15], s28 offen offset:128
        s_mov_b64 exec, -1
        ''')
        if self.prof:
            a('s_waitcnt vmcnt(0)')
        self.stamp('end')
        a(f'''
        s_or_b32 s28, s16, s17
        s_cmp_lg_u32 s28, 0
        s_cbranch_scc1 L_EXIT
        v_mov_b32 v20, s18
        v_mov_b32 v21, 0
        s_mov_b64 exec, 1
        buffer_store_dword v20, v21, {WS}, 0 offen sc1
        L_EXIT:
        s_endpgm
        ''')
        self.helper()
        a('L_CODE_END:')
        assert self.bars['C'] == self.bars['H'], self.bars
        for b in a.check_branches():
            print('BRANCH HAZARD', b, file=sys.stderr)
        head = open(f'cdna_kernels/{NAME}.s.ref').read().split('; Override launch')[0]
        return f'''{head}; @launch grid=(256,1,1) block=({BLOCK},1,1) lds={LDS_BYTES}
.amdgcn_target "amdgcn-amd-amdhsa--gfx950"
.text
.globl {NAME}_kernel
.p2align 8
.type {NAME}_kernel,@function
{NAME}_kernel:
{a.text()}.section .rodata,"a"
.p2align 6
.amdhsa_kernel {NAME}_kernel
  .amdhsa_next_free_vgpr 256
  .amdhsa_next_free_sgpr 102
  .amdhsa_accum_offset 256
  .amdhsa_group_segment_fixed_size 0
  .amdhsa_kernarg_size 88
  .amdhsa_user_sgpr_count 2
  .amdhsa_user_sgpr_kernarg_segment_ptr 1
  .amdhsa_system_sgpr_workgroup_id_x 1
.end_amdhsa_kernel
'''


if __name__ == '__main__':
    import argparse
    ap = argparse.ArgumentParser()
    ap.add_argument('-o', default=f'cdna_kernels/{NAME}.s')
    ap.add_argument('--fallback', action='store_true')
    ap.add_argument('--prof', action='store_true')
    ap.add_argument('--nolocal', action='store_true')
    ap.add_argument('--sep', action='store_true')
    args = ap.parse_args()
    g = Gen(args.fallback, args.prof, args.nolocal, args.sep)
    txt = g.build()
    open(args.o, 'w').write(txt)
    if args.prof:
        import json; json.dump([g.stamps, g.hstamps], open(args.o + '.json', 'w'))
    print('nops inserted:', g.a.nops, 'lines:', txt.count('\n'), 'barriers:', g.bars['C'])
```

```python
import sys, struct, math
from asmlib import Asm, groups, weave

NAME = 'interleave_layers__sliding_local_dilated__grouped_kv_mqa__prompt'

FLAG = 0x1000
KVFLAG = 0x12000
HFLAG = 0x16000
KVIMG = 0x20000
KVSTR = 0x28000
STATS = 0x80000
STSTR = 0x20000
WA_P = 0x100000
WS_P = 0x300000
WSSTR = 0xB4000
WKV_P = 0x520000
PCS = 0x540000
HALO = 0x550000
HSLOT = 0x5000
ACT = 0x600000
ACTB = 0x240000
PROF = 0x1800000
WS_SIZE = 0x1900000
TILE = 18432
GRP = 18944
STEP = 2240
L_KVW = 90 * 1024
L_HALO = 126 * 1024
L_X = 144 * 1024
L_EX = L_X
L_VT = L_X + 9216
L_CS = L_X + 13056
L_ST = L_CS + 1024
L_KM = L_ST + 2048
L_CNT = L_KM + 16
LDS_BYTES = 160 * 1024
BLOCK = 512
POLL_LIMIT = 40000
BTHR = 50.0


def f2u(x):
    return struct.unpack('<I', struct.pack('<f', x))[0]


def vr(b, n=4):
    return f'v[{b}:{b + n - 1}]' if n > 1 else f'v{b}'


M16 = 'v_mfma_f32_16x16x32_bf16'
M16H = 'v_mfma_f32_16x16x16_bf16'
M32 = 'v_mfma_f32_32x32x16_bf16'
M32H = 'v_mfma_f32_32x32x8_bf16'
WS = 's[4:7]'
ONES = 'v[16:19]'


class Gen:
    def __init__(self, force_fallback=False, prof=False, no_local=False, sep=False, dbg=False):
        self.dbg = dbg
        self.no_local = no_local
        self.B = [i * ACTB for i in range(5)] if sep else [0, ACTB, 0, ACTB, 0]
        self.ST = [i * STSTR for i in range(3)] if sep else [0, 0, 0]
        self.prof = prof
        self.stamps = []
        self.hstamps = []
        self.a = Asm()
        self.force_fallback = force_fallback
        self.bars = {'C': [], 'H': []}
        self.who = 'C'

    def bar(self, name, log=True):
        if self.who == 'H' or name in ('t1', 't2', 'c1', 'c2', 'c3', 'v2'):
            self.stamp('>' + name)
        self.a('s_barrier')
        if log:
            self.bars[self.who].append(name)

    def run(self, g):
        for x in g:
            self.a.emit(x)

    def exec_mask(self, m):
        a = self.a
        if m == -1:
            a('s_mov_b64 exec, -1')
        elif m < (1 << 31):
            a(f's_mov_b64 exec, 0x{m:x}')
        else:
            a(f's_mov_b32 exec_lo, 0x{m & 0xffffffff:x}')
            a(f's_mov_b32 exec_hi, 0x{m >> 32:x}')

    def poll(self, sbase, sneed, wide=None):
        a = self.a
        L, D = a.label('POLL'), a.label('POLLD')
        a('s_mov_b32 s70, 0')
        a(f'{L}:')
        if wide:
            a(f'buffer_load_dwordx2 {vr(wide, 2)}, v14, {WS}, {sbase} offen sc1')
            a('s_waitcnt vmcnt(0)')
            a(f'v_subrev_u32 v15, {sneed}, v{wide}')
        else:
            a(f'buffer_load_dword v15, v14, {WS}, {sbase} offen sc1')
            a('s_waitcnt vmcnt(0)')
            a(f'v_subrev_u32 v15, {sneed}, v15')
        a('v_cmp_le_u32 vcc, 16, v15')
        a('s_add_u32 s70, s70, 1')
        a(f's_cmp_gt_u32 s70, {POLL_LIMIT}')
        a(f's_cbranch_scc1 {D}')
        a(f's_cbranch_vccnz {L}')
        a(f'{D}:')

    def poll_early(self, sbase, sneed, between):
        a = self.a
        D = a.label('POLLE')
        a(f'buffer_load_dword v15, v14, {WS}, {sbase} offen sc1')
        between()
        a('s_waitcnt vmcnt(0)')
        a(f'v_subrev_u32 v15, {sneed}, v15')
        a('v_cmp_le_u32 vcc, 16, v15')
        a(f's_cbranch_vccz {D}')
        self.poll(sbase, sneed)
        a(f'{D}:')

    def arrive(self, skip, cnt=0, mask=3, wait=True):
        a = self.a
        a(f'v_mov_b32 v252, {L_CNT + 4 * cnt}')
        a('v_mov_b32 v253, 1')
        a('s_mov_b64 exec, 1')
        if wait:
            a('s_waitcnt vmcnt(0)')
        a('ds_add_rtn_u32 v253, v252, v253')
        a('s_waitcnt lgkmcnt(0)')
        a('v_readfirstlane_b32 s28, v253')
        a('s_mov_b64 exec, -1')
        a(f's_and_b32 s28, s28, {mask}')
        a(f's_cmp_lg_u32 s28, {mask}')
        a(f's_cbranch_scc1 {skip}')

    def scoped(self, fn, sel):
        a = self.a
        if sel is None:
            fn(' sc1')
            return
        LL, LE = a.label('LOC'), a.label('LOCE')
        a(f's_cmp_lg_u32 {sel}, 0')
        a(f's_cbranch_scc1 {LL}')
        vm = a.vm
        fn(' sc1')
        a(f's_branch {LE}')
        a(f'{LL}:')
        a.vm = vm
        fn('')
        a(f'{LE}:')

    def signal(self, stag, cnt=0, off=0, sel=None, second=None, mask=3, wait=True):
        a = self.a
        L = a.label('SIG')
        a(f'v_mov_b32 v254, {stag}')
        a(f'v_mov_b32 v255, {second or stag}')
        self.arrive(L, cnt, mask, wait)
        self.exec_mask(0xffff)
        self.scoped(lambda f: a(f'buffer_store_dwordx2 v[254:255], v1, {WS}, s27 offen offset:{off}{f}'), sel)
        a.vm -= 1
        self.exec_mask(-1)
        a(f'{L}:')

    def dma_linear(self, ssrc, lds0, kb, rounds, first_kb=0):
        a = self.a
        for i in rounds:
            a(f's_add_u32 s96, s100, {16384 * i + first_kb * 1024}')
            if first_kb + (4 * i + 4) * 4 > kb:
                a(f's_min_u32 s96, s96, {(kb - 4) * 1024}')
            a(f's_add_u32 s97, s96, {ssrc}')
            a(f's_add_u32 m0, s96, {lds0}')
            for k in range(4):
                a(f'buffer_load_dwordx4 v0, {WS}, s97 offen offset:{k * 1024} sc1 lds')

    def reg_load(self, ssrc, kb, rounds, base):
        a = self.a
        for i in rounds:
            a(f's_add_u32 s96, s100, {16384 * i}')
            if (4 * i + 4) * 4 > kb:
                a(f's_min_u32 s96, s96, {(kb - 4) * 1024}')
            a(f's_add_u32 s97, s96, {ssrc}')
            for k in range(4):
                a(f'buffer_load_dwordx4 {vr(base + 16 * i + 4 * k)}, v0, {WS}, s97 offen offset:{k * 1024} sc1')

    def reg_dump(self, kb, rounds, base, lds0=0):
        a = self.a
        for i in rounds:
            a(f's_add_u32 s96, s100, {16384 * i}')
            if (4 * i + 4) * 4 > kb:
                a(f's_min_u32 s96, s96, {(kb - 4) * 1024}')
            if lds0:
                a(f's_add_u32 s96, s96, {lds0}')
            a(f'v_add_u32 v{25 + i % 2}, s96, v0')
            for k in range(4):
                a(f'ds_write_b128 v{25 + i % 2}, {vr(base + 16 * i + 4 * k)} offset:{k * 1024}')

    def load_frag(self, s, reg, stile):
        a = self.a
        so = f's{stile + s // 4}'
        if s < 16:
            a(f'buffer_load_dwordx4 {vr(reg)}, v0, {WS}, {so} offen offset:{(s % 4) * 1024} sc1')
        else:
            a(f'buffer_load_dwordx2 {vr(reg, 2)}, v2, {WS}, {so} offen offset:{(s % 4) * 1024} sc1')
            a(f'buffer_load_dwordx2 {vr(reg + 2, 2)}, v2, {WS}, {so} offen offset:{(s % 4) * 1024 + 128} sc1')

    def tile_sgprs(self, stile):
        for i in range(1, 5):
            self.a(f's_add_u32 s{stile + i}, s{stile}, {4096 * i}')

    def allred(self, x, t, op='v_add_f32', only32=False):
        a = self.a
        a(f'v_mov_b32 v{t}, v{x}')
        a(f'v_permlane32_swap_b32 v{x}, v{t}')
        a(f'{op} v{x}, v{x}, v{t}')
        if not only32:
            a(f'v_mov_b32 v{t}, v{x}')
            a(f'v_permlane16_swap_b32 v{x}, v{t}')
            a(f'{op} v{x}, v{x}, v{t}')

    def rowmax(self, x):
        for n in (8, 4, 2, 1):
            self.a(f'v_max_f32_dpp v{x}, v{x}, v{x} row_ror:{n} row_mask:0xf bank_mask:0xf')

    def stats_finish(self, raw):
        a = self.a
        a(f'v_add_f32 v{raw}, v{raw}, v{raw + 2}')
        a(f'v_add_f32 v{raw + 1}, v{raw + 1}, v{raw + 3}')
        for sw in ('v_permlane32_swap_b32', 'v_permlane16_swap_b32'):
            a(f'v_mov_b32 v{raw + 2}, v{raw}')
            a(f'v_mov_b32 v{raw + 3}, v{raw + 1}')
            a(f'{sw} v{raw}, v{raw + 2}')
            a(f'{sw} v{raw + 1}, v{raw + 3}')
            a(f'v_add_f32 v{raw}, v{raw}, v{raw + 2}')
            a(f'v_add_f32 v{raw + 1}, v{raw + 1}, v{raw + 3}')
        a(f'v_mul_f32 v{raw + 2}, 0x{f2u(-1.0 / 576):x}, v{raw}')
        a(f'v_mul_f32 v{raw + 1}, 0x{f2u(1.0 / 576):x}, v{raw + 1}')
        a(f'v_fma_f32 v{raw + 1}, -v{raw + 2}, v{raw + 2}, v{raw + 1}')
        a(f'v_max_f32 v{raw + 1}, 0, v{raw + 1}')
        a(f'v_add_f32 v{raw + 1}, 0x{f2u(1e-5):x}, v{raw + 1}')
        a(f'v_rsq_f32 v{raw + 3}, v{raw + 1}')

    def stats_emit(self, frags, tail, d1, d2):
        a = self.a
        first = True
        for f in frags:
            a(f'{M16} {vr(d1)}, {f}, {f}, {"0" if first else vr(d1)}')
            a(f'{M16} {vr(d2)}, {ONES}, {f}, {"0" if first else vr(d2)}')
            first = False
        if tail:
            a(f'{M16H} {vr(d1)}, {tail}, {tail}, {vr(d1)}')
            a(f'{M16H} {vr(d2)}, v[16:17], {tail}, {vr(d2)}')

    def stats_store(self, d1, d2, soff, vaddr, f=' sc1'):
        a = self.a
        a(f'v_cndmask_b32 v{d1}, v{d1}, v{d1 + 1}, s[42:43]')
        a(f'v_cndmask_b32 v{d1 + 2}, v{d1 + 2}, v{d1 + 3}, s[42:43]')
        a(f'v_cndmask_b32 v{d2 + 1}, v{d1}, v{d1 + 2}, s[44:45]')
        a('s_mov_b64 exec, s[40:41]')
        a(f'buffer_store_dwordx2 {vr(d2, 2)}, {vaddr}, {WS}, {soff} offen{f}')
        self.exec_mask(-1)

    def gather_lds(self, vaddr, off, tmp):
        for jj in range(8):
            self.a(f'ds_read_u16 v{tmp + jj}, v{vaddr} offset:{off + jj * 256}')

    def gather_pack(self, dst, tmp):
        for k in range(4):
            self.a(f'v_lshl_or_b32 v{dst + k}, v{tmp + 2 * k + 1}, 16, v{tmp + 2 * k}')

    def stamp(self, name, again=False):
        a = self.a
        if self.dbg and self.who == 'C':
            sel = ['start', 'p0.flag1', 'p1.bar', 'p1.mfma', 'p4.start', 'p4.loop', 'p5.mfma', 'end']
            if name in sel:
                if name == 'start':
                    a('s_load_dwordx2 s[64:65], s[0:1], 72')
                    a('s_mov_b32 s66, 256')
                a('s_memrealtime s[94:95]')
                a('s_lshl_b32 s90, s19, 5')
                a('s_or_b32 s91, s16, s17')
                a('s_lshl_b32 s91, s91, 8')
                a('s_add_u32 s90, s90, s91')
                a('s_waitcnt lgkmcnt(0)')
                a('v_mov_b32 v254, s94')
                a('s_mov_b64 exec, 1')
                a(f'buffer_store_dword v254, v0, s[64:67], s90 offen offset:{4 * sel.index(name)}')
                a.vm -= 1
                a('s_mov_b64 exec, -1')
        if not self.prof:
            return
        names = self.stamps if self.who == 'C' else self.hstamps
        idx = names.index(name) if name in names else len(names)
        if name not in names:
            names.append(name)
        assert idx < 32
        r0 = 254 if self.who == 'C' else 50
        a('s_memtime s[92:93]')
        a('s_memrealtime s[94:95]')
        a('s_lshl_b32 s90, s16, 2')
        a('s_add_u32 s90, s90, s17')
        a('s_lshl_b32 s90, s90, 9')
        a('s_lshl_b32 s91, s19, 8')
        a('s_add_u32 s90, s90, s91')
        a(f's_add_u32 s90, s90, {PROF + idx * 8 + (0 if r0 == 254 else 0x80000)}')
        a('s_waitcnt lgkmcnt(0)')
        a(f'v_mov_b32 v{r0}, s92')
        a(f'v_mov_b32 v{r0 + 1}, s94')
        a('s_mov_b64 exec, 1')
        a(f'buffer_store_dwordx2 {vr(r0, 2)}, v0, {WS}, s90 offen')
        a.vm -= 1
        a('s_mov_b64 exec, -1')

    def next_layer(self):
        self.a(f'''
        s_mov_b32 s19, 1
        s_add_u32 s85, s26, 3
        s_add_u32 s26, s26, 4
        s_add_u32 s24, s24, {self.B[4]}
        s_add_u32 s25, s25, {self.ST[2]}
        ''')

    def entry(self):
        a = self.a
        a(f'''
        s_cmp_ge_u32 s2, 256
        s_cbranch_scc1 L_EXIT
        s_load_dwordx16 s[48:63], s[0:1], 0
        s_load_dwordx2 s[12:13], s[0:1], 64
        s_load_dwordx2 s[4:5], s[0:1], 80
        v_lshrrev_b32 v14, 6, v0
        v_and_b32 v3, 63, v0
        v_lshlrev_b32 v0, 4, v3
        v_readfirstlane_b32 s69, v14
        v_lshlrev_b32 v1, 3, v3
        v_and_b32 v20, 15, v3
        v_lshrrev_b32 v21, 4, v3
        v_lshlrev_b32 v2, 8, v21
        v_lshl_add_u32 v2, v20, 3, v2
        s_and_b32 s17, s69, 3
        s_and_b32 s28, s2, 7
        s_lshr_b32 s29, s2, 3
        s_lshl_b32 s16, s28, 5
        s_add_u32 s16, s16, s29
        s_lshr_b32 s20, s16, 3
        s_and_b32 s21, s16, 7
        s_lshr_b32 s22, s16, 4
        s_and_b32 s23, s16, 15
        s_lshl_b32 s27, s16, 8
        s_add_u32 s27, s27, {FLAG}
        s_mov_b32 s19, 0
        s_getreg_b32 s84, hwreg(HW_REG_XCC_ID)
        s_lshl_b32 s100, s17, 12
        s_mov_b32 s24, {ACT}
        s_mov_b32 s25, {STATS}
        s_mov_b32 s40, 0x00f0000f
        s_mov_b32 s41, 0xf0000f00
        s_mov_b32 s42, 0xaaaaaaaa
        s_mov_b32 s43, 0xaaaaaaaa
        s_mov_b32 s44, 0xcccccccc
        s_mov_b32 s45, 0xcccccccc
        v_mov_b32 v16, 0x3f803f80
        v_mov_b32 v17, 0x3f803f80
        v_mov_b32 v18, 0x3f803f80
        v_mov_b32 v19, 0x3f803f80
        v_mov_b32 v22, 0
        s_mov_b32 s6, {WS_SIZE}
        s_mov_b32 s7, 0x20000
        s_mov_b32 s14, {2048 * 1152}
        s_mov_b32 s15, 0x20000
        s_mov_b32 s11, 0x20000
        s_mov_b32 s67, 0x20000
        s_waitcnt lgkmcnt(0)
        buffer_load_dword v23, v22, {WS}, 0 offen sc1
        s_cmp_ge_u32 s69, 4
        s_cbranch_scc1 L_HELPER
        ''')

    def nonce(self):
        self.a('''
        v_readfirstlane_b32 s18, v23
        s_add_u32 s18, s18, 16
        s_add_u32 s26, s18, 3
        s_add_u32 s85, s18, 1
        ''')

    def p0(self):
        a = self.a
        self.stamp('start')
        a('s_and_b32 s80, s16, 31')
        a('s_lshr_b32 s81, s16, 5')
        LA = a.label('NOWA')
        a(f'''
        s_cmp_ge_u32 s80, 18
        s_cbranch_scc1 {LA}
        s_mov_b32 s8, s50
        s_mov_b32 s9, s51
        s_mov_b32 s10, {576 * 3456}
        s_lshr_b32 s32, s80, 1
        s_mul_i32 s32, s32, 72
        s_and_b32 s33, s80, 1
        s_lshl_b32 s34, s33, 5
        s_add_u32 s32, s32, s34
        s_mul_i32 s33, s33, 288
        s_add_u32 s33, s33, 64
        s_cmp_lt_u32 s80, 16
        s_cselect_b32 s32, s32, s33
        s_cselect_b32 s34, 8, 72
        s_mul_i32 s34, s34, s17
        s_add_u32 s32, s32, s34
        s_mul_i32 s32, s32, 3456
        s_lshl_b32 s33, s81, 7
        s_add_u32 s32, s32, s33
        v_mul_u32_u24 v24, 3456, v21
        v_lshl_add_u32 v24, v20, 4, v24
        s_lshl_b32 s33, s17, 11
        ''')
        for sec in range(3):
            for i in range(2):
                a(f's_add_u32 s34, s32, {sec * 1152 + i * 4 * 3456}')
                a(f's_add_u32 m0, s33, {sec * 8192 + i * 1024}')
                a('buffer_load_dwordx4 v24, s[8:11], s34 offen lds')
        LJ = a.label('P0J')
        a(f'''
        s_branch {LJ}
        {LA}:
        s_sub_u32 s39, s80, 18
        s_mul_i32 s38, s81, 14
        s_add_u32 s39, s39, s38
        s_lshl_b32 s39, s39, 2
        s_add_u32 s39, s39, s17
        s_mul_i32 s39, s39, 1536
        v_lshlrev_b32 v24, 7, v3
        s_mov_b32 s10, {576 * 1152}
        s_mov_b64 exec, 0xfff
        ''')
        for p in (52, 56, 62):
            a(f's_mov_b32 s8, s{p}')
            a(f's_mov_b32 s9, s{p + 1}')
            a(f'buffer_load_dword v25, v24, s[8:11], s39 offen')
        a(f's_mov_b32 s10, {576 * 36}')
        for p in (58, 60):
            a(f's_mov_b32 s8, s{p}')
            a(f's_mov_b32 s9, s{p + 1}')
            a(f'buffer_load_dword v25, v24, s[8:11], s39 offen')
        a('s_mov_b64 exec, -1')
        a(f'{LJ}:')
        a(f'''
        s_lshl_b32 s89, s20, 2
        s_add_u32 s89, s89, s17
        s_mul_i32 s88, s89, {TILE}
        s_lshl_b32 s89, s89, 10
        s_waitcnt vmcnt(0)
        ''')
        self.nonce()
        self.stamp('p0.loaded')
        self.bar('b0a')
        LA2, LA3 = a.label('NOWA2'), a.label('NOWAT')
        a(f'''
        s_cmp_ge_u32 s80, 18
        s_cbranch_scc1 {LA2}
        s_mul_i32 s32, s17, 36
        s_lshl_b32 s33, s81, 4
        s_add_u32 s32, s32, s33
        v_lshlrev_b32 v24, 11, v21
        v_lshl_add_u32 v30, v20, 1, v24
        v_add_u32 v30, s32, v30
        s_lshl_b32 s34, s81, 1
        s_lshr_b32 s32, s17, 1
        s_add_u32 s34, s34, s32
        s_mul_i32 s34, s34, 18
        s_add_u32 s34, s34, s80
        s_mul_i32 s34, s34, 7
        s_and_b32 s32, s17, 1
        s_add_u32 s34, s34, s32
        s_lshl_b32 s34, s34, 10
        s_add_u32 s34, s34, {WA_P}
        s_add_u32 s32, s34, 4096
        ''')
        for sec in range(3):
            self.gather_lds(30, sec * 8192, 96 + 8 * sec)
        for sec in range(3):
            a(f's_waitcnt lgkmcnt({min(15, 16 - 8 * sec)})')
            self.gather_pack(120 + 4 * sec, 96 + 8 * sec)
            if sec < 2:
                a(f'buffer_store_dwordx4 {vr(120 + 4 * sec)}, v0, {WS}, s34 offen offset:{sec * 2048} sc1')
            else:
                a(f'buffer_store_dwordx4 {vr(120 + 4 * sec)}, v0, {WS}, s32 offen sc1')
        a(f'''
        s_cmp_ge_u32 s17, 2
        s_cbranch_scc1 {LA3}
        v_bfe_u32 v31, v20, 1, 1
        v_bfe_u32 v132, v20, 2, 1
        v_cmp_le_u32 vcc, 8, v20
        v_cndmask_b32 v133, v132, v31, vcc
        v_cndmask_b32 v31, v31, 2, vcc
        v_lshlrev_b32 v31, 13, v31
        v_mad_u32_u24 v31, v133, 36, v31
        v_and_b32 v132, 1, v20
        v_lshl_add_u32 v31, v132, 1, v31
        v_add_u32 v31, v31, v24
        s_mul_i32 s32, s17, 72
        s_add_u32 s32, s32, s33
        s_add_u32 s32, s32, 32
        v_add_u32 v31, s32, v31
        s_lshl_b32 s34, s81, 1
        s_add_u32 s34, s34, s17
        s_mul_i32 s34, s34, 18
        s_add_u32 s34, s34, s80
        s_mul_i32 s34, s34, 7
        s_add_u32 s34, s34, 6
        s_lshl_b32 s34, s34, 10
        s_add_u32 s34, s34, {WA_P}
        ''')
        self.gather_lds(31, 0, 136)
        a('s_waitcnt lgkmcnt(0)')
        self.gather_pack(144, 136)
        a('v_cmp_le_u32 vcc, 12, v20')
        for k in range(4):
            a(f'v_cndmask_b32 v{144 + k}, v{144 + k}, 0, vcc')
        a(f'buffer_store_dwordx4 v[144:147], v0, {WS}, s34 offen sc1')
        a(f'{LA2}:')
        a(f'{LA3}:')
        self.bar('b0b')
        self.signal('s85', cnt=2, mask=7)
        self.stamp('p0.flag1')
        a(f'''
        s_mov_b32 s82, {FLAG}
        s_mov_b32 s68, 0
        ''')

    def p1(self):
        a = self.a
        ACC = lambda x, t: 20 + 28 * x + 4 * t
        WR = lambda s, t: 84 + 28 * (s % 2) + 4 * t
        AR = lambda s, x: 164 + 8 * (s % 8) + 4 * x
        RAW, PR = 228, 140
        NR = lambda x: vr(RAW + 4 * x + 2, 2)
        QC = lambda x: 156 + 2 * x
        TQD = (160, 244)
        MP, MC, MPA, PM = 180, 184, 188, 192
        xK, xT, xV, cN, cS, vTR = 196, 197, 198, 199, 200, 201
        vW, TOK, GG = 248, 249, 250
        QO = lambda x, h: 204 + 8 * x + 4 * h
        KO = lambda h, y: 112 + 12 * h + 4 * y
        VV = lambda h: 164 + 6 * h
        VT = (220, 106)
        cexp = 18 ** -0.5 * math.log2(math.e)
        a(f'''
        s_lshl_b32 s30, s22, 12
        s_add_u32 s30, s30, s82
        v_and_b32 v{TOK}, 15, v3
        v_lshlrev_b32 v14, 8, v{TOK}
        v_lshrrev_b32 v{GG}, 4, v3
        v_mov_b32 v{vW}, v0
        s_lshl_b32 s28, s22, 3
        s_lshl_b32 s29, s17, 1
        s_add_u32 s29, s29, s28
        s_mul_i32 s48, s29, {TILE}
        s_add_u32 s48, s48, s24
        s_add_u32 s53, s48, {TILE}
        s_lshl_b32 s58, s29, 10
        s_add_u32 s58, s58, s25
        ''')
        self.tile_sgprs(48)
        self.tile_sgprs(53)
        self.poll('s30', 's85')
        self.stamp('p1.polled')
        G = {}
        for s in range(18):
            with a.capture() as L:
                self.load_frag(s, AR(s, 0), 48)
                self.load_frag(s, AR(s, 1), 53)
                a.mark_vm(('p1', s))
            G[s] = groups(L)
        with a.capture() as L:
            for x in range(2):
                a(f'buffer_load_dwordx2 {vr(RAW + 4 * x, 2)}, v1, {WS}, s58 offen offset:{1024 * x} sc1')
                a(f'buffer_load_dwordx2 {vr(RAW + 4 * x + 2, 2)}, v1, {WS}, s58 offen offset:{1024 * x + 512} sc1')
            a.mark_vm(('p1', 'st'))
        GS = groups(L)

        def reads(s):
            o = (7 * (s % 9)) * 1024
            out = [f'v_add_u32 v{vW}, {63 * 1024}, v{vW}'] if s == 9 else []
            return out + [f'ds_read_b128 {vr(WR(s, t))}, v{vW} offset:{o + t * 1024}' for t in range(7)]

        for s in range(4):
            for g in G[s]:
                self.run(g)
        self.bar('c0')
        self.stamp('p1.bar')
        rid = {}

        def emit_read(s, r):
            a(r)
            if r.startswith('ds_read'):
                rid.setdefault(s, []).append(a.lg)
        for r in reads(0):
            emit_read(0, r)
        queue = G[4] + G[5] + G[6] + G[7] + GS
        with a.capture() as side:
            a(f'''
            s_lshl_b32 s60, s17, 9
            s_add_u32 s60, s60, {L_ST}
            v_lshl_add_u32 v240, v{TOK}, 2, s60
            v_lshl_add_u32 v241, v{GG}, 4, s60
            v_cmp_gt_u32 vcc, 32, v3
            ''')
            a.wvm(('p1', 'st'))
            for x in range(2):
                self.stats_finish(RAW + 4 * x)
            for x in range(2):
                a(f'ds_write_b32 v240, v{RAW + 4 * x + 2} offset:{128 * x}')
                a(f'ds_write_b32 v240, v{RAW + 4 * x + 3} offset:{128 * x + 64}')
                a(f'v_cndmask_b32 v{QC(x)}, v{RAW + 4 * x + 3}, 1.0, vcc')
                a(f'v_mul_f32 v{QC(x) + 1}, 0x{f2u(cexp):x}, v{RAW + 4 * x + 3}')
            for x in range(2):
                a(f'ds_read_b128 {vr(PR + 8 * x)}, v241 offset:{128 * x}')
                a(f'ds_read_b128 {vr(PR + 8 * x + 4)}, v241 offset:{128 * x + 64}')
                a(f'v_mov_b32 v{TQD[x] + 1}, v16')
                a(f'v_mov_b32 v{TQD[x] + 3}, v16')
            a(f'''
            s_lshl_b32 s34, s23, 10
            s_add_u32 s34, s34, s48
            s_add_u32 s34, s34, {ACTB}
            s_add_u32 s35, s34, {TILE}
            s_lshl_b32 s36, s23, 7
            s_add_u32 s36, s36, s48
            s_add_u32 s36, s36, {ACTB + 16384}
            s_add_u32 s37, s36, {TILE}
            s_mov_b32 s72, 0xffff
            s_mov_b32 s73, 0
            s_mov_b32 s74, 0xffff0000
            s_mov_b32 s75, 0
            s_or_b32 s28, s22, s17
            v_mov_b32 v242, s28
            v_cmp_eq_u32 s[62:63], 0, v242
            s_mul_i32 s32, s17, 2304
            s_add_u32 s32, s32, {L_EX}
            s_lshl_b32 s33, s17, 9
            s_add_u32 s33, s33, {L_VT}
            ''')
        with a.capture() as side2:
            a(f'v_mov_b32 v243, 0x{f2u(-1e30):x}')
            a(f'v_and_b32 v242, 1, v{TOK}')
            a('v_cmp_eq_u32 vcc, 0, v242')
            a('v_mov_b32 v240, 0xffff0000')
            a('v_mov_b32 v251, 0xffff')
            a('v_cndmask_b32 v240, v240, v251, vcc')
            for r in range(4):
                a(f'v_lshl_add_u32 v241, v{GG}, 2, {r}')
                a(f'v_sub_u32 v241, v{TOK}, v241')
                if r % 2 == 0:
                    a('v_cmp_le_i32 vcc, 0, v241')
                    a(f'v_cndmask_b32 v{PM + 2 + r // 2}, 0, v240, vcc')
                    a(f'v_cndmask_b32 v{PM + r // 2}, v240, 0, vcc')
                a('v_and_b32 v241, 0x80000001, v241')
                a('v_cmp_eq_u32 vcc, 0, v241')
                a(f'v_cndmask_b32 v{MC + r}, v243, 0, vcc')
                a('v_cmp_eq_u32 vcc, 0x80000000, v241')
                a(f'v_cndmask_b32 v{MP + r}, v243, 0, vcc')
                a(f'v_cndmask_b32 v{MPA + r}, v{MP + r}, v243, s[62:63]')
            a(f'''
            v_add_u32 v{xK}, s32, v1
            v_lshl_add_u32 v{xT}, v3, 2, s32
            v_lshl_add_u32 v{xV}, v{TOK}, 4, s33
            v_lshlrev_b32 v{cN}, 4, v{GG}
            v_add_u32 v{cN}, {L_CS}, v{cN}
            v_lshlrev_b32 v{cS}, 2, v{TOK}
            v_add_u32 v{cS}, {L_CS}, v{cS}
            v_and_b32 v{vTR}, 60, v3
            v_lshl_add_u32 v{vTR}, v{vTR}, 2, s33
            ''')
            for u in range(4):
                a(f'v_mov_b32 v{204 + 4 * u + 3}, 0')
        for s in range(18):
            if s in (2, 6, 11):
                LB = a.label('NOBAR')
                a('s_cmp_eq_u32 s19, 1')
                a(f's_cbranch_scc1 {LB}')
                self.bar(f'c{(2, 6, 11).index(s) + 1}')
                a(f'{LB}:')
            if 1 <= s <= 10:
                queue += G[s + 7]
            a.wvm(('p1', s))
            nxt = reads(s + 1) if s < 17 else []
            order = (2, 4, 3, 5, 6, 0, 1) if s == 17 else range(7)
            ms = []
            for t in order:
                w = vr(WR(s, t))
                for x in (1, 0):
                    xf = vr(AR(s, x))
                    c = '0' if s == 0 else vr(ACC(x, t))
                    if t in (4, 5):
                        ms.append(f'{M16} {vr(ACC(x, t))}, {xf}, {w}, {c}')
                    else:
                        ms.append(f'{M16} {vr(ACC(x, t))}, {w}, {xf}, {c}')
            for i, m in enumerate(ms):
                if i == 0:
                    a.wait_lg(rid[s][-1 if s == 17 else 3])
                if i == 6 and s < 17:
                    a.wait_lg(rid[s][-1])
                a(m)
                if i % 4 == 1 and queue:
                    self.run(queue.pop(0))
                elif nxt:
                    emit_read(s + 1, nxt.pop(0))
                if s >= 5 and side:
                    a.emit(side.pop(0))
                elif s >= 12 and side2:
                    a.emit(side2.pop(0))
                    if s >= 15 and side2:
                        a.emit(side2.pop(0))
        assert not queue and not side and not side2
        self.stamp('p1.mfma')
        CS = 84
        cs = {0: CS, 1: CS + 4, 2: CS + 8, 3: CS + 12, 6: CS + 16, 4: CS + 20, 5: CS + 21}
        self.bar('t1')
        a(f'ds_read_b128 {vr(cs[2])}, v{cN} offset:{64 * 2}')
        a(f'ds_read2_b32 {vr(cs[4], 2)}, v{cS} offset0:{16 * 4} offset1:{16 * 5}')
        for t in (3, 6, 0, 1):
            a(f'ds_read_b128 {vr(cs[t])}, v{cN} offset:{64 * t}')

        def cen_n(acc, c, x):
            for r in (0, 2):
                a(f'v_pk_fma_f32 {vr(acc + r, 2)}, {vr(c + r, 2)}, {NR(x)}, {vr(acc + r, 2)} op_sel_hi:[1,0,1]')

        def scl_n(acc, x):
            for r in (0, 2):
                a(f'v_pk_mul_f32 {vr(acc + r, 2)}, {vr(acc + r, 2)}, {NR(x)} op_sel:[0,1] op_sel_hi:[1,1]')

        def norm_s(acc, h, x):
            for r in (0, 2):
                a(f'v_pk_fma_f32 {vr(acc + r, 2)}, {vr(PR + 8 * x + r, 2)}, {vr(cs[4], 2)}, {vr(acc + r, 2)} '
                  f'op_sel:[0,{h},0] op_sel_hi:[1,{h},1]')
            for r in (0, 2):
                a(f'v_pk_mul_f32 {vr(acc + r, 2)}, {vr(acc + r, 2)}, {vr(PR + 8 * x + 4 + r, 2)}')

        def pack(dst, acc):
            a(f'v_cvt_pk_bf16_f32 v{dst}, v{acc}, v{acc + 1}')
            a(f'v_cvt_pk_bf16_f32 v{dst + 1}, v{acc + 2}, v{acc + 3}')

        def tail_tile(x):
            T = ACC(x, 6)
            cen_n(T, cs[6], x)
            a(f'v_pk_mul_f32 {vr(T, 2)}, {vr(T, 2)}, {vr(QC(x), 2)} op_sel_hi:[1,0]')
            a(f'v_pk_mul_f32 {vr(T + 2, 2)}, {vr(T + 2, 2)}, {NR(x)} op_sel:[0,1] op_sel_hi:[1,1]')
            a(f'v_cvt_pk_bf16_f32 v{TQD[x]}, v{T}, v{T + 1}')
            for d in (TQD[x] + 2, KO(0, x + 1) + 2, KO(1, x + 1) + 2):
                a(f'v_cvt_pk_bf16_f32 v{d}, v{T + 2}, v{T + 3}')

        def kv_head(x, h):
            cen_n(ACC(x, 2 + h), cs[2 + h], x)
            norm_s(ACC(x, 4 + h), h, x)
            scl_n(ACC(x, 2 + h), x)
            pack(VV(h) + 2 * x + 2, ACC(x, 4 + h))
            pack(KO(h, x + 1), ACC(x, 2 + h))

        a('s_waitcnt lgkmcnt(4)')
        kv_head(1, 0)
        a('s_waitcnt lgkmcnt(2)')
        kv_head(1, 1)
        tail_tile(1)
        LS = a.label('NOEX')
        a('s_cmp_eq_u32 s17, 3')
        a(f's_cbranch_scc1 {LS}')
        for h in range(2):
            a(f'ds_write_b64 v{xK}, {vr(KO(h, 2), 2)} offset:{2304 + 512 * h}')
            a(f'ds_write_b64 v{xK}, {vr(VV(h) + 4, 2)} offset:{2304 + 1024 + 512 * h}')
        a(f'ds_write_b32 v{xT}, v{KO(0, 2) + 2} offset:{2304 + 2048}')
        a(f'{LS}:')
        tail_tile(0)
        self.exec_mask(0x0000ffff00000000)
        a(f'ds_write_b128 v{xV}, {vr(TQD[1])} offset:512')
        a(f'ds_write_b128 v{xV}, {vr(TQD[0])} offset:256')
        self.exec_mask(-1)
        kv_head(0, 0)
        kv_head(0, 1)
        a('s_waitcnt lgkmcnt(0)')
        self.bar('t2')
        for h in range(2):
            a(f'ds_read_b64 {vr(KO(h, 0), 2)}, v{xK} offset:{512 * h}')
            a(f'ds_read_b32 v{KO(h, 0) + 2}, v{xT} offset:2048')
        for h in range(2):
            a(f'ds_read_b64 {vr(VV(h), 2)}, v{xK} offset:{1024 + 512 * h}')
            for y in range(3):
                a(f'ds_read_b64_tr_b16 {vr(VT[h] + 2 * y, 2)}, v{vTR} offset:{256 * y + 8 * h}')
        units = [(x, h) for x in (1, 0) for h in range(2)]
        SS = lambda u: (56, 64, 28, 36)[u]
        PP = lambda u: (48, 52, 20, 24)[u]
        OM = lambda u: 112 + 8 * u
        TM = lambda u: 72 + 2 * u

        def qk(u):
            x, h = units[u]
            a(f'{M16} {vr(SS(u))}, {vr(KO(h, x))}, {vr(QO(x, h))}, {vr(MPA if x == 0 else MP)}')
            a(f'{M16} {vr(SS(u) + 4)}, {vr(KO(h, x + 1))}, {vr(QO(x, h))}, {vr(MC)}')
        for u, (x, h) in enumerate(units):
            cen_n(ACC(x, h), cs[h], x)
            a(f'v_cndmask_b32 v{QO(x, h) + 2}, 0, v{TQD[x]}, s[{72 + 2 * h}:{73 + 2 * h}]')
            pack(QO(x, h), ACC(x, h))
            if u == 3:
                a('s_waitcnt lgkmcnt(8)')
            if u >= 1:
                qk(u - 1)

        def mx(u):
            S, m = SS(u), TM(u)
            a(f'v_max3_f32 v{S}, v{S}, v{S + 1}, v{S + 4}')
            a(f'v_max3_f32 v{S + 2}, v{S + 2}, v{S + 3}, v{S + 6}')
            a(f'v_max_f32 v{S}, v{S}, v{S + 5}')
            a(f'v_max_f32 v{S + 2}, v{S + 2}, v{S + 7}')
            a(f'v_max_f32 v{m}, v{S}, v{S + 2}')
            a(f'v_max_f32 v{m + 1}, v{S}, v{S + 2}')
        qk(3)
        for u in range(4):
            mx(u)
        for u in range(4):
            a(f'v_permlane32_swap_b32 v{TM(u)}, v{TM(u) + 1}')
        for u in range(4):
            a(f'v_max_f32 v{TM(u)}, v{TM(u)}, v{TM(u) + 1}')
        for u in range(4):
            a(f'v_mov_b32 v{TM(u) + 1}, v{TM(u)}')
        for u in range(4):
            a(f'v_permlane16_swap_b32 v{TM(u)}, v{TM(u) + 1}')
        for u in range(4):
            a(f'v_max_f32 v{TM(u)}, v{TM(u)}, v{TM(u) + 1}')
        for u in range(4):
            for i in (0, 2):
                a(f'v_sub_f32 v{SS(u) + i}, v{SS(u) + i}, v{TM(u)}')
        for u in range(4):
            for i in (0, 2):
                a(f'v_mul_f32 v{SS(u) + i}, v{SS(u) + i}, v{QC(units[u][0]) + 1}')
        for u in range(4):
            for i in (0, 2):
                a(f'v_exp_f32 v{SS(u) + i}, v{SS(u) + i}')
        a('s_waitcnt lgkmcnt(0)')

        def pv(u):
            x, h = units[u]
            a(f'{M16} {vr(OM(u) + 4)}, {vr(VT[h] + 2 * x)}, {vr(PP(u))}, 0')
            a(f'{M16} {vr(OM(u))}, {vr(VV(h) + 2 * x)}, {vr(PP(u))}, 0')
        for u in range(4):
            S = SS(u)
            for i in (0, 2):
                a(f'v_cvt_pk_bf16_f32 v{S + i}, v{S + i}, v{S + i}')
            for k in range(4):
                a(f'v_and_b32 v{PP(u) + k}, v{S + 2 * (k % 2)}, v{PM + k}')
            if u >= 1:
                pv(u - 1)
        a(f'v_rcp_f32 v{OM(0) + 6}, v{OM(0) + 6}')
        pv(3)

        def fin(u):
            x, h = units[u]
            O = OM(u)
            d = 84 + 8 * x
            if u < 3:
                a(f'v_rcp_f32 v{OM(u + 1) + 6}, v{OM(u + 1) + 6}')
            for i in (0, 2, 4):
                a(f'v_pk_mul_f32 {vr(O + i, 2)}, {vr(O + i, 2)}, {vr(O + 6, 2)} op_sel_hi:[1,0]')
            a(f'v_cvt_pk_bf16_f32 v{d + 2 * h}, v{O}, v{O + 1}')
            a(f'v_cvt_pk_bf16_f32 v{d + 2 * h + 1}, v{O + 2}, v{O + 3}')
            a(f'v_cvt_pk_bf16_f32 v{d + 4 + h}, v{O + 4}, v{O + 5}')
        for u in range(4):
            fin(u)

        def st(f):
            for x in range(2):
                a(f'buffer_store_dwordx4 {vr(84 + 8 * x)}, v0, {WS}, s{34 + x} offen{f}')
            self.exec_mask(0xffff)
            for x in range(2):
                a(f'buffer_store_dwordx2 {vr(88 + 8 * x, 2)}, v1, {WS}, s{36 + x} offen{f}')
            self.exec_mask(-1)
        self.scoped(st, 's68')
        LR = a.label('NORES')
        a(f'''
        s_cmp_lg_u32 s19, 0
        s_cbranch_scc1 {LR}
        s_lshl_b32 s28, s21, 11
        s_add_u32 s29, s88, {ACT}
        s_add_u32 s28, s28, s29
        s_lshl_b32 s30, s21, 8
        s_add_u32 s29, s29, s30
        s_add_u32 s29, s29, 16384
        v_mov_b32 v12, 0
        v_mov_b32 v13, 0
        buffer_load_dwordx4 v[4:7], v0, {WS}, s28 offen sc1
        buffer_load_dwordx4 v[8:11], v0, {WS}, s28 offen offset:1024 sc1
        s_mov_b32 exec_hi, 0
        buffer_load_dwordx2 v[12:13], v1, {WS}, s29 offen sc1
        s_mov_b64 exec, -1
        v_and_b32 v14, 31, v3
        v_lshlrev_b32 v14, 8, v14
        s_and_b32 s28, s16, 0xe0
        s_lshl_b32 s28, s28, 8
        s_add_u32 s28, s28, {FLAG + 132}
        buffer_load_dword v50, v14, {WS}, s28 offen sc1
        {LR}:
        ''')
        self.stamp('p1.att')

    def a_groups(self, key, src_off, stats=None):
        a = self.a
        a('s_add_u32 s48, s88, s24')
        a(f's_add_u32 s48, s48, {src_off}')
        self.tile_sgprs(48)
        with a.capture() as L:
            if stats is not None:
                raw, so = stats
                a(f'buffer_load_dwordx2 {vr(raw, 2)}, v1, {WS}, {so} offen sc1')
                a(f'buffer_load_dwordx2 {vr(raw + 2, 2)}, v1, {WS}, {so} offen offset:512 sc1')
                a.mark_vm((key, 'st'))
            for s in range(18):
                self.load_frag(s, 52 + 4 * s, 48)
                a.mark_vm((key, s))
        return groups(L)

    def proj(self, which):
        a = self.a
        ACCR, NS = 20, 30
        slot = lambda f: 132 + 4 * (f % NS)
        rd = lambda f: f'ds_read_b128 {vr(slot(f))}, v{49 if f >= 60 else 0} offset:{(f % 60) * 1024}'
        dst = self.B[2] if which == 2 else self.B[4]
        a(f'''
        v_min_u32 v14, {15 if which == 2 else 7}, v3
        v_lshlrev_b32 v14, 8, v14
        s_lshl_b32 s30, {'s22, 12' if which == 2 else 's20, 11'}
        s_add_u32 s30, s30, {FLAG}
        s_add_u32 s31, s26, {0 if which == 2 else 2}
        v_add_u32 v49, {60 * 1024}, v0
        s_add_u32 s34, s88, s24
        s_add_u32 s34, s34, {dst}
        s_lshl_b32 s35, s21, 8
        s_add_u32 s35, s35, s34
        s_add_u32 s35, s35, 16384
        s_lshl_b32 s36, s21, 11
        s_add_u32 s34, s34, s36
        s_lshl_b32 s36, s21, 7
        s_add_u32 s36, s36, s89
        s_add_u32 s36, s36, s25
        s_add_u32 s36, s36, {self.ST[1] if which == 2 else self.ST[2]}
        v_and_b32 v48, 0x78, v1
        ''')
        AG = self.a_groups(which, self.B[1] if which == 2 else self.B[3])
        self.signal('s31', sel='s68')
        if which == 2:
            a(f'''
            v_cmp_ne_u32 vcc, s84, v50
            s_cmp_eq_u64 vcc, 0
            s_cselect_b32 s28, {0 if self.no_local else 1}, 0
            s_cmp_eq_u32 s19, 0
            s_cselect_b32 s68, s28, s68
            ''')
        self.stamp('p1.flag' if which == 2 else 'p4.flag')
        self.bar(f'v{which}')
        rid = {}
        for f in range(10):
            a(rd(f)); rid[f] = a.lg
            a(f'v_lshlrev_b32 v{ACCR + 2 * f}, 16, v{4 + f}')
            a(f'v_and_b32 v{ACCR + 2 * f + 1}, 0xffff0000, v{4 + f}')

        def more():
            for f in range(10, 20):
                a(rd(f)); rid[f] = a.lg
        self.poll_early('s30', 's31', more)
        self.stamp(f'p{which}.polled')
        for i in range(11):
            self.run(AG.pop(0))
            if i < 10:
                a(rd(20 + i)); rid[20 + i] = a.lg
        nf = NS
        for s in range(18):
            a.wvm((which, s))
            a.wait_lg(rid[5 * s + 4])
            if s == 17:
                self.bar(f'm{which}')
            for t in range(5):
                a(f'{M16} {vr(ACCR + 4 * t)}, {vr(slot(5 * s + t))}, {vr(52 + 4 * s)}, {vr(ACCR + 4 * t)}')
                if t == 0:
                    if AG:
                        self.run(AG.pop(0))
                elif nf < 90:
                    a(rd(nf)); rid[nf] = a.lg; nf += 1
        self.stamp(f'p{which}.mfma')
        for i in range(10):
            a(f'v_cvt_pk_bf16_f32 v{4 + i}, v{ACCR + 2 * i}, v{ACCR + 2 * i + 1}')
        if which == 5:
            a('s_cmp_eq_u32 s19, 1')
            a('s_cbranch_scc1 L_FINAL')
        self.stats_emit(['v[4:7]', 'v[8:11]'], 'v[12:13]', 40, 44)

        def st(f):
            a(f'buffer_store_dwordx4 v[4:7], v0, {WS}, s34 offen{f}')
            a(f'buffer_store_dwordx4 v[8:11], v0, {WS}, s34 offen offset:1024{f}')
            a('s_mov_b32 exec_hi, 0')
            a(f'buffer_store_dwordx2 v[12:13], v1, {WS}, s35 offen{f}')
            self.exec_mask(-1)
            a('s_nop 2')
            self.stats_store(40, 44, 's36', 'v48', f)
        self.scoped(st, 's68')

    def p3(self):
        a = self.a
        QA, RAW, NM, RS, PR, KA, KC = 20, 40, 42, 43, 44, 124, 140
        Q1, Q2 = 132, 140
        TOK, GG = 168, 169
        NS = 19
        slot = lambda f: 176 + 4 * (f % NS)
        LNP, LJ = a.label('NOPROD'), a.label('JOIN')
        a(f'''
        v_min_u32 v14, 7, v3
        v_lshlrev_b32 v14, 8, v14
        s_lshl_b32 s32, s20, 11
        s_add_u32 s32, s32, {FLAG}
        s_add_u32 s33, s26, 1
        s_add_u32 s58, s89, s25
        s_add_u32 s58, s58, {self.ST[1]}
        v_and_b32 v{TOK}, 15, v3
        v_lshrrev_b32 v{GG}, 4, v3
        s_cmp_lg_u32 s21, 0
        s_cbranch_scc1 {LNP}
        ''')
        rdk = lambda f: f'ds_read_b128 {vr(slot(f))}, v170 offset:{f * 1024}'
        a(f'''
        v_add_u32 v170, {L_KVW}, v0
        v_lshlrev_b32 v171, 4, v{GG}
        v_lshlrev_b32 v172, 2, v{TOK}
        v_add_u32 v171, {L_CS + 12 * 64}, v171
        v_add_u32 v172, {L_CS + 12 * 64}, v172
        ds_read_b128 {vr(KC)}, v171
        ds_read_b128 {vr(KC + 4)}, v171 offset:128
        ds_read_b32 v{KC + 8}, v172 offset:64
        ds_read_b32 v{KC + 9}, v172 offset:128
        s_lshl_b32 s28, s17, 9
        s_add_u32 s28, s28, {L_ST}
        v_lshl_add_u32 v171, v{TOK}, 2, s28
        v_lshl_add_u32 v172, v{GG}, 4, s28
        s_lshr_b32 s28, s20, 2
        s_mul_i32 s28, s28, {GRP}
        s_mul_i32 s29, s19, {KVSTR}
        s_add_u32 s28, s28, s29
        s_add_u32 s28, s28, {KVIMG}
        s_and_b32 s29, s20, 3
        s_lshl_b32 s34, s29, 8
        s_add_u32 s34, s34, s28
        s_lshr_b32 s30, s17, 1
        s_lshl_b32 s31, s30, 2
        s_add_u32 s34, s34, s31
        s_and_b32 s31, s17, 1
        s_lshl_b32 s35, s31, 7
        s_add_u32 s34, s34, s35
        s_lshl_b32 s29, s29, 1
        s_add_u32 s29, s29, s30
        s_mul_i32 s29, s29, {STEP}
        s_add_u32 s28, s28, s29
        s_add_u32 s28, s28, 1024
        s_lshl_b32 s35, s31, 8
        s_add_u32 s35, s35, s28
        s_mul_i32 s36, s31, 608
        s_add_u32 s36, s36, s28
        s_add_u32 s36, s36, 1024
        v_mul_u32_u24 v173, 304, v{GG}
        v_lshl_add_u32 v173, v{TOK}, 4, v173
        v_lshlrev_b32 v174, 8, v{GG}
        v_lshl_add_u32 v174, v{TOK}, 4, v174
        s_lshl_b32 s28, s17, 2
        s_add_u32 s28, s28, {L_KM}
        v_mov_b32 v175, s28
        ''')
        AG = self.a_groups('3p', self.B[2], (RAW, 's58'))
        self.signal('s33', sel='s68')
        self.stamp('p2.flag')
        rid = {}
        for f in range(6):
            a(rdk(f)); rid[f] = a.lg
        self.poll('s32', 's33')
        self.stamp('p3.polled')
        for i in range(14):
            self.run(AG.pop(0))
            if i < 12:
                a(rdk(6 + i)); rid[6 + i] = a.lg
        with a.capture() as stat:
            self.stats_finish(RAW)
            a(f'''
            ds_write_b32 v171, v{NM}
            ds_write_b32 v171, v{RS} offset:64
            ds_read_b128 {vr(PR)}, v172
            ds_read_b128 {vr(PR + 4)}, v172 offset:64
            ''')
        nf = 18
        for s in range(18):
            a.wvm(('3p', s))
            a.wait_lg(rid[3 * s + 2])
            x = vr(52 + 4 * s)
            z = lambda i: '0' if s == 0 else vr(KA + 4 * i)
            w = lambda t: vr(slot(3 * s + t))
            ms = [f'{M16} {vr(KA)}, {w(0)}, {x}, {z(0)}', f'{M16} {vr(KA + 8)}, {x}, {w(1)}, {z(2)}',
                  f'{M16} {vr(KA + 4)}, {w(2)}, {x}, {z(1)}', f'{M16} {vr(KA + 12)}, {x}, {w(2)}, {z(3)}']
            for i, m in enumerate(ms):
                a(m)
                if i == 0:
                    if AG:
                        self.run(AG.pop(0))
                elif nf < 54:
                    a(rdk(nf)); rid[nf] = a.lg; nf += 1
                if stat:
                    a.emit(stat.pop(0))
        assert not stat and not AG
        a('s_waitcnt lgkmcnt(0)')
        for i in (0, 1, 2, 3, 8, 9, 10, 11, 4, 5, 12, 13, 14, 15):
            a(f'v_fmac_f32 v{KA + i}, v{KC + (i if i < 8 else 6 + i // 4)}, v{NM if i < 8 else PR + i % 4}')
        for i in (0, 1, 2, 3, 4, 5, 8, 9, 10, 11, 12, 13, 14, 15):
            a(f'v_mul_f32 v{KA + i}, v{KA + i}, v{RS if i < 8 else PR + 4 + i % 4}')
        for d, src in ((152, KA), (156, KA + 8), (160, KA + 12)):
            for k in range(4):
                a(f'v_cvt_pk_bf16_f32 v{d + k}, v{src + 2 * (k % 2)}, v{src + 2 * (k % 2) + 1}')
        a(f'v_cvt_pk_bf16_f32 v150, v{KA + 4}, v{KA + 5}')
        a('v_dot2_f32_bf16 v151, v152, v152, 0')
        a('v_dot2_f32_bf16 v151, v153, v153, v151')
        a('v_permlane16_swap_b32 v152, v154')
        a('v_permlane16_swap_b32 v153, v155')
        for d in (156, 160):
            a(f'v_permlane32_swap_b32 v{d}, v{d + 2}')
            a(f'v_permlane32_swap_b32 v{d + 1}, v{d + 3}')
        self.exec_mask(0x0000ffff0000ffff)
        a(f'buffer_store_dwordx4 v[152:155], v174, {WS}, s35 offen sc1')
        self.exec_mask(0xffffffff)
        a(f'buffer_store_dwordx4 v[156:159], v173, {WS}, s36 offen sc1')
        a('s_mov_b32 exec_lo, 0xffff')
        a(f'buffer_store_dword v150, v1, {WS}, s34 offen sc1')
        a('s_mov_b32 exec_lo, 0x000c000c')
        a(f'buffer_store_dwordx4 v[160:163], v173, {WS}, s36 offen offset:224 sc1')
        self.exec_mask(-1)
        a('v_dot2_f32_bf16 v151, v150, v150, v151')
        self.allred(151, 164)
        self.rowmax(151)
        a('ds_write_b32 v175, v151')
        a(f's_branch {LJ}')
        a(f'{LNP}:')
        AG = self.a_groups('3n', self.B[2], (RAW, 's58'))
        self.signal('s33', sel='s68')
        self.stamp('p2.flag', again=True)
        self.poll('s32', 's33')
        self.stamp('p3.polled', again=True)
        for g in AG:
            self.run(g)
        a.wvm(('3n', 'st'))
        self.stats_finish(RAW)
        a(f'{LJ}:')
        self.stamp('p3.join')
        self.bar('v3')
        rd = lambda f: f'ds_read_b128 {vr(slot(f))}, v{170 if f >= 60 else 0} offset:{(f % 60) * 1024}'
        rid = {}
        for nf in range(NS - 1):
            a(rd(nf)); rid[nf] = a.lg
        nf = NS - 1
        a(f'''
        v_add_u32 v170, {60 * 1024}, v0
        v_lshlrev_b32 v171, 4, v{GG}
        v_add_u32 v171, {L_CS + 7 * 64}, v171
        ''')
        for s in range(18):
            if s == 3:
                LS = a.label('KVSIG')
                a('s_cmp_lg_u32 s21, 0')
                a(f's_cbranch_scc1 {LS}')
                self.arrive(LS)
                a(f'''
                v_mov_b32 v164, {L_KM}
                ds_read_b128 v[164:167], v164
                s_add_u32 s28, s18, 1
                v_mov_b32 v254, s28
                s_lshl_b32 s28, s19, 13
                s_lshl_b32 s29, s20, 8
                s_add_u32 s28, s28, s29
                s_add_u32 s28, s28, {KVFLAG}
                s_waitcnt lgkmcnt(0)
                v_max3_f32 v255, v164, v165, v166
                v_max_f32 v255, v255, v167
                ''')
                a.lg -= 2
                self.exec_mask(0xffff)
                a(f'buffer_store_dwordx2 v[254:255], v1, {WS}, s28 offen sc1')
                a.vm -= 1
                self.exec_mask(-1)
                a(f'{LS}:')
            a.wvm(('3n', s))
            a.wait_lg(rid[5 * s + 4])
            for t in range(5):
                a(f'{M16} {vr(QA + 4 * t)}, {vr(slot(5 * s + t))}, {vr(52 + 4 * s)}, {"0" if s == 0 else vr(QA + 4 * t)}')
                if nf < 90:
                    a(rd(nf)); rid[nf] = a.lg; nf += 1
                elif nf < 95:
                    a(f'ds_read_b128 {vr(52 + 4 * (nf - 90))}, v171 offset:{64 * (nf - 90)}'); nf += 1
        qs = 18 ** -0.5 * math.log2(math.e)
        self.stamp('p3.done')
        a(f'v_mov_b32 v165, {L_KM + 32}')
        self.bar('k0')
        self.stamp('p4.polled')
        a('ds_read_b32 v165, v165')
        a(f'v_mul_f32 v{RS}, 0x{f2u(qs):x}, v{RS}')
        for c in range(2):
            for k in (1, 2, 4, 5, 6):
                a(f'v_mov_b32 v{Q2 + 8 * c + k}, 0')
        a('s_waitcnt lgkmcnt(0)')
        for i in range(20):
            a(f'v_fmac_f32 v{QA + i}, v{52 + i}, v{NM}')
        for i in range(16, 20):
            a(f'v_mul_f32 v{QA + i}, v{QA + i}, v{RS}')
        for c in range(2):
            b = Q2 + 8 * c
            for k in (0, 3, 7):
                a(f'v_cvt_pk_bf16_f32 v{b + k}, v{QA + 16 + 2 * c}, v{QA + 17 + 2 * c}')
        for i in range(16):
            a(f'v_mul_f32 v{QA + i}, v{QA + i}, v{RS}')
        for c in range(2):
            a(f'v_permlane32_swap_b32 v{Q2 + 8 * c + 4}, v{Q2 + 8 * c + 7}')
        for k in range(8):
            a(f'v_cvt_pk_bf16_f32 v{Q1 + k}, v{QA + 2 * k}, v{QA + 2 * k + 1}')
        for c in range(2):
            b = Q2 + 8 * c
            a(f'v_mov_b32 v{b + 7}, v{b + 4}')
            a(f'v_dot2_f32_bf16 v{156 + c}, v{b}, v{b}, 0')
        for c in range(2):
            a(f'v_permlane16_swap_b32 v{Q1 + 4 * c}, v{Q1 + 4 * c + 2}')
            a(f'v_permlane16_swap_b32 v{Q1 + 4 * c + 1}, v{Q1 + 4 * c + 3}')
        for k in range(4):
            for c in range(2):
                a(f'v_dot2_f32_bf16 v{156 + c}, v{Q1 + 4 * c + k}, v{Q1 + 4 * c + k}, v{156 + c}')

    def kv_poll_setup(self):
        self.a(f'''
        v_and_b32 v14, 31, v3
        v_lshlrev_b32 v14, 8, v14
        s_lshl_b32 s30, s19, 13
        s_add_u32 s30, s30, {KVFLAG}
        s_add_u32 s31, s18, 1
        ''')

    def p4(self):
        a = self.a
        S = (20, 36)
        SH = (52, 68)
        O = (84, 100)
        P = (116, 124)
        Q1 = (132, 136)
        Q2 = lambda c, t: 140 + 8 * c + 2 * (t % 4)
        K1 = lambda t: 168 + 4 * (t % 2)
        V0 = lambda t: 176 + 8 * (t % 2)
        V1 = lambda t: 180 + 8 * (t % 2)
        K2 = lambda t: 192 + 2 * ((t // 4) % 2)
        vK, vK2, vV = 160, 161, 162
        a(f'''
        v_mov_b32 v{vK}, v0
        v_mov_b32 v{vK2}, v1
        v_and_b32 v163, 31, v3
        v_lshrrev_b32 v164, 5, v3
        v_mul_u32_u24 v164, 304, v164
        v_lshl_add_u32 v{vV}, v163, 4, v164
        v_mov_b32 v164, 0x400000
        v_cmp_lt_u32 vcc, 18, v163
        v_cndmask_b32 v{vV}, v{vV}, v164, vcc
        s_add_u32 s32, s88, s24
        s_add_u32 s32, s32, {self.B[3]}
        s_lshl_b32 s33, s21, 8
        s_add_u32 s33, s33, s32
        s_add_u32 s33, s33, 16384
        s_lshl_b32 s34, s21, 11
        s_add_u32 s32, s32, s34
        ''')
        for c in range(2):
            self.allred(156 + c, 158, only32=True)
        for i in range(32):
            a(f'v_mov_b32 v{O[0] + i}, 0')
        for i in range(4):
            a(f'v_mov_b32 v{P[1] + 4 + i}, 0')
            a(f'v_mov_b32 v{V1(1) + i}, 0')
        for c in range(2):
            a(f'v_mul_f32 v{156 + c}, v{156 + c}, v165')
            a(f'v_sqrt_f32 v{156 + c}, v{156 + c}')
        thr = -1.0 if self.force_fallback else BTHR
        a(f'v_mov_b32 v158, 0x{f2u(thr):x}')
        for c in range(2):
            a(f'v_mul_f32 v{156 + c}, 0x{f2u(1.002):x}, v{156 + c}')
        a('v_cmp_nle_f32 s[28:29], v156, v158')
        a('v_cmp_nle_f32 vcc, v157, v158')
        a('s_mov_b32 s34, 1')
        a('s_or_b64 vcc, vcc, s[28:29]')
        LFB, LGO = a.label('FALLBACK'), a.label('GO')
        a(f's_cbranch_vccnz {LFB}')
        for c in range(2):
            for i in range(16):
                a(f'v_sub_f32 v{SH[c] + i}, 0, v{156 + c}')
        self.bar('k1')
        a(f'{LGO}:')
        koff = lambda t: (t // 8) * GRP + 1024 + (t % 8) * STEP
        k2off = lambda t: (t // 8) * GRP + ((t % 8) // 4) * 512
        a(f'ds_read_b64 {vr(K2(0), 2)}, v{vK2} offset:{k2off(0)}')
        a(f'ds_read_b128 {vr(K1(0))}, v{vK} offset:{koff(0)}')
        a(f'ds_read_b128 {vr(K1(1))}, v{vK} offset:{koff(1)}')
        a(f'ds_read_b128 {vr(V0(0))}, v{vV} offset:{koff(0) + 1024}')
        a(f'ds_read_b128 {vr(V1(0))}, v{vV} offset:{koff(0) + 1024 + 608}')
        a('s_waitcnt lgkmcnt(3)')
        a(f'{M32H} {vr(S[0], 16)}, {vr(K2(0), 2)}, {vr(Q2(0, 0), 2)}, {vr(SH[0], 16)}')
        a(f'{M32} {vr(S[0], 16)}, {vr(K1(0))}, {vr(Q1[0])}, {vr(S[0], 16)}')
        self.stamp('p4.start')
        LA, LD = a.label('ATT'), a.label('ATTD')
        a('s_mov_b32 s35, 0')
        a('s_waitcnt lgkmcnt(0)')
        a('s_nop 8')
        a('.p2align 6')
        a(f'{LA}:')
        e = lambda c, i: f'v_exp_f32 v{S[c] + i}, v{S[c] + i}'
        cv = lambda c, i: f'v_cvt_pk_bf16_f32 v{P[c] + i}, v{S[c] + 2 * i}, v{S[c] + 2 * i + 1}'
        for t in range(8):
            for c in range(2):
                n = 1 - c
                tn = t + c
                tp = t - 1 + c
                g = [[], [], [], []]
                if c == 0:
                    g[1].append(f'ds_read_b128 {vr(K1(t))}, v{vK} offset:{koff(t + 2)}')
                    g[2].append(f'ds_read_b128 {vr(V1(t + 1))}, v{vV} offset:{koff(t + 1) + 1024 + 608}')
                    g[3].append(f'ds_read_b128 {vr(V0(t + 1))}, v{vV} offset:{koff(t + 1) + 1024}')
                else:
                    if t in (1, 5):
                        g[1].append(f'ds_read_b64 {vr(K2(t + 3), 2)}, v{vK2} offset:{k2off(t + 3)}')
                    g[3].append('s_waitcnt lgkmcnt(0)')
                    if t == 7:
                        g[1].append('s_add_u32 s35, s35, 1')
                        g[2].append('s_cmp_lg_u32 s35, s34')
                a(f'{M32H} {vr(S[n], 16)}, {vr(K2(tn), 2)}, {vr(Q2(n, tn), 2)}, {vr(SH[n], 16)}')
                for x in g[0] + [e(c, 0), e(c, 1), e(c, 2), cv(c, 0), e(c, 3)]: a(x)
                a(f'{M32} {vr(S[n], 16)}, {vr(K1(tn))}, {vr(Q1[n])}, {vr(S[n], 16)}')
                for x in g[1] + [e(c, 4), cv(c, 1), e(c, 5), e(c, 6), cv(c, 2), e(c, 7)]: a(x)
                a(f'{M32} {vr(O[n], 16)}, {vr(V1(tp))}, {vr(P[n] + 4)}, {vr(O[n], 16)}')
                for x in g[2] + [e(c, 8), cv(c, 3), e(c, 9), e(c, 10), cv(c, 4), e(c, 11)]: a(x)
                a(f'{M32} {vr(O[c], 16)}, {vr(V0(t))}, {vr(P[c])}, {vr(O[c], 16)}')
                for x in g[3] + [e(c, 12), cv(c, 5), e(c, 13), e(c, 14), e(c, 15), cv(c, 6), cv(c, 7)]: a(x)
        a(f'''
        v_add_u32 v{vK}, {GRP}, v{vK}
        v_add_u32 v{vK2}, {GRP}, v{vK2}
        v_add_u32 v{vV}, {GRP}, v{vV}
        s_cbranch_scc1 {LA}
        s_cmp_eq_u32 s35, 8
        s_cbranch_scc1 {LD}
        s_cmp_eq_u32 s35, 1
        s_cselect_b32 s34, 5, 8
        ''')
        self.bar('k2')
        self.bars['C'].append('k3')
        a(f's_branch {LA}')
        a(f'{LFB}:')
        self.bar('k1', log=False)
        self.bar('k2', log=False)
        a('s_mov_b32 s34, 5')
        a(f'v_mov_b32 v156, 0x{f2u(-3.0e38):x}')
        a(f'v_mov_b32 v157, 0x{f2u(-3.0e38):x}')
        a('s_mov_b32 s35, 0')
        LM = a.label('MAXL')
        a(f'{LM}:')
        for t in range(8):
            if t % 4 == 0:
                a(f'ds_read_b64 {vr(K2(t), 2)}, v{vK2} offset:{k2off(t)}')
            a(f'ds_read_b128 {vr(K1(t))}, v{vK} offset:{koff(t)}')
            a('s_waitcnt lgkmcnt(0)')
            for c in range(2):
                a(f'{M32H} {vr(S[c], 16)}, {vr(K2(t), 2)}, {vr(Q2(c, t), 2)}, 0')
                a(f'{M32} {vr(S[c], 16)}, {vr(K1(t))}, {vr(Q1[c])}, {vr(S[c], 16)}')
            for c in range(2):
                for i in range(8):
                    a(f'v_max3_f32 v{156 + c}, v{156 + c}, v{S[c] + 2 * i}, v{S[c] + 2 * i + 1}')
        a(f'''
        v_add_u32 v{vK}, {GRP}, v{vK}
        v_add_u32 v{vK2}, {GRP}, v{vK2}
        s_add_u32 s35, s35, 1
        s_cmp_lt_u32 s35, 8
        s_cbranch_scc1 {LM}
        v_mov_b32 v{vK}, v0
        v_mov_b32 v{vK2}, v1
        ''')
        for c in range(2):
            self.allred(156 + c, 158, op='v_max_f32', only32=True)
        for c in range(2):
            for i in range(16):
                a(f'v_sub_f32 v{SH[c] + i}, 0, v{156 + c}')
        a(f's_branch {LGO}')
        a(f'{LD}:')
        a(f'{M32} {vr(O[1], 16)}, {vr(V1(7))}, {vr(P[1] + 4)}, {vr(O[1], 16)}')
        self.stamp('p4.loop')
        for c in range(2):
            o = O[c]
            a(f'v_mov_b32 v{o + 11}, v{o + 10}')
            a(f'v_permlane32_swap_b32 v{o + 10}, v{o + 11}')
            a(f'v_rcp_f32 v{o + 10}, v{o + 10}')
            for i in range(10):
                a(f'v_mul_f32 v{o + i}, v{o + i}, v{o + 10}')
            for k in range(4):
                a(f'v_cvt_pk_bf16_f32 v{116 + 4 * c + k}, v{o + 2 * k}, v{o + 2 * k + 1}')
            a(f'v_cvt_pk_bf16_f32 v{124 + c}, v{o + 8}, v{o + 9}')
        a('v_permlane16_swap_b32 v124, v125')

        def st(f):
            for c in range(2):
                a(f'buffer_store_dwordx4 {vr(116 + 4 * c)}, v0, {WS}, s32 offen offset:{1024 * c}{f}')
            a('s_mov_b32 exec_hi, 0')
            a(f'buffer_store_dwordx2 v[124:125], v1, {WS}, s33 offen{f}')
            self.exec_mask(-1)
        self.scoped(st, 's68')

    def x0_load(self):
        a = self.a
        LX = a.label('NOXT')
        a(f'''
        s_mov_b32 s64, s48
        s_mov_b32 s65, s49
        s_mov_b32 s66, {2048 * 1152}
        v_mul_u32_u24 v25, 1152, v20
        v_lshl_add_u32 v26, v21, 4, v25
        s_lshr_b32 s35, s16, 1
        s_mul_i32 s36, s35, {TILE}
        s_and_b32 s34, s16, 1
        s_lshl_b32 s33, s34, 2
        s_add_u32 s33, s33, s17
        s_mul_i32 s37, s33, 144
        s_add_u32 s37, s37, s36
        buffer_load_dwordx4 v[140:143], v26, s[64:67], s37 offen
        buffer_load_dwordx4 v[144:147], v26, s[64:67], s37 offen offset:64
        v_mov_b32 v148, 0
        v_mov_b32 v149, 0
        v_mov_b32 v150, 0
        v_mov_b32 v151, 0
        s_cmp_lg_u32 s17, 0
        s_cbranch_scc1 {LX}
        v_mad_u32_u24 v27, v21, 64, v25
        v_mad_u32_u24 v27, v21, 64, v27
        v_lshl_add_u32 v27, v21, 4, v27
        buffer_load_dwordx4 v[148:151], v27, s[64:67], s37 offen offset:128
        {LX}:
        ''')

    def x0_store(self):
        a = self.a
        LE, LL, LX4 = a.label('XE'), a.label('XST'), a.label('NOX4')
        self.stats_emit([vr(140 + 4 * i) for i in range(3)], None, 52, 56)
        a(f'''
        s_add_u32 s37, s36, {ACT}
        s_lshl_b32 s38, s35, 10
        s_add_u32 s38, s38, {STATS}
        v_lshlrev_b32 v60, 3, v20
        s_and_b32 s39, s35, 7
        s_lshl_b32 s31, s33, 11
        s_lshl_b32 s32, s33, 7
        s_lshl_b32 s34, s34, 10
        s_add_u32 s34, s34, 16384
        v_cndmask_b32 v52, v52, v53, s[42:43]
        v_cndmask_b32 v54, v54, v55, s[42:43]
        v_cndmask_b32 v57, v52, v54, s[44:45]
        {LL}:
        s_add_u32 s28, s37, s31
        s_add_u32 s29, s37, s34
        s_add_u32 s38, s38, s32
        buffer_store_dwordx4 v[140:143], v0, {WS}, s28 offen sc1
        buffer_store_dwordx4 v[144:147], v0, {WS}, s28 offen offset:1024 sc1
        s_cmp_lg_u32 s17, 0
        s_cbranch_scc1 {LX4}
        buffer_store_dwordx2 v[148:149], v2, {WS}, s29 offen sc1
        buffer_store_dwordx2 v[150:151], v2, {WS}, s29 offen offset:128 sc1
        {LX4}:
        s_mov_b64 exec, s[40:41]
        buffer_store_dwordx2 v[56:57], v60, {WS}, s38 offen sc1
        s_mov_b64 exec, -1
        s_cmp_lg_u32 s39, 7
        s_cbranch_scc1 {LE}
        s_mov_b32 s39, 0
        s_add_u32 s37, s22, 1
        s_and_b32 s37, s37, 15
        s_mul_i32 s37, s37, {HSLOT}
        s_add_u32 s37, s37, {HALO}
        s_add_u32 s38, s37, {TILE}
        s_branch {LL}
        {LE}:
        ''')

    def pcs(self, n):
        a = self.a
        a('s_lshl_b32 s78, s73, 6')
        a('s_add_u32 s77, s77, s78')
        a('v_lshlrev_b32 v30, 2, v3')
        for t in range(n):
            a(f'{M16} {vr(64 + 4 * t)}, {ONES}, {vr(104 + 4 * t)}, 0')
        self.exec_mask(0xffff)
        for t in range(n):
            a(f'buffer_store_dword v{64 + 4 * t}, v30, {WS}, s77 offen sc1')
            a('s_add_u32 s77, s77, 1152')
        self.exec_mask(-1)

    def mat_load(self):
        a = self.a
        a(f'''
        s_cmp_ge_u32 s39, 144
        s_cselect_b32 s71, 1, 0
        s_cmp_ge_u32 s39, 288
        s_cselect_b32 s71, 2, s71
        s_mul_i32 s72, s71, 144
        s_sub_u32 s72, s39, s72
        s_lshr_b32 s73, s72, 3
        s_and_b32 s72, s72, 7
        s_cmp_eq_u32 s71, 0
        s_cselect_b32 s8, s52, s62
        s_cselect_b32 s9, s53, s63
        s_cmp_eq_u32 s71, 1
        s_cselect_b32 s8, s56, s8
        s_cselect_b32 s9, s57, s9
        s_mov_b32 s10, {576 * 1152}
        s_mul_i32 s74, s73, 36
        s_cmp_eq_u32 s71, 0
        s_cselect_b32 s75, 18, 8
        s_cselect_b32 s76, 4, 18
        s_cselect_b32 s77, 8, 4
        s_lshr_b32 s78, s73, 1
        s_mul_i32 s78, s78, 72
        s_and_b32 s79, s73, 1
        s_lshl_b32 s80, s79, 5
        s_add_u32 s78, s78, s80
        s_cmp_eq_u32 s71, 1
        s_cselect_b32 s74, s78, s74
        s_cselect_b32 s75, 4, s75
        s_cselect_b32 s76, 8, s76
        s_cselect_b32 s77, 16, s77
        s_cselect_b32 s78, 64, 16
        s_cselect_b32 s80, 4, 36
        s_cselect_b32 s81, 2, 18
        s_mul_i32 s79, s79, 288
        s_add_u32 s78, s78, s79
        s_cmp_ge_u32 s73, 16
        s_cselect_b32 s74, s78, s74
        s_cselect_b32 s75, s80, s75
        s_cselect_b32 s76, 72, s76
        s_cselect_b32 s77, 144, s77
        s_cselect_b32 s81, s81, 2
        s_mul_i32 s74, s74, 1152
        s_mul_i32 s75, s75, 1152
        s_mul_i32 s76, s76, 1152
        s_mul_i32 s77, s77, 1152
        s_lshl_b32 s78, s72, 7
        s_add_u32 s74, s74, s78
        v_lshrrev_b32 v28, 1, v21
        v_mul_u32_u24 v28, s81, v28
        v_and_b32 v29, 1, v21
        v_add_u32 v28, v28, v29
        v_mul_u32_u24 v28, 1152, v28
        v_lshl_add_u32 v28, v20, 4, v28
        s_mul_i32 s79, s17, {26 * 1024}
        s_add_u32 s79, s79, {118 * 1024}
        ''')
        for i in range(8):
            a('s_mov_b32 s78, s74')
            if i & 1: a('s_add_u32 s78, s78, s75')
            if i & 2: a('s_add_u32 s78, s78, s76')
            if i & 4: a('s_add_u32 s78, s78, s77')
            a(f's_add_u32 m0, s79, {i * 1024}')
            a('buffer_load_dwordx4 v28, s[8:11], s78 offen lds')
        a(f'''
        v_lshrrev_b32 v30, 2, v20
        v_lshlrev_b32 v30, 4, v30
        v_and_b32 v31, 3, v20
        v_lshl_add_u32 v30, v31, 1, v30
        v_lshlrev_b32 v31, 1, v20
        v_add_u32 v132, 128, v31
        v_bfe_u32 v133, v20, 1, 1
        v_bfe_u32 v134, v20, 2, 1
        v_lshl_add_u32 v133, v133, 1, v134
        v_mul_u32_u24 v133, 36, v133
        v_and_b32 v134, 1, v20
        v_lshl_add_u32 v133, v134, 1, v133
        v_add_u32 v133, 32, v133
        s_cmp_eq_u32 s71, 1
        s_cselect_b64 vcc, -1, 0
        s_cselect_b32 s74, 36, 8
        s_cselect_b32 s75, 72, 64
        s_add_u32 s76, s74, s75
        v_cndmask_b32 v30, v30, v31, vcc
        v_cndmask_b32 v132, v132, v133, vcc
        s_lshl_b32 s78, s72, 4
        s_add_u32 s78, s78, s79
        v_lshlrev_b32 v24, 11, v21
        v_add_u32 v24, s78, v24
        v_add_u32 v30, v30, v24
        v_add_u32 v132, v132, v24
        v_add_u32 v133, s74, v30
        v_add_u32 v134, s75, v30
        v_add_u32 v135, s76, v30
        s_mul_i32 s77, s72, 18
        s_add_u32 s77, s77, s73
        s_mul_i32 s77, s77, 5120
        s_mul_i32 s78, s71, {WSSTR}
        s_add_u32 s77, s77, s78
        s_add_u32 s77, s77, {WS_P}
        s_add_u32 s78, s77, 4096
        v_cmp_le_u32 vcc, 8, v20
        ''')

    def mat_store(self, done):
        a = self.a
        addrs = [30, 133, 134, 135, 132]
        for t in range(5):
            self.gather_lds(addrs[t], 0, 64 + 8 * t)
        a('s_waitcnt lgkmcnt(0)')
        for t in range(5):
            self.gather_pack(104 + 4 * t, 64 + 8 * t)
            if t < 4:
                a(f'buffer_store_dwordx4 {vr(104 + 4 * t)}, v0, {WS}, s77 offen offset:{t * 1024} sc1')
            else:
                for k in range(4):
                    a(f'v_cndmask_b32 v{120 + k}, v{120 + k}, 0, vcc')
                a(f'buffer_store_dwordx4 v[120:123], v0, {WS}, s78 offen sc1')

        a(f'''
        s_cmp_lg_u32 s71, 1
        s_cbranch_scc1 {done}
        s_mul_i32 s77, s72, {5 * 1152}
        s_add_u32 s77, s77, {PCS}
        ''')
        self.pcs(5)

    def kv_load(self):
        a = self.a
        a(f'''
        s_lshr_b32 s74, s73, 1
        s_mul_i32 s74, s74, 72
        s_and_b32 s75, s73, 1
        s_lshl_b32 s76, s75, 5
        s_add_u32 s74, s74, s76
        s_mul_i32 s75, s75, 288
        s_add_u32 s75, s75, 64
        s_cmp_lt_u32 s73, 16
        s_cselect_b32 s74, s74, s75
        s_cselect_b32 s76, 8, 72
        s_mul_i32 s76, s76, 36
        s_mul_i32 s74, s74, 36
        v_mul_u32_u24 v28, s76, v21
        v_and_b32 v29, 1, v20
        v_lshl_add_u32 v29, v29, 1, v28
        v_lshl_add_u32 v28, v20, 1, v28
        s_mov_b32 s8, s58
        s_mov_b32 s9, s59
        s_mov_b32 s10, {576 * 36}
        ''')
        for jj in range(8):
            a(f'v_mov_b32 v{80 + jj}, 0')
        for jj in range(8):
            a(f'buffer_load_ushort v{64 + jj}, v28, s[8:11], s74 offen offset:{36 * jj}')
        self.exec_mask(0x0003000300030003)
        for jj in range(8):
            a(f'buffer_load_ushort v{80 + jj}, v29, s[8:11], s74 offen offset:{36 * jj + 32}')
        a('s_mov_b32 s8, s60')
        a('s_mov_b32 s9, s61')
        self.exec_mask(0x000c000c000c000c)
        for jj in range(8):
            a(f'buffer_load_ushort v{80 + jj}, v29, s[8:11], s74 offen offset:{36 * jj + 32}')
        self.exec_mask(-1)
        for jj in range(8):
            a(f'buffer_load_ushort v{72 + jj}, v28, s[8:11], s74 offen offset:{36 * jj}')

    def kv_store(self):
        a = self.a
        a('s_mul_i32 s77, s73, 3072')
        a(f's_add_u32 s77, s77, {WKV_P}')
        for t in range(3):
            self.gather_pack(104 + 4 * t, 64 + 8 * t)
            a(f'buffer_store_dwordx4 {vr(104 + 4 * t)}, v0, {WS}, s77 offen offset:{t * 1024} sc1')
        a(f's_mov_b32 s77, {PCS + 40 * 1152}')
        self.pcs(3)

    def halo_setup(self):
        a = self.a
        a(f'''
        s_lshl_b32 s28, s19, 4
        s_add_u32 s28, s28, s22
        s_mul_i32 s47, s28, {HSLOT}
        s_add_u32 s47, s47, {HALO}
        v_lshlrev_b32 v24, 8, v3
        v_add_u32 v24, {L_HALO}, v24
        ds_write_b128 v24, {ONES}
        v_lshlrev_b32 v24, 7, v20
        v_add_u32 v24, {L_HALO + 16384}, v24
        ds_write_b128 v24, {ONES}
        s_cmp_ge_u32 s17, 2
        s_cselect_b32 s28, 6, 2
        s_cselect_b32 s29, -2, 4
        s_cselect_b32 s86, 0, s17
        s_add_u32 s86, s28, s86
        s_add_u32 s87, s29, s17
        ''')

    def halo_regs(self):
        self.a(f'''
        s_lshl_b32 s28, s86, 10
        s_lshl_b32 s29, s87, 10
        v_add_u32 v56, s28, v0
        v_add_u32 v57, s29, v0
        v_add_u32 v58, {L_HALO}, v0
        v_add_u32 v59, {L_HALO + 16384}, v2
        s_add_u32 s28, s47, {TILE}
        buffer_load_dwordx2 v[52:53], v1, {WS}, s28 offen sc1
        buffer_load_dwordx2 v[54:55], v1, {WS}, s28 offen offset:512 sc1
        ''')

    def halo_steps(self, lo, hi):
        a = self.a
        rid = {}

        def rd(hs):
            o = (7 * (hs % 9)) * 1024
            rb = 112 + 12 * (hs % 6)
            if hs == 9:
                a(f'v_add_u32 v56, {63 * 1024}, v56')
                a(f'v_add_u32 v57, {63 * 1024}, v57')
            if hs < 16:
                a(f'ds_read_b128 {vr(rb)}, v58 offset:{hs * 1024}')
            else:
                a(f'ds_read_b64 {vr(rb, 2)}, v59 offset:{(hs - 16) * 1024}')
                a(f'ds_read_b64 {vr(rb + 2, 2)}, v59 offset:{(hs - 16) * 1024 + 128}')
            a(f'ds_read_b128 {vr(rb + 4)}, v56 offset:{o}')
            a(f'ds_read_b128 {vr(rb + 8)}, v57 offset:{o}')
            rid[hs] = a.lg
        for hs in range(lo, lo + 4):
            rd(hs)
        for hs in range(lo, hi):
            if hs + 4 < hi:
                rd(hs + 4)
            a.wait_lg(rid[hs])
            rb = 112 + 12 * (hs % 6)
            a(f'{M16} v[184:187], {vr(rb + 4)}, {vr(rb)}, {"0" if hs == 0 else "v[184:187]"}')
            a(f'{M16} v[188:191], {vr(rb)}, {vr(rb + 8)}, {"0" if hs == 0 else "v[188:191]"}')

    def halo_stats(self):
        a = self.a
        self.stats_finish(52)
        a(f'''
        s_lshl_b32 s28, s17, 9
        s_add_u32 s28, s28, {L_ST + 256}
        v_lshl_add_u32 v60, v20, 2, s28
        v_lshl_add_u32 v61, v21, 4, s28
        ds_write_b32 v60, v54
        ds_write_b32 v60, v55 offset:64
        s_lshl_b32 s28, s86, 6
        s_add_u32 s28, s28, {L_CS}
        s_lshl_b32 s29, s87, 6
        s_add_u32 s29, s29, {L_CS}
        v_lshl_add_u32 v62, v21, 4, s28
        v_lshl_add_u32 v63, v20, 2, s29
        ''')

    def halo_finish(self):
        a = self.a
        self.exec_mask(0x0001000100010001)
        a('ds_write_b128 v62, v[184:187]')
        self.exec_mask(0xffff)
        a('ds_write_b32 v63, v188')
        self.exec_mask(-1)
        LH, LE = a.label('HT'), a.label('HE')
        a(f'''
        ds_read_b128 v[168:171], v62
        ds_read_b32 v172, v63
        ds_read_b128 v[160:163], v61
        ds_read_b128 v[164:167], v61 offset:64
        v_mov_b32 v177, v16
        v_mov_b32 v179, v16
        s_lshl_b32 s28, s17, 9
        s_add_u32 s28, s28, {L_EX}
        v_add_u32 v173, s28, v1
        v_lshlrev_b32 v174, 2, v3
        v_add_u32 v174, {L_EX + 2048}, v174
        v_lshlrev_b32 v175, 4, v20
        v_add_u32 v175, {L_VT}, v175
        s_waitcnt lgkmcnt(0)
        ''')
        for r in range(4):
            a(f'v_fmac_f32 v{184 + r}, v{168 + r}, v54')
            a(f'v_fmac_f32 v{188 + r}, v172, v{160 + r}')
        for r in range(4):
            a(f'v_mul_f32 v{184 + r}, v{184 + r}, v55')
            a(f'v_mul_f32 v{188 + r}, v{188 + r}, v{164 + r}')
        a(f'''
        s_cmp_ge_u32 s17, 2
        s_cbranch_scc1 {LH}
        v_cvt_pk_bf16_f32 v180, v184, v185
        v_cvt_pk_bf16_f32 v181, v186, v187
        v_cvt_pk_bf16_f32 v182, v188, v189
        v_cvt_pk_bf16_f32 v183, v190, v191
        ds_write_b64 v173, v[180:181]
        ds_write_b64 v173, v[182:183] offset:1024
        s_branch {LE}
        {LH}:
        v_cvt_pk_bf16_f32 v176, v184, v185
        v_cvt_pk_bf16_f32 v178, v186, v187
        ds_write_b32 v174, v178
        ''')
        self.exec_mask(0x0000ffff00000000)
        a('ds_write_b128 v175, v[176:179]')
        self.exec_mask(-1)
        a(f'{LE}:')

    def touch_setup(self):
        a = self.a
        a(f'''
        v_and_b32 v34, 7, v3
        v_lshlrev_b32 v34, 7, v34
        s_lshl_b32 s28, s23, 10
        v_add_u32 v34, s28, v34
        s_lshl_b32 s28, s23, 7
        s_add_u32 s28, s28, 16384
        v_mov_b32 v35, s28
        v_cmp_gt_u32 vcc, 8, v20
        v_cndmask_b32 v32, v35, v34, vcc
        v_and_b32 v34, 1, v21
        s_lshl_b32 s28, s22, 3
        s_lshl_b32 s29, s17, 1
        s_add_u32 s28, s28, s29
        v_add_u32 v34, s28, v34
        v_mul_u32_u24 v34, {TILE}, v34
        v_add_u32 v32, v32, v34
        v_lshlrev_b32 v34, 7, v20
        s_lshl_b32 s28, s21, 11
        v_add_u32 v34, s28, v34
        v_and_b32 v35, 1, v3
        v_lshlrev_b32 v35, 7, v35
        s_lshl_b32 s28, s21, 8
        s_add_u32 s28, s28, 16384
        v_add_u32 v35, s28, v35
        v_cmp_gt_u32 vcc, 16, v3
        v_cndmask_b32 v33, v35, v34, vcc
        s_lshl_b32 s28, s20, 2
        s_add_u32 s28, s28, s17
        s_lshl_b32 s89, s28, 10
        s_mul_i32 s28, s28, {TILE}
        v_add_u32 v33, s28, v33
        s_lshl_b32 s28, s21, 7
        s_add_u32 s89, s89, s28
        ''')

    def touch(self, reg, buf, stats=None):
        a = self.a
        a(f's_add_u32 s28, s24, {self.B[buf]}')
        a(f'buffer_load_dword v36, v{reg}, {WS}, s28 offen')
        if stats is not None:
            a('s_add_u32 s28, s89, s25')
            a(f's_add_u32 s28, s28, {self.ST[stats]}')
            a(f'buffer_load_dword v37, v22, {WS}, s28 offen')

    def halo_dma(self, soff, tail):
        a = self.a
        a(f's_add_u32 s97, s47, {soff}')
        a(f's_add_u32 m0, {soff}, {L_HALO}')
        self.exec_mask(0xfefefefefefefefe if tail else 0xfffefffefffefffe)
        a(f'buffer_load_dwordx4 v0, {WS}, s97 offen sc1 lds')
        self.exec_mask(-1)

    def helper(self):
        a = self.a
        self.who = 'H'
        a('L_HELPER:')
        self.x0_load()
        a(f'''
        s_getpc_b64 s[8:9]
        L_PC:
        s_sub_u32 s8, s8, L_PC-{NAME}_kernel
        s_subb_u32 s9, s9, 0
        s_mov_b32 s10, L_CODE_END-{NAME}_kernel
        s_lshl_b32 s37, s2, 8
        s_and_b32 s37, s37, 0xf800
        v_lshl_add_u32 v31, v3, 3, s37
        s_lshl_b32 s37, s17, 9
        buffer_load_dwordx2 v[250:251], v31, s[8:11], s37 offen
        s_lshr_b32 s30, s23, 1
        s_lshl_b32 s30, s30, 5
        v_add_u32 v14, s30, v3
        s_lshl_b32 s30, s22, 4
        s_sub_u32 s30, s30, 2
        s_and_b32 s30, s30, 255
        v_and_b32 v15, 1, v3
        v_add_u32 v15, s30, v15
        v_cmp_gt_u32 vcc, 18, v3
        v_cndmask_b32 v14, v15, v14, vcc
        v_lshlrev_b32 v14, 8, v14
        s_mov_b32 s30, {FLAG}
        buffer_load_dword v249, v14, {WS}, s30 offen sc1
        v_mov_b32 v24, {L_CNT}
        v_mov_b32 v28, 0
        v_mov_b32 v29, 0
        v_mov_b32 v30, 0
        v_mov_b32 v31, 0
        ds_write_b128 v24, v[28:31]
        s_lshl_b32 s28, s17, 8
        s_add_u32 s28, s28, s16
        s_lshl_b32 s29, s28, 10
        s_add_u32 s29, s29, {KVIMG}
        s_cmp_lt_u32 s28, 320
        s_cselect_b32 s29, s29, 0x7f000000
        buffer_store_dwordx4 {ONES}, v0, {WS}, s29 offen sc1
        ''')
        self.halo_setup()
        self.touch_setup()
        a('s_waitcnt vmcnt(3) lgkmcnt(0)')
        self.nonce()
        self.x0_store()
        self.bar('b0a')
        self.bar('b0b')
        self.signal('s85', cnt=2, mask=7)
        a(f'''
        s_lshl_b32 s82, s17, 10
        s_and_b32 s83, s17, 1
        s_lshl_b32 s83, s83, 10
        s_add_u32 s83, s83, 16384
        s_mul_i32 s98, s23, {126 * 1024}
        s_add_u32 s98, s98, {WA_P}
        s_lshl_b32 s39, s16, 1
        s_add_u32 s39, s39, s17
        s_cmp_ge_u32 s17, 2
        s_cselect_b32 s39, 999, s39
        ''')
        LK, LJ = a.label('PKV'), a.label('PJ')
        a(f'''
        s_cmp_ge_u32 s39, 450
        s_cbranch_scc1 {LJ}
        s_cmp_ge_u32 s39, 432
        s_cbranch_scc1 {LK}
        ''')
        self.mat_load()
        a('s_waitcnt vmcnt(0)')
        self.mat_store(LJ)
        a(f's_branch {LJ}')
        a(f'{LK}:')
        a('s_sub_u32 s73, s39, 432')
        self.kv_load()
        a('s_waitcnt vmcnt(0)')
        self.kv_store()
        a(f'{LJ}:')
        self.poll('s30', 's85')

        def hal():
            for k in range(4):
                a(f's_add_u32 s96, s82, {4096 * k}')
                self.halo_dma('s96', False)
            self.halo_dma('s83', True)
            self.halo_regs()
        HQ, HK, HA = 64, 192, 64
        self.dma_linear('s98', 0, 126, range(4))
        a('s_waitcnt vmcnt(8)')
        self.bar('c0')
        self.signal('s85', cnt=1, off=128, second='s84', wait=False)
        self.dma_linear('s98', 0, 126, range(4, 6))
        hal()
        a('s_waitcnt vmcnt(15)')
        self.bar('c1')
        self.dma_linear('s98', 0, 126, range(6, 8))
        a(f'''
        v_lshlrev_b32 v14, 8, v3
        s_lshl_b32 s30, s17, 14
        s_add_u32 s30, s30, {FLAG + 128}
        s_mul_i32 s34, s21, 5
        s_add_u32 s35, s34, 4
        s_add_u32 s34, s34, s17
        s_add_u32 s36, s17, 39
        s_cmp_eq_u32 s17, 0
        s_cselect_b32 s35, s35, s36
        s_mul_i32 s34, s34, 1152
        s_mul_i32 s35, s35, 1152
        s_add_u32 s34, s34, {PCS}
        s_add_u32 s35, s35, {PCS}
        v_lshlrev_b32 v24, 2, v3
        s_mul_i32 s99, s21, {90 * 1024}
        s_add_u32 s99, s99, {WS_P}
        s_add_u32 s98, s99, {WSSTR}
        s_waitcnt vmcnt(8)
        ''')
        self.bar('c2')
        self.halo_stats()
        self.poll_early('s30', 's85', lambda: self.halo_steps(0, 12))
        self.bar('c3')
        for k in range(2):
            for i in range(5):
                a(f'buffer_load_dword v{40 + 5 * k + i}, v24, {WS}, s{34 + k} offen offset:{256 * i} sc1')
        self.reg_load('s98', 90, range(1), HQ)
        self.halo_steps(12, 18)
        self.halo_finish()
        self.reg_load('s98', 90, range(1, 3), HQ)
        a('L_HLAYER:')
        a('s_waitcnt lgkmcnt(0)')
        self.bar('t1')
        self.dma_linear('s99', 0, 90, range(2))
        self.bar('t2')
        self.dma_linear('s99', 0, 90, range(2, 6))
        a('s_waitcnt vmcnt(0)')
        self.bar('v2')
        LQ = a.label('HAVEQ')
        a('s_cmp_eq_u32 s19, 1')
        a(f's_cbranch_scc1 {LQ}')
        self.reg_load('s98', 90, range(3, 6), HQ)
        a(f'''
        s_mov_b32 s98, {WKV_P}
        s_cmp_lg_u32 s21, 0
        s_cselect_b32 s98, 0x7f000000, s98
        ''')
        self.reg_load('s98', 54, range(4), HK)
        a('s_waitcnt vmcnt(0)')
        a('v_cmp_gt_u32 vcc, 32, v3')
        for k in range(2):
            b = 40 + 5 * k
            a(f'v_cndmask_b32 v{b + 4}, 0, v{b + 4}, vcc')
            a(f'v_add_f32 v{b}, v{b}, v{b + 1}')
            a(f'v_add_f32 v{b + 2}, v{b + 2}, v{b + 3}')
            a(f'v_add_f32 v{b}, v{b}, v{b + 4}')
            a(f'v_add_f32 v{b}, v{b}, v{b + 2}')
            self.allred(b, b + 1)
        a(f'''
        s_lshl_b32 s28, s17, 6
        s_add_u32 s28, s28, {L_CS + 7 * 64}
        v_lshl_add_u32 v24, v20, 2, s28
        ds_write_b32 v24, v40
        ds_write_b32 v24, v45 offset:256
        {LQ}:
        ''')
        LNK = a.label('NOKVW')
        a('s_cmp_lg_u32 s21, 0')
        a(f's_cbranch_scc1 {LNK}')
        self.reg_dump(54, range(4), HK, L_KVW)
        a(f'{LNK}:')
        a('s_waitcnt vmcnt(0) lgkmcnt(0)')
        self.bar('m2')
        self.reg_dump(90, range(6), HQ)
        self.kv_poll_setup()
        a(f'''
        s_mul_i32 s98, s19, {KVSTR}
        s_add_u32 s98, s98, {KVIMG}
        s_add_u32 s99, s99, {2 * WSSTR}
        s_waitcnt lgkmcnt(0)
        ''')
        self.bar('v3')
        LP = a.label('NOPOLL')
        a('s_cmp_lg_u32 s17, 0')
        a(f's_cbranch_scc1 {LP}')
        self.poll('s30', 's31', wide=38)
        self.allred(39, 38, op='v_max_f32')
        self.rowmax(39)
        a(f'v_mov_b32 v38, {L_KM + 32}')
        a('ds_write_b32 v38, v39')
        a('s_waitcnt lgkmcnt(0)')
        a(f'{LP}:')
        self.bar('k0')
        self.dma_linear('s98', 0, 148, range(2))
        a('s_waitcnt vmcnt(0)')
        self.bar('k1')
        self.dma_linear('s98', 0, 148, range(2, 10))
        a('s_waitcnt vmcnt(0)')
        self.bar('k2')
        a(f's_mul_i32 s98, s23, {126 * 1024}')
        a(f's_add_u32 s98, s98, {WA_P}')
        LN = a.label('NOWA')
        a('s_cmp_eq_u32 s19, 1')
        a(f's_cbranch_scc1 {LN}')
        self.reg_load('s98', 126, range(8), HA)
        a(f'{LN}:')
        self.bar('k3')
        self.touch(33, 3)
        self.touch(33, 4, 2)
        self.dma_linear('s99', 0, 90, range(6))
        a('s_waitcnt vmcnt(0)')
        self.bar('v5')
        LE = a.label('HLAST')
        a('s_cmp_eq_u32 s19, 1')
        a(f's_cbranch_scc1 {LE}')
        self.next_layer()
        self.halo_setup()
        self.reg_dump(126, range(6, 8), HA)
        a(f'''
        v_and_b32 v14, 7, v3
        v_lshlrev_b32 v14, 8, v14
        s_lshl_b32 s30, s22, 11
        s_add_u32 s30, s30, {HFLAG}
        s_sub_u32 s98, s99, {WSSTR}
        ''')
        self.bar('m5')
        self.reg_dump(126, range(6), HA)
        a('s_waitcnt lgkmcnt(0)')
        self.bar('c0', log=False)
        self.poll('s30', 's85')
        hal()
        self.reg_load('s98', 90, range(3), HQ)
        LS, LD = a.label('HS'), a.label('HSD')
        a(f'''
        s_sub_u32 s99, s98, {WSSTR}
        v_mov_b32 v60, {L_CNT + 12}
        v_mov_b32 v61, 1
        s_mov_b32 s70, 0
        s_waitcnt vmcnt(12)
        s_mov_b64 exec, 1
        ds_add_u32 v60, v61
        s_mov_b64 exec, -1
        {LS}:
        ds_read_b32 v61, v60
        s_add_u32 s70, s70, 1
        s_cmp_gt_u32 s70, {POLL_LIMIT * 8}
        s_cbranch_scc1 {LD}
        s_waitcnt lgkmcnt(0)
        v_cmp_gt_u32 vcc, 4, v61
        s_cbranch_vccnz {LS}
        {LD}:
        s_waitcnt lgkmcnt(0)
        ''')
        self.halo_stats()
        self.halo_steps(0, 18)
        self.halo_finish()
        self.reg_load('s98', 90, range(3, 6), HQ)
        a('s_branch L_HLAYER')
        a(f'{LE}:')
        self.bar('m5', log=False)
        a('s_endpgm')

    def build(self):
        a = self.a
        self.entry()
        self.p0()
        a('L_LAYER:')
        self.p1()
        self.proj(2)
        self.p3()
        self.p4()
        self.proj(5)
        LH, LH2, LH3 = a.label('NOH'), a.label('NOH'), a.label('NOH')
        a(f'''
        s_add_u32 s31, s26, 3
        s_and_b32 s37, s20, 1
        s_lshl_b32 s37, s37, 2
        s_add_u32 s37, s37, s17
        s_cmp_lg_u32 s37, 7
        s_cbranch_scc1 {LH}
        s_add_u32 s38, s22, 1
        s_and_b32 s38, s38, 15
        s_mul_i32 s34, s38, {HSLOT}
        s_add_u32 s34, s34, {HALO + 16 * HSLOT}
        s_lshl_b32 s35, s21, 8
        s_add_u32 s35, s35, s34
        s_add_u32 s35, s35, 16384
        s_lshl_b32 s36, s21, 7
        s_add_u32 s36, s36, s34
        s_add_u32 s36, s36, {TILE}
        s_lshl_b32 s28, s21, 11
        s_add_u32 s34, s34, s28
        buffer_store_dwordx4 v[4:7], v0, {WS}, s34 offen sc1
        buffer_store_dwordx4 v[8:11], v0, {WS}, s34 offen offset:1024 sc1
        s_mov_b32 exec_hi, 0
        buffer_store_dwordx2 v[12:13], v1, {WS}, s35 offen sc1
        s_mov_b64 exec, s[40:41]
        buffer_store_dwordx2 v[44:45], v48, {WS}, s36 offen sc1
        s_mov_b64 exec, -1
        s_waitcnt vmcnt(4)
        s_branch {LH2}
        {LH}:
        s_waitcnt vmcnt(0)
        {LH2}:
        ''')
        self.signal('s31', sel='s68', wait=False)
        a(f'''
        s_cmp_lg_u32 s37, 7
        s_cbranch_scc1 {LH3}
        s_lshl_b32 s38, s38, 3
        s_add_u32 s38, s38, s21
        s_lshl_b32 s38, s38, 8
        s_add_u32 s38, s38, {HFLAG}
        s_waitcnt vmcnt(0)
        s_mov_b64 exec, 0xffff
        buffer_store_dwordx2 v[254:255], v1, {WS}, s38 offen sc1
        s_mov_b64 exec, -1
        {LH3}:
        ''')
        self.stamp('p5.flag')
        self.next_layer()
        a(f'''
        s_mov_b32 s82, {FLAG}
        s_branch L_LAYER
        L_FINAL:
        v_and_b32 v20, 15, v3
        v_lshrrev_b32 v21, 4, v3
        v_mul_u32_u24 v20, 1152, v20
        v_lshl_add_u32 v22, v21, 4, v20
        v_lshl_add_u32 v23, v21, 3, v20
        s_mul_i32 s28, s21, 144
        s_add_u32 s28, s28, s88
        buffer_store_dwordx4 v[4:7], v22, s[12:15], s28 offen
        buffer_store_dwordx4 v[8:11], v22, s[12:15], s28 offen offset:64
        s_mov_b32 exec_hi, 0
        buffer_store_dwordx2 v[12:13], v23, s[12:15], s28 offen offset:128
        s_mov_b64 exec, -1
        ''')
        if self.prof:
            a('s_waitcnt vmcnt(0)')
        self.stamp('end')
        a(f'''
        s_or_b32 s28, s16, s17
        s_cmp_lg_u32 s28, 0
        s_cbranch_scc1 L_EXIT
        v_mov_b32 v20, s18
        v_mov_b32 v21, 0
        s_mov_b64 exec, 1
        buffer_store_dword v20, v21, {WS}, 0 offen sc1
        L_EXIT:
        s_endpgm
        ''')
        self.helper()
        a('L_CODE_END:')
        assert self.bars['C'] == self.bars['H'], self.bars
        for b in a.check_branches():
            print('BRANCH HAZARD', b, file=sys.stderr)
        head = open(f'cdna_kernels/{NAME}.s.ref').read().split('; Override launch')[0]
        return f'''{head}; @launch grid=(256,1,1) block=({BLOCK},1,1) lds={LDS_BYTES}
.amdgcn_target "amdgcn-amd-amdhsa--gfx950"
.text
.globl {NAME}_kernel
.p2align 8
.type {NAME}_kernel,@function
{NAME}_kernel:
{a.text()}.section .rodata,"a"
.p2align 6
.amdhsa_kernel {NAME}_kernel
  .amdhsa_next_free_vgpr 256
  .amdhsa_next_free_sgpr 102
  .amdhsa_accum_offset 256
  .amdhsa_group_segment_fixed_size 0
  .amdhsa_kernarg_size 88
  .amdhsa_user_sgpr_count 2
  .amdhsa_user_sgpr_kernarg_segment_ptr 1
  .amdhsa_system_sgpr_workgroup_id_x 1
.end_amdhsa_kernel
'''


if __name__ == '__main__':
    import argparse
    ap = argparse.ArgumentParser()
    ap.add_argument('-o', default=f'cdna_kernels/{NAME}.s')
    ap.add_argument('--fallback', action='store_true')
    ap.add_argument('--prof', action='store_true')
    ap.add_argument('--nolocal', action='store_true')
    ap.add_argument('--sep', action='store_true')
    ap.add_argument('--dbg', action='store_true')
    args = ap.parse_args()
    g = Gen(args.fallback, args.prof, args.nolocal, args.sep, args.dbg)
    txt = g.build()
    open(args.o, 'w').write(txt)
    if args.prof:
        import json; json.dump([g.stamps, g.hstamps], open(args.o + '.json', 'w'))
    print('nops inserted:', g.a.nops, 'lines:', txt.count('\n'), 'barriers:', g.bars['C'])
```

```python
import sys, struct, math
from asmlib import Asm, groups, weave

NAME = 'interleave_layers__sliding_local_dilated__grouped_kv_mqa__prompt'

FLAG = 0x1000
KVFLAG = 0x12000
HFLAG = 0x16000
KVIMG = 0x20000
KVSTR = 0x28000
WFLAG = 0x70000
STATS = 0x80000
STSTR = 0x20000
WA_P = 0x100000
WS_P = 0x300000
WSSTR = 0xB4000
WKV_P = 0x520000
PCS = 0x540000
HALO = 0x550000
HSLOT = 0x5000
ACT = 0x600000
ACTB = 0x240000
PROF = 0x1800000
WS_SIZE = 0x1900000
TILE = 18432
GRP = 18944
STEP = 2240
L_KVW = 90 * 1024
L_HALO = 126 * 1024
L_X = 144 * 1024
L_EX = L_X
L_VT = L_X + 9216
L_CS = L_X + 13056
L_ST = L_CS + 1024
L_KM = L_ST + 2048
L_CNT = L_KM + 16
L_RDY = L_KM + 48
LDS_BYTES = 160 * 1024
BLOCK = 512
POLL_LIMIT = 40000
BTHR = 50.0


def f2u(x):
    return struct.unpack('<I', struct.pack('<f', x))[0]


def vr(b, n=4):
    return f'v[{b}:{b + n - 1}]' if n > 1 else f'v{b}'


M16 = 'v_mfma_f32_16x16x32_bf16'
M16H = 'v_mfma_f32_16x16x16_bf16'
M32 = 'v_mfma_f32_32x32x16_bf16'
M32H = 'v_mfma_f32_32x32x8_bf16'
WS = 's[4:7]'
ONES = 'v[16:19]'


class Gen:
    def __init__(self, force_fallback=False, prof=False, no_local=False, sep=False, dbg=False, exp=''):
        self.exp = exp.split(',')
        self.dbg = dbg
        self.no_local = no_local
        self.B = [i * ACTB for i in range(5)] if sep else [0, ACTB, 0, ACTB, 0]
        self.ST = [i * STSTR for i in range(3)] if sep else [0, 0, 0]
        self.prof = prof
        self.stamps = []
        self.hstamps = []
        self.a = Asm()
        self.force_fallback = force_fallback
        self.bars = {'C': [], 'H': []}
        self.who = 'C'
        self.cold = []

    def bar(self, name, log=True):
        if self.who == 'H' or name in ('t2', 'c1'):
            self.stamp('>' + name)
        self.a('s_barrier')
        if log:
            self.bars[self.who].append(name)

    def run(self, g):
        for x in g:
            self.a.emit(x)

    def exec_mask(self, m):
        a = self.a
        if m == -1:
            a('s_mov_b64 exec, -1')
        elif m < (1 << 31):
            a(f's_mov_b64 exec, 0x{m:x}')
        else:
            a(f's_mov_b32 exec_lo, 0x{m & 0xffffffff:x}')
            a(f's_mov_b32 exec_hi, 0x{m >> 32:x}')

    def poll(self, sbase, sneed, wide=None):
        a = self.a
        L, D = a.label('POLL'), a.label('POLLD')
        a('s_mov_b32 s70, 0')
        a(f'{L}:')
        if wide:
            a(f'buffer_load_dwordx2 {vr(wide, 2)}, v14, {WS}, {sbase} offen sc1')
            a('s_waitcnt vmcnt(0)')
            a(f'v_subrev_u32 v15, {sneed}, v{wide}')
        else:
            a(f'buffer_load_dword v15, v14, {WS}, {sbase} offen sc1')
            a('s_waitcnt vmcnt(0)')
            a(f'v_subrev_u32 v15, {sneed}, v15')
        a('v_cmp_le_u32 vcc, 16, v15')
        a('s_add_u32 s70, s70, 1')
        a(f's_cmp_gt_u32 s70, {POLL_LIMIT}')
        a(f's_cbranch_scc1 {D}')
        a(f's_cbranch_vccnz {L}')
        a(f'{D}:')

    def poll_early(self, sbase, sneed, between):
        a = self.a
        D = a.label('POLLE')
        a(f'buffer_load_dword v15, v14, {WS}, {sbase} offen sc1')
        between()
        a('s_waitcnt vmcnt(0)')
        a(f'v_subrev_u32 v15, {sneed}, v15')
        a('v_cmp_le_u32 vcc, 16, v15')
        C = a.label('POLLC')
        a(f's_cbranch_vccnz {C}')
        a(f'{D}:')

        def cold():
            a(f'{C}:')
            self.poll(sbase, sneed)
            a(f's_branch {D}')
        self.cold.append(cold)

    def post(self, k, n=1):
        a = self.a
        a(f'v_mov_b32 v38, {L_RDY}')
        a(f'v_mov_b32 v39, {n}')
        a('s_mov_b64 exec, 1')
        a(f'ds_add_u32 v38, v39 offset:{4 * k}')
        a('s_mov_b64 exec, -1')

    def spin(self, k, addr, val, checked=None, need='4'):
        a = self.a
        LS, LD = a.label('SPIN'), a.label('SPIND')
        LC = a.label('SPINC')
        a.wait_lg(checked)
        a(f'v_cmp_gt_u32 vcc, {need}, v{val}')
        a(f's_cbranch_vccnz {LC}')
        a(f'{LD}:')
        self.cold.append(lambda: a(f'''
        {LC}:
        s_mov_b32 s70, 0
        {LS}:
        s_sleep 1
        ds_read_b32 v{val}, v{addr} offset:{4 * k}
        s_add_u32 s70, s70, 1
        s_waitcnt lgkmcnt(0)
        v_cmp_gt_u32 vcc, {need}, v{val}
        s_cmp_gt_u32 s70, {POLL_LIMIT * 8}
        s_cbranch_scc1 {LD}
        s_cbranch_vccnz {LS}
        s_branch {LD}
        '''))

    def arrive(self, skip, cnt=0, mask=3, wait=True):
        a = self.a
        a(f'v_mov_b32 v252, {L_CNT + 4 * cnt}')
        a('v_mov_b32 v253, 1')
        a('s_mov_b64 exec, 1')
        if wait:
            a('s_waitcnt vmcnt(0)')
        a('ds_add_rtn_u32 v253, v252, v253')
        a('s_waitcnt lgkmcnt(0)')
        a('v_readfirstlane_b32 s28, v253')
        a('s_mov_b64 exec, -1')
        a(f's_and_b32 s28, s28, {mask}')
        a(f's_cmp_lg_u32 s28, {mask}')
        a(f's_cbranch_scc1 {skip}')

    def scoped(self, fn, sel):
        a = self.a
        if sel is None:
            fn(' sc1')
            return
        LL, LE = a.label('LOC'), a.label('LOCE')
        a(f's_cmp_eq_u32 {sel}, 0')
        a(f's_cbranch_scc1 {LL}')
        fn('')
        a(f'{LE}:')

        def cold():
            a(f'{LL}:')
            fn(' sc1')
            a(f's_branch {LE}')
        self.cold.append(cold)

    def signal(self, stag, cnt=0, off=0, sel=None, second=None, mask=3, wait=True, line='s27'):
        a = self.a
        L = a.label('SIG')
        a(f'v_mov_b32 v254, {stag}')
        a(f'v_mov_b32 v255, {second or stag}')
        self.arrive(L, cnt, mask, wait)
        self.exec_mask(0xffff)
        self.scoped(lambda f: a(f'buffer_store_dwordx2 v[254:255], v1, {WS}, {line} offen offset:{off}{f}'), sel)
        a.vm -= 1
        self.exec_mask(-1)
        a(f'{L}:')

    def dma_linear(self, ssrc, lds0, kb, rounds, first_kb=0):
        a = self.a
        for i in rounds:
            a(f's_add_u32 s96, s100, {(16384 * i + first_kb * 1024) & 0xffffffff}')
            if first_kb + (4 * i + 4) * 4 > kb:
                a(f's_min_u32 s96, s96, {(kb - 4) * 1024}')
            a(f's_add_u32 s97, s96, {ssrc}')
            a(f's_add_u32 m0, s96, {lds0}')
            for k in range(4):
                a(f'buffer_load_dwordx4 v0, {WS}, s97 offen offset:{k * 1024} sc1 lds')

    def reg_load(self, ssrc, kb, rounds, base):
        a = self.a
        for i in rounds:
            a(f's_add_u32 s96, s100, {16384 * i}')
            if (4 * i + 4) * 4 > kb:
                a(f's_min_u32 s96, s96, {(kb - 4) * 1024}')
            a(f's_add_u32 s97, s96, {ssrc}')
            for k in range(4):
                a(f'buffer_load_dwordx4 {vr(base + 16 * i + 4 * k)}, v0, {WS}, s97 offen offset:{k * 1024} sc1')

    def reg_dump(self, kb, rounds, base, lds0=0):
        a = self.a
        for i in rounds:
            a(f's_add_u32 s96, s100, {16384 * i}')
            if (4 * i + 4) * 4 > kb:
                a(f's_min_u32 s96, s96, {(kb - 4) * 1024}')
            if lds0:
                a(f's_add_u32 s96, s96, {lds0}')
            a(f'v_add_u32 v{25 + i % 2}, s96, v0')
            for k in range(4):
                a(f'ds_write_b128 v{25 + i % 2}, {vr(base + 16 * i + 4 * k)} offset:{k * 1024}')

    def load_frag(self, s, reg, stile):
        a = self.a
        so = f's{stile + s // 4}'
        if s < 16:
            a(f'buffer_load_dwordx4 {vr(reg)}, v0, {WS}, {so} offen offset:{(s % 4) * 1024} sc1')
        else:
            a(f'buffer_load_dwordx2 {vr(reg, 2)}, v2, {WS}, {so} offen offset:{(s % 4) * 1024} sc1')
            a(f'buffer_load_dwordx2 {vr(reg + 2, 2)}, v2, {WS}, {so} offen offset:{(s % 4) * 1024 + 128} sc1')

    def tile_sgprs(self, stile):
        for i in range(1, 5):
            self.a(f's_add_u32 s{stile + i}, s{stile}, {4096 * i}')

    def allred(self, x, t, op='v_add_f32', only32=False):
        a = self.a
        a(f'v_mov_b32 v{t}, v{x}')
        a(f'v_permlane32_swap_b32 v{x}, v{t}')
        a(f'{op} v{x}, v{x}, v{t}')
        if not only32:
            a(f'v_mov_b32 v{t}, v{x}')
            a(f'v_permlane16_swap_b32 v{x}, v{t}')
            a(f'{op} v{x}, v{x}, v{t}')

    def rowmax(self, x):
        for n in (8, 4, 2, 1):
            self.a(f'v_max_f32_dpp v{x}, v{x}, v{x} row_ror:{n} row_mask:0xf bank_mask:0xf')

    def stats_finish(self, raw):
        a = self.a
        a(f'v_add_f32 v{raw}, v{raw}, v{raw + 2}')
        a(f'v_add_f32 v{raw + 1}, v{raw + 1}, v{raw + 3}')
        for sw in ('v_permlane32_swap_b32', 'v_permlane16_swap_b32'):
            a(f'v_mov_b32 v{raw + 2}, v{raw}')
            a(f'v_mov_b32 v{raw + 3}, v{raw + 1}')
            a(f'{sw} v{raw}, v{raw + 2}')
            a(f'{sw} v{raw + 1}, v{raw + 3}')
            a(f'v_add_f32 v{raw}, v{raw}, v{raw + 2}')
            a(f'v_add_f32 v{raw + 1}, v{raw + 1}, v{raw + 3}')
        a(f'v_mul_f32 v{raw + 2}, 0x{f2u(-1.0 / 576):x}, v{raw}')
        a(f'v_mul_f32 v{raw + 1}, 0x{f2u(1.0 / 576):x}, v{raw + 1}')
        a(f'v_fma_f32 v{raw + 1}, -v{raw + 2}, v{raw + 2}, v{raw + 1}')
        a(f'v_max_f32 v{raw + 1}, 0, v{raw + 1}')
        a(f'v_add_f32 v{raw + 1}, 0x{f2u(1e-5):x}, v{raw + 1}')
        a(f'v_rsq_f32 v{raw + 3}, v{raw + 1}')

    def stats_emit(self, frags, tail, d1, d2):
        a = self.a
        first = True
        for f in frags:
            a(f'{M16} {vr(d1)}, {f}, {f}, {"0" if first else vr(d1)}')
            a(f'{M16} {vr(d2)}, {ONES}, {f}, {"0" if first else vr(d2)}')
            first = False
        if tail:
            a(f'{M16H} {vr(d1)}, {tail}, {tail}, {vr(d1)}')
            a(f'{M16H} {vr(d2)}, v[16:17], {tail}, {vr(d2)}')

    def stats_store(self, d1, d2, soff, vaddr, f=' sc1'):
        a = self.a
        a(f'v_cndmask_b32 v{d1}, v{d1}, v{d1 + 1}, s[42:43]')
        a(f'v_cndmask_b32 v{d1 + 2}, v{d1 + 2}, v{d1 + 3}, s[42:43]')
        a(f'v_cndmask_b32 v{d2 + 1}, v{d1}, v{d1 + 2}, s[44:45]')
        a('s_mov_b64 exec, s[40:41]')
        a(f'buffer_store_dwordx2 {vr(d2, 2)}, {vaddr}, {WS}, {soff} offen{f}')
        self.exec_mask(-1)

    def gather_lds(self, vaddr, off, tmp):
        for jj in range(8):
            self.a(f'ds_read_u16 v{tmp + jj}, v{vaddr} offset:{off + jj * 256}')

    def gather_pack(self, dst, tmp):
        for k in range(4):
            self.a(f'v_lshl_or_b32 v{dst + k}, v{tmp + 2 * k + 1}, 16, v{tmp + 2 * k}')

    def stamp(self, name, again=False):
        a = self.a
        if self.dbg and self.who == 'C':
            sel = ['start', 'p0.flag1', 'p1.bar', 'p1.mfma', 'p4.start', 'p4.loop', 'p5.mfma', 'end']
            if name in sel:
                if name == 'start':
                    a('s_load_dwordx2 s[64:65], s[0:1], 72')
                    a('s_mov_b32 s66, 256')
                a('s_memrealtime s[94:95]')
                a('s_lshl_b32 s90, s19, 5')
                a('s_or_b32 s91, s16, s17')
                a('s_lshl_b32 s91, s91, 8')
                a('s_add_u32 s90, s90, s91')
                a('s_waitcnt lgkmcnt(0)')
                a('v_mov_b32 v254, s94')
                a('s_mov_b64 exec, 1')
                a(f'buffer_store_dword v254, v0, s[64:67], s90 offen offset:{4 * sel.index(name)}')
                a.vm -= 1
                a('s_mov_b64 exec, -1')
        if not self.prof:
            return
        names = self.stamps if self.who == 'C' else self.hstamps
        idx = names.index(name) if name in names else len(names)
        if name not in names:
            names.append(name)
        assert idx < 32
        r0 = 254 if self.who == 'C' else 30
        a('s_memtime s[92:93]')
        a('s_memrealtime s[94:95]')
        a('s_lshl_b32 s90, s16, 2')
        a('s_add_u32 s90, s90, s17')
        a('s_lshl_b32 s90, s90, 9')
        a('s_lshl_b32 s91, s19, 8')
        a('s_add_u32 s90, s90, s91')
        a(f's_add_u32 s90, s90, {PROF + idx * 8 + (0 if r0 == 254 else 0x80000)}')
        a('s_waitcnt lgkmcnt(0)')
        a(f'v_mov_b32 v{r0}, s92')
        a(f'v_mov_b32 v{r0 + 1}, s94')
        a('s_mov_b64 exec, 1')
        a(f'buffer_store_dwordx2 {vr(r0, 2)}, v0, {WS}, s90 offen')
        a.vm -= 1
        a('s_mov_b64 exec, -1')

    def next_layer(self):
        self.a(f'''
        s_mov_b32 s19, 1
        s_add_u32 s85, s26, 3
        s_add_u32 s26, s26, 4
        s_add_u32 s24, s24, {self.B[4]}
        s_add_u32 s25, s25, {self.ST[2]}
        ''')

    def entry(self):
        a = self.a
        a(f'''
        s_cmp_ge_u32 s2, 256
        s_cbranch_scc1 L_EXIT
        s_load_dwordx16 s[48:63], s[0:1], 0
        s_load_dwordx2 s[12:13], s[0:1], 64
        s_load_dwordx2 s[4:5], s[0:1], 80
        s_getpc_b64 s[8:9]
        L_PC:
        s_mov_b32 s10, L_CODE_END-L_PC
        s_mov_b32 s11, 0x20000
        s_lshl_b32 s37, s2, 8
        s_and_b32 s37, s37, 0xf800
        v_lshlrev_b32 v31, 2, v0
        buffer_load_dword v251, v31, s[8:11], s37 offen
        v_lshrrev_b32 v14, 6, v0
        v_and_b32 v3, 63, v0
        v_lshlrev_b32 v0, 4, v3
        v_readfirstlane_b32 s69, v14
        v_lshlrev_b32 v1, 3, v3
        v_and_b32 v20, 15, v3
        v_lshrrev_b32 v21, 4, v3
        v_lshlrev_b32 v2, 8, v21
        v_lshl_add_u32 v2, v20, 3, v2
        s_and_b32 s17, s69, 3
        s_and_b32 s28, s2, 7
        s_lshr_b32 s29, s2, 3
        s_lshl_b32 s16, s28, 5
        s_add_u32 s16, s16, s29
        s_lshr_b32 s20, s16, 3
        s_and_b32 s21, s16, 7
        s_lshr_b32 s22, s16, 4
        s_and_b32 s23, s16, 15
        s_lshl_b32 s27, s16, 8
        s_add_u32 s27, s27, {FLAG}
        s_mov_b32 s19, 0
        s_getreg_b32 s84, hwreg(HW_REG_XCC_ID)
        s_lshl_b32 s100, s17, 12
        s_mov_b32 s24, {ACT}
        s_mov_b32 s25, {STATS}
        s_mov_b32 s40, 0x00f0000f
        s_mov_b32 s41, 0xf0000f00
        s_mov_b32 s42, 0xaaaaaaaa
        s_mov_b32 s43, 0xaaaaaaaa
        s_mov_b32 s44, 0xcccccccc
        s_mov_b32 s45, 0xcccccccc
        v_mov_b32 v16, 0x3f803f80
        v_mov_b32 v17, 0x3f803f80
        v_mov_b32 v18, 0x3f803f80
        v_mov_b32 v19, 0x3f803f80
        v_mov_b32 v22, 0
        s_mov_b32 s6, {WS_SIZE}
        s_mov_b32 s7, 0x20000
        s_mov_b32 s14, {2048 * 1152}
        s_mov_b32 s15, 0x20000
        s_mov_b32 s67, 0x20000
        s_waitcnt lgkmcnt(0)
        buffer_load_dword v23, v22, {WS}, 0 offen sc1
        s_cmp_ge_u32 s69, 4
        s_cbranch_scc1 L_HELPER
        ''')

    def nonce(self):
        self.a('''
        v_readfirstlane_b32 s18, v23
        s_add_u32 s18, s18, 16
        s_add_u32 s26, s18, 3
        s_add_u32 s85, s18, 1
        ''')

    def p0(self):
        a = self.a
        self.stamp('start')
        a('''
        s_and_b32 s78, s16, 31
        s_lshr_b32 s79, s16, 5
        s_mul_i32 s80, s79, 18
        s_add_u32 s80, s80, s78
        s_and_b32 s81, s80, 7
        s_lshr_b32 s80, s80, 3
        ''')
        LA = a.label('NOWA')
        a(f'''
        s_cmp_ge_u32 s78, 18
        s_cbranch_scc1 {LA}
        s_mov_b32 s8, s50
        s_mov_b32 s9, s51
        s_mov_b32 s10, {576 * 3456}
        s_lshr_b32 s32, s80, 1
        s_mul_i32 s32, s32, 72
        s_and_b32 s33, s80, 1
        s_lshl_b32 s34, s33, 5
        s_add_u32 s32, s32, s34
        s_mul_i32 s33, s33, 288
        s_add_u32 s33, s33, 64
        s_cmp_lt_u32 s80, 16
        s_cselect_b32 s32, s32, s33
        s_cselect_b32 s34, 8, 72
        s_mul_i32 s34, s34, s17
        s_add_u32 s32, s32, s34
        s_mul_i32 s32, s32, 3456
        s_lshl_b32 s33, s81, 7
        s_add_u32 s32, s32, s33
        v_mul_u32_u24 v24, 3456, v21
        v_lshl_add_u32 v24, v20, 4, v24
        s_lshl_b32 s33, s17, 11
        ''')
        for sec in range(3):
            for i in range(2):
                a(f's_add_u32 s34, s32, {sec * 1152 + i * 4 * 3456}')
                a(f's_add_u32 m0, s33, {sec * 8192 + i * 1024}')
                a('buffer_load_dwordx4 v24, s[8:11], s34 offen lds')
        LJ = a.label('P0J')
        a(f'''
        s_branch {LJ}
        {LA}:
        s_sub_u32 s39, s78, 18
        s_mul_i32 s38, s79, 14
        s_add_u32 s39, s39, s38
        s_lshl_b32 s39, s39, 2
        s_add_u32 s39, s39, s17
        s_mul_i32 s39, s39, 1536
        v_lshlrev_b32 v24, 7, v3
        s_mov_b32 s10, {576 * 1152}
        s_mov_b64 exec, 0xfff
        ''')
        for p in (52, 56):
            a(f's_mov_b32 s8, s{p}')
            a(f's_mov_b32 s9, s{p + 1}')
            a(f'buffer_load_dword v25, v24, s[8:11], s39 offen')
        a(f's_mov_b32 s10, {576 * 36}')
        for p in (58, 60):
            a(f's_mov_b32 s8, s{p}')
            a(f's_mov_b32 s9, s{p + 1}')
            a(f'buffer_load_dword v25, v24, s[8:11], s39 offen')
        a('s_mov_b64 exec, -1')
        a(f'{LJ}:')
        a(f'''
        s_lshl_b32 s89, s20, 2
        s_add_u32 s89, s89, s17
        s_mul_i32 s88, s89, {TILE}
        s_lshl_b32 s89, s89, 10
        s_waitcnt vmcnt(0)
        ''')
        self.nonce()
        self.stamp('p0.loaded')
        self.bar('b0a')
        LA2, LA3 = a.label('NOWA2'), a.label('NOWAT')
        a(f'''
        s_cmp_ge_u32 s78, 18
        s_cbranch_scc1 {LA2}
        s_mul_i32 s32, s17, 36
        s_lshl_b32 s33, s81, 4
        s_add_u32 s32, s32, s33
        v_lshlrev_b32 v24, 11, v21
        v_lshl_add_u32 v30, v20, 1, v24
        v_add_u32 v30, s32, v30
        s_lshl_b32 s34, s81, 1
        s_lshr_b32 s32, s17, 1
        s_add_u32 s34, s34, s32
        s_mul_i32 s34, s34, 18
        s_add_u32 s34, s34, s80
        s_mul_i32 s34, s34, 7
        s_and_b32 s32, s17, 1
        s_add_u32 s34, s34, s32
        s_lshl_b32 s34, s34, 10
        s_add_u32 s34, s34, {WA_P}
        s_add_u32 s32, s34, 4096
        ''')
        for sec in range(3):
            self.gather_lds(30, sec * 8192, 96 + 8 * sec)
        for sec in range(3):
            a(f's_waitcnt lgkmcnt({min(15, 16 - 8 * sec)})')
            self.gather_pack(120 + 4 * sec, 96 + 8 * sec)
            if sec < 2:
                a(f'buffer_store_dwordx4 {vr(120 + 4 * sec)}, v0, {WS}, s34 offen offset:{sec * 2048} sc1')
            else:
                a(f'buffer_store_dwordx4 {vr(120 + 4 * sec)}, v0, {WS}, s32 offen sc1')
        a(f'''
        s_cmp_ge_u32 s17, 2
        s_cbranch_scc1 {LA3}
        v_bfe_u32 v31, v20, 1, 1
        v_bfe_u32 v132, v20, 2, 1
        v_cmp_le_u32 vcc, 8, v20
        v_cndmask_b32 v133, v132, v31, vcc
        v_cndmask_b32 v31, v31, 2, vcc
        v_lshlrev_b32 v31, 13, v31
        v_mad_u32_u24 v31, v133, 36, v31
        v_and_b32 v132, 1, v20
        v_lshl_add_u32 v31, v132, 1, v31
        v_add_u32 v31, v31, v24
        s_mul_i32 s32, s17, 72
        s_add_u32 s32, s32, s33
        s_add_u32 s32, s32, 32
        v_add_u32 v31, s32, v31
        s_lshl_b32 s34, s81, 1
        s_add_u32 s34, s34, s17
        s_mul_i32 s34, s34, 18
        s_add_u32 s34, s34, s80
        s_mul_i32 s34, s34, 7
        s_add_u32 s34, s34, 6
        s_lshl_b32 s34, s34, 10
        s_add_u32 s34, s34, {WA_P}
        ''')
        self.gather_lds(31, 0, 136)
        a('s_waitcnt lgkmcnt(0)')
        self.gather_pack(144, 136)
        a('v_cmp_le_u32 vcc, 12, v20')
        for k in range(4):
            a(f'v_cndmask_b32 v{144 + k}, v{144 + k}, 0, vcc')
        a(f'buffer_store_dwordx4 v[144:147], v0, {WS}, s34 offen sc1')
        a(f'{LA3}:')
        a('s_lshl_b32 s32, s80, 3')
        a('s_add_u32 s32, s32, s81')
        a('s_lshl_b32 s32, s32, 8')
        a(f's_add_u32 s32, s32, {WFLAG}')
        self.signal('s85', line='s32')
        a(f'{LA2}:')
        self.bar('b0b')
        self.stamp('p0.flag1')
        a(f'''
        s_mov_b32 s82, {FLAG}
        s_mov_b32 s68, 0
        ''')

    def p1(self):
        a = self.a
        ACC = lambda x, t: 20 + 28 * x + 4 * t
        WR = lambda s, t: 84 + 28 * (s % 2) + 4 * t
        AR = lambda s, x: 164 + 8 * (s % 8) + 4 * x
        RAW, PR = 228, 136
        H1, H2 = 76, 80
        NR = lambda x: vr(RAW + 4 * x + 2, 2)
        QC = lambda x: RAW + 4 * x
        TQD = (160, 176)
        vH1, vH2, vHA, vHT = 244, 245, 246, 247
        RD = (2, 6, 8)
        MP, MC, MPA, PM = 180, 184, 188, 192
        xK, xT, xV, cN, cS, vTR, hN, hS = 196, 197, 198, 199, 200, 201, 202, 203
        vW, TOK, GG = 248, 249, 250
        QO = lambda x, h: 204 + 8 * x + 4 * h
        KO = lambda h, y: 112 + 12 * h + 4 * y
        VV = lambda h: 164 + 6 * h
        VT = (220, 106)
        cexp = 18 ** -0.5 * math.log2(math.e)
        a(f'''
        s_lshl_b32 s30, s22, 12
        s_add_u32 s30, s30, s82
        v_and_b32 v{TOK}, 15, v3
        v_lshlrev_b32 v14, 8, v{TOK}
        v_lshrrev_b32 v{GG}, 4, v3
        v_mov_b32 v{vW}, v0
        v_mov_b32 v242, {L_RDY}
        s_lshl_b32 s28, s22, 3
        s_lshl_b32 s29, s17, 1
        s_add_u32 s29, s29, s28
        s_mul_i32 s48, s29, {TILE}
        s_add_u32 s48, s48, s24
        s_add_u32 s53, s48, {TILE}
        s_lshl_b32 s58, s29, 10
        s_add_u32 s58, s58, s25
        s_lshl_b32 s28, s19, 4
        s_add_u32 s28, s28, s22
        s_mul_i32 s59, s28, {HSLOT}
        s_add_u32 s59, s59, {HALO + TILE}
        s_lshl_b32 s71, s19, 2
        s_add_u32 s71, s71, 4
        ''')
        self.tile_sgprs(48)
        self.tile_sgprs(53)
        self.poll('s30', 's85')
        self.stamp('p1.polled')
        G = {}
        for s in range(18):
            with a.capture() as L:
                self.load_frag(s, AR(s, 0), 48)
                self.load_frag(s, AR(s, 1), 53)
                a.mark_vm(('p1', s))
            G[s] = groups(L)
        with a.capture() as L:
            for x in range(2):
                a(f'buffer_load_dwordx2 {vr(RAW + 4 * x, 2)}, v1, {WS}, s58 offen offset:{1024 * x} sc1')
                a(f'buffer_load_dwordx2 {vr(RAW + 4 * x + 2, 2)}, v1, {WS}, s58 offen offset:{1024 * x + 512} sc1')
            a.mark_vm(('p1', 'st'))
        GS = groups(L)
        with a.capture() as L:
            a(f'buffer_load_dwordx2 {vr(RAW + 8, 2)}, v1, {WS}, s59 offen sc1')
            a(f'buffer_load_dwordx2 {vr(RAW + 10, 2)}, v1, {WS}, s59 offen offset:512 sc1')
            a.mark_vm(('p1', 'hst'))
        GH = groups(L)

        def hreads(hs):
            o = (7 * (hs % 9)) * 1024
            rb = 140 + 12 * (hs % 2)
            out = [f'v_add_u32 v{r}, {63 * 1024}, v{r}' for r in (vH1, vH2)] if hs == 9 else []
            if hs < 16:
                out.append(f'ds_read_b128 {vr(rb)}, v{vHA} offset:{hs * 1024}')
            else:
                out.append(f'ds_read_b64 {vr(rb, 2)}, v{vHT} offset:{(hs - 16) * 1024}')
                out.append(f'ds_read_b64 {vr(rb + 2, 2)}, v{vHT} offset:{(hs - 16) * 1024 + 128}')
            out.append(f'ds_read_b128 {vr(rb + 4)}, v{vH1} offset:{o}')
            out.append(f'ds_read_b128 {vr(rb + 8)}, v{vH2} offset:{o}')
            return out

        def reads(s):
            o = (7 * (s % 9)) * 1024
            out = [f'v_add_u32 v{vW}, {63 * 1024}, v{vW}'] if s == 9 else []
            return out + [f'ds_read_b128 {vr(WR(s, t))}, v{vW} offset:{o + t * 1024}' for t in range(7)]

        for s in range(4):
            for g in G[s]:
                self.run(g)
        self.bar('c0')
        self.stamp('p1.bar')
        rid = {}

        def emit_read(s, r):
            a(r)
            if r.startswith('ds_read'):
                rid.setdefault(s, []).append(a.lg)
        for r in reads(0):
            emit_read(0, r)
        queue = G[4] + G[5] + GS + G[6] + G[7]
        with a.capture() as side:
            a(f'''
            s_lshl_b32 s60, s17, 9
            s_add_u32 s60, s60, {L_ST}
            v_lshl_add_u32 v240, v{TOK}, 2, s60
            v_lshl_add_u32 v241, v{GG}, 4, s60
            s_mov_b32 s76, -1
            s_mov_b32 s77, 0
            s_lshr_b32 s28, s17, 1
            s_and_b32 s29, s17, 1
            s_lshl_b32 s86, s28, 2
            s_add_u32 s86, s86, s29
            s_add_u32 s86, s86, 2
            s_min_u32 s86, s86, 6
            s_xor_b32 s28, s28, 1
            s_lshl_b32 s87, s28, 2
            s_add_u32 s87, s87, s29
            s_lshl_b32 s28, s86, 10
            s_lshl_b32 s29, s87, 10
            v_add_u32 v{vH1}, s28, v0
            v_add_u32 v{vH2}, s29, v0
            v_add_u32 v{vHA}, {L_HALO}, v0
            v_add_u32 v{vHT}, {L_HALO + 16384}, v2
            s_lshl_b32 s34, s23, 10
            s_add_u32 s34, s34, s48
            s_add_u32 s34, s34, {ACTB}
            s_add_u32 s35, s34, {TILE}
            s_lshl_b32 s36, s23, 7
            s_add_u32 s36, s36, s48
            s_add_u32 s36, s36, {ACTB + 16384}
            s_add_u32 s37, s36, {TILE}
            s_mov_b32 s72, 0xffff
            s_mov_b32 s73, 0
            s_mov_b32 s74, 0xffff0000
            s_mov_b32 s75, 0
            s_or_b32 s28, s22, s17
            v_mov_b32 v251, s28
            v_cmp_eq_u32 s[62:63], 0, v251
            s_mul_i32 s32, s17, 2304
            s_add_u32 s32, s32, {L_EX}
            s_lshl_b32 s33, s17, 9
            s_add_u32 s33, s33, {L_VT}
            s_lshl_b32 s38, s86, 6
            s_add_u32 s38, s38, {L_CS}
            s_lshl_b32 s39, s87, 6
            s_add_u32 s39, s39, {L_CS}
            ''')
            a.wvm(('p1', 'st'))
            for x in range(2):
                self.stats_finish(RAW + 4 * x)
            for x in range(2):
                a(f'ds_write_b32 v240, v{RAW + 4 * x + 2} offset:{128 * x}')
                a(f'ds_write_b32 v240, v{RAW + 4 * x + 3} offset:{128 * x + 64}')
                a(f'v_cndmask_b32 v{QC(x)}, v{RAW + 4 * x + 3}, 1.0, s[76:77]')
                a(f'v_mul_f32 v{QC(x) + 1}, 0x{f2u(cexp):x}, v{RAW + 4 * x + 3}')
        with a.capture() as side2:
            a.wvm(('p1', 'hst'))
            self.stats_finish(RAW + 8)
            a(f'ds_write_b32 v240, v{RAW + 10} offset:256')
            a(f'ds_write_b32 v240, v{RAW + 11} offset:320')
            a(f'v_mov_b32 v243, 0x{f2u(-1e30):x}')
            a(f'v_and_b32 v242, 1, v{TOK}')
            a('v_lshlrev_b32 v242, 4, v242')
            a('v_lshlrev_b32 v240, v242, s72')
            for r in range(4):
                a(f'v_lshl_add_u32 v251, v{GG}, 2, {r}')
                a(f'v_sub_u32 v251, v{TOK}, v251')
                if r % 2 == 0:
                    a('v_cmp_le_i32 vcc, 0, v251')
                    a(f'v_cndmask_b32 v{PM + 2 + r // 2}, 0, v240, vcc')
                    a(f'v_cndmask_b32 v{PM + r // 2}, v240, 0, vcc')
                a('v_and_b32 v251, 0x80000001, v251')
                a('v_cmp_eq_u32 vcc, 0, v251')
                a(f'v_cndmask_b32 v{MC + r}, v243, 0, vcc')
                a('v_cmp_eq_u32 vcc, 0x80000000, v251')
                a(f'v_cndmask_b32 v{MP + r}, v243, 0, vcc')
                a(f'v_cndmask_b32 v{MPA + r}, v{MP + r}, v243, s[62:63]')
            a(f'''
            v_add_u32 v{xK}, s32, v1
            v_lshl_add_u32 v{xT}, v3, 2, s32
            v_lshl_add_u32 v{xV}, v{TOK}, 4, s33
            v_lshlrev_b32 v{cN}, 4, v{GG}
            v_lshlrev_b32 v{cS}, 2, v{TOK}
            v_add_u32 v{hN}, s38, v{cN}
            v_add_u32 v{hS}, s39, v{cS}
            v_add_u32 v{cN}, {L_CS}, v{cN}
            v_add_u32 v{cS}, {L_CS}, v{cS}
            v_and_b32 v{vTR}, 60, v3
            v_lshl_add_u32 v{vTR}, v{vTR}, 2, s33
            ''')
            for u in range(4):
                a(f'v_mov_b32 v{204 + 4 * u + 3}, 0')
        for s in range(18):
            if s in RD:
                self.spin(RD.index(s), 242, 243, rdy, need='s71' if s == 8 else '4')
            if s == 11:
                self.bar('c1')
            if 1 <= s <= 10:
                queue += G[s + 7]
            if s == 8:
                queue += GH
            a.wvm(('p1', s))
            nxt = [(s + 1, r) for r in reads(s + 1)] if s < 17 else []
            if s == 8:
                nxt += [(('h', 0), r) for r in hreads(0)] + [(('h', 1), r) for r in hreads(1)]
            order = (2, 4, 3, 5, 6, 0, 1) if s == 17 else range(7)
            ms = []
            for t in order:
                w = vr(WR(s, t))
                for x in (1, 0):
                    xf = vr(AR(s, x))
                    c = '0' if s == 0 else vr(ACC(x, t))
                    if t in (4, 5):
                        ms.append(f'{M16} {vr(ACC(x, t))}, {xf}, {w}, {c}')
                    else:
                        ms.append(f'{M16} {vr(ACC(x, t))}, {w}, {xf}, {c}')
            hpos = {}
            if s >= 9:
                for k, p in enumerate((0, 2) if s == 17 else (4, 12)):
                    hs = 2 * (s - 9) + k
                    rb = 140 + 12 * k
                    ms[p:p] = [f'{M16} {vr(H1)}, {vr(rb + 4)}, {vr(rb)}, {"0" if hs == 0 else vr(H1)}',
                               f'{M16} {vr(H2)}, {vr(rb)}, {vr(rb + 8)}, {"0" if hs == 0 else vr(H2)}']
                    hpos[p] = hs
            for i, m in enumerate(ms):
                if i == 5 and s + 1 in RD:
                    a(f'ds_read_b32 v243, v242 offset:{4 * RD.index(s + 1)}')
                    rdy = a.lg
                if s == 17:
                    if i == 0:
                        a('s_waitcnt lgkmcnt(0)')
                else:
                    if i == 0:
                        a.wait_lg(rid[s][3])
                    if i == 6:
                        a.wait_lg(rid[s][-1])
                    if i in hpos:
                        a.wait_lg(rid[('h', hpos[i])][-1])
                a(m)
                if i - 1 in hpos and hpos[i - 1] + 2 < 18:
                    hs = hpos[i - 1] + 2
                    nxt += [(('h', hs), r) for r in hreads(hs)]
                if i % 5 == 1 and queue:
                    self.run(queue.pop(0))
                elif nxt:
                    emit_read(*nxt.pop(0))
                if s >= 2 and side:
                    a.emit(side.pop(0))
                elif s >= 12 and side2:
                    a.emit(side2.pop(0))
            for r in nxt:
                emit_read(*r)
        assert not queue and not side and not side2
        self.stamp('p1.mfma')
        CS = 84
        cs = {0: CS, 1: CS + 4, 2: CS + 8, 3: CS + 12, 6: CS + 16, 4: CS + 20, 5: CS + 21}
        self.exec_mask(0x0001000100010001)
        a(f'ds_write_b128 v{hN}, {vr(H1)}')
        self.exec_mask(0xffff)
        a(f'ds_write_b32 v{hS}, v{H2}')
        self.exec_mask(-1)
        a(f'ds_read_b128 v[220:223], v{hN}')
        a(f'ds_read_b32 v224, v{hS}')
        for x in (2, 1, 0):
            a(f'ds_read_b128 {vr(PR + 8 * x)}, v241 offset:{128 * x}')
            a(f'ds_read_b128 {vr(PR + 8 * x + 4)}, v241 offset:{128 * x + 64}')
        a('s_waitcnt lgkmcnt(8)')
        self.bar('t1')
        a(f'ds_read_b128 {vr(cs[2])}, v{cN} offset:{64 * 2}')
        a(f'ds_read2_b32 {vr(cs[4], 2)}, v{cS} offset0:{16 * 4} offset1:{16 * 5}')
        for t in (3, 6, 0, 1):
            a(f'ds_read_b128 {vr(cs[t])}, v{cN} offset:{64 * t}')
        for q in TQD + (108,):
            a(f'v_mov_b32 v{q + 1}, v16')
            a(f'v_mov_b32 v{q + 3}, v16')

        def cen_n(acc, c, x):
            for r in (0, 2):
                a(f'v_pk_fma_f32 {vr(acc + r, 2)}, {vr(c + r, 2)}, {NR(x)}, {vr(acc + r, 2)} op_sel_hi:[1,0,1]')

        def scl_n(acc, x):
            for r in (0, 2):
                a(f'v_pk_mul_f32 {vr(acc + r, 2)}, {vr(acc + r, 2)}, {NR(x)} op_sel:[0,1] op_sel_hi:[1,1]')

        def norm_s(acc, h, x, c=None):
            for r in (0, 2):
                a(f'v_pk_fma_f32 {vr(acc + r, 2)}, {vr(PR + 8 * x + r, 2)}, {vr(c or cs[4], 2)}, {vr(acc + r, 2)} '
                  f'op_sel:[0,{h},0] op_sel_hi:[1,{h},1]')
            for r in (0, 2):
                a(f'v_pk_mul_f32 {vr(acc + r, 2)}, {vr(acc + r, 2)}, {vr(PR + 8 * x + 4 + r, 2)}')

        def pack(dst, acc):
            a(f'v_cvt_pk_bf16_f32 v{dst}, v{acc}, v{acc + 1}')
            a(f'v_cvt_pk_bf16_f32 v{dst + 1}, v{acc + 2}, v{acc + 3}')

        def tail_tile(x):
            T = ACC(x, 6)
            cen_n(T, cs[6], x)
            a(f'v_pk_mul_f32 {vr(T, 2)}, {vr(T, 2)}, {vr(QC(x), 2)} op_sel_hi:[1,0]')
            a(f'v_pk_mul_f32 {vr(T + 2, 2)}, {vr(T + 2, 2)}, {NR(x)} op_sel:[0,1] op_sel_hi:[1,1]')
            a(f'v_cvt_pk_bf16_f32 v{TQD[x]}, v{T}, v{T + 1}')
            for d in (TQD[x] + 2, KO(0, x + 1) + 2, KO(1, x + 1) + 2):
                a(f'v_cvt_pk_bf16_f32 v{d}, v{T + 2}, v{T + 3}')

        def kv_head(x, h):
            cen_n(ACC(x, 2 + h), cs[2 + h], x)
            norm_s(ACC(x, 4 + h), h, x)
            scl_n(ACC(x, 2 + h), x)
            pack(VV(h) + 2 * x + 2, ACC(x, 4 + h))
            pack(KO(h, x + 1), ACC(x, 2 + h))

        a('s_waitcnt lgkmcnt(10)')
        cen_n(H1, 220, 2)
        norm_s(H2, 0, 2, 224)
        scl_n(H1, 2)
        LH, LE = a.label('HT'), a.label('HE')
        a(f'''
        s_cmp_ge_u32 s17, 2
        s_cbranch_scc1 {LH}
        s_mul_i32 s28, s17, {512 - 2304}
        v_add_u32 v226, s28, v{xK}
        ''')
        pack(H1, H1)
        pack(H2, H2)
        a(f'''
        ds_write_b64 v226, {vr(H1, 2)}
        ds_write_b64 v226, {vr(H2, 2)} offset:1024
        s_branch {LE}
        {LH}:
        v_subrev_u32 v226, s32, v{xT}
        v_subrev_u32 v227, s33, v{xV}
        v_add_u32 v226, {L_EX + 2048}, v226
        v_add_u32 v227, {L_VT}, v227
        v_cvt_pk_bf16_f32 v108, v{H1}, v{H1 + 1}
        v_cvt_pk_bf16_f32 v110, v{H1 + 2}, v{H1 + 3}
        ds_write_b32 v226, v110
        ''')
        self.exec_mask(0x0000ffff00000000)
        a('ds_write_b128 v227, v[108:111]')
        self.exec_mask(-1)
        a(f'{LE}:')
        a('s_waitcnt lgkmcnt(6)')
        kv_head(1, 0)
        a('s_waitcnt lgkmcnt(4)')
        kv_head(1, 1)
        tail_tile(1)
        LS = a.label('NOEX')
        a('s_cmp_eq_u32 s17, 3')
        a(f's_cbranch_scc1 {LS}')
        for h in range(2):
            a(f'ds_write_b64 v{xK}, {vr(KO(h, 2), 2)} offset:{2304 + 512 * h}')
            a(f'ds_write_b64 v{xK}, {vr(VV(h) + 4, 2)} offset:{2304 + 1024 + 512 * h}')
        a(f'ds_write_b32 v{xT}, v{KO(0, 2) + 2} offset:{2304 + 2048}')
        a(f'{LS}:')
        tail_tile(0)
        self.exec_mask(0x0000ffff00000000)
        a(f'ds_write_b128 v{xV}, {vr(TQD[1])} offset:512')
        a(f'ds_write_b128 v{xV}, {vr(TQD[0])} offset:256')
        self.exec_mask(-1)
        kv_head(0, 0)
        kv_head(0, 1)
        a('s_waitcnt lgkmcnt(0)')
        self.bar('t2')
        for h in range(2):
            a(f'ds_read_b64 {vr(KO(h, 0), 2)}, v{xK} offset:{512 * h}')
            a(f'ds_read_b32 v{KO(h, 0) + 2}, v{xT} offset:2048')
        for h in range(2):
            a(f'ds_read_b64 {vr(VV(h), 2)}, v{xK} offset:{1024 + 512 * h}')
            for y in range(3):
                a(f'ds_read_b64_tr_b16 {vr(VT[h] + 2 * y, 2)}, v{vTR} offset:{256 * y + 8 * h}')
        units = [(x, h) for x in (1, 0) for h in range(2)]
        SS = lambda u: (56, 64, 28, 36)[u]
        PP = lambda u: (48, 52, 20, 24)[u]
        OM = lambda u: 112 + 8 * u
        TM = lambda u: 72 + 2 * u

        def qk(u):
            x, h = units[u]
            a(f'{M16} {vr(SS(u))}, {vr(KO(h, x))}, {vr(QO(x, h))}, {vr(MPA if x == 0 else MP)}')
            a(f'{M16} {vr(SS(u) + 4)}, {vr(KO(h, x + 1))}, {vr(QO(x, h))}, {vr(MC)}')
        for u, (x, h) in enumerate(units):
            cen_n(ACC(x, h), cs[h], x)
            a(f'v_cndmask_b32 v{QO(x, h) + 2}, 0, v{TQD[x]}, s[{72 + 2 * h}:{73 + 2 * h}]')
            pack(QO(x, h), ACC(x, h))
            if u == 3:
                a('s_waitcnt lgkmcnt(8)')
            if u >= 1:
                qk(u - 1)

        def mx(u):
            S, m = SS(u), TM(u)
            a(f'v_max3_f32 v{S}, v{S}, v{S + 1}, v{S + 4}')
            a(f'v_max3_f32 v{S + 2}, v{S + 2}, v{S + 3}, v{S + 6}')
            a(f'v_max_f32 v{S}, v{S}, v{S + 5}')
            a(f'v_max_f32 v{S + 2}, v{S + 2}, v{S + 7}')
            a(f'v_max_f32 v{m}, v{S}, v{S + 2}')
            a(f'v_max_f32 v{m + 1}, v{S}, v{S + 2}')
        qk(3)
        for u in range(4):
            mx(u)
        for u in range(4):
            a(f'v_permlane32_swap_b32 v{TM(u)}, v{TM(u) + 1}')
        for u in range(4):
            a(f'v_max_f32 v{TM(u)}, v{TM(u)}, v{TM(u) + 1}')
        for u in range(4):
            a(f'v_mov_b32 v{TM(u) + 1}, v{TM(u)}')
        for u in range(4):
            a(f'v_permlane16_swap_b32 v{TM(u)}, v{TM(u) + 1}')
        for u in range(4):
            a(f'v_max_f32 v{TM(u)}, v{TM(u)}, v{TM(u) + 1}')
        for u in range(4):
            for i in (0, 2):
                a(f'v_sub_f32 v{SS(u) + i}, v{SS(u) + i}, v{TM(u)}')
        for u in range(4):
            for i in (0, 2):
                a(f'v_mul_f32 v{SS(u) + i}, v{SS(u) + i}, v{QC(units[u][0]) + 1}')
        for u in range(4):
            for i in (0, 2):
                a(f'v_exp_f32 v{SS(u) + i}, v{SS(u) + i}')
        a('s_waitcnt lgkmcnt(0)')

        def pv(u):
            x, h = units[u]
            a(f'{M16} {vr(OM(u) + 4)}, {vr(VT[h] + 2 * x)}, {vr(PP(u))}, 0')
            a(f'{M16} {vr(OM(u))}, {vr(VV(h) + 2 * x)}, {vr(PP(u))}, 0')
        for u in range(4):
            S = SS(u)
            for i in (0, 2):
                a(f'v_cvt_pk_bf16_f32 v{S + i}, v{S + i}, v{S + i}')
            for k in range(4):
                a(f'v_and_b32 v{PP(u) + k}, v{S + 2 * (k % 2)}, v{PM + k}')
            if u >= 1:
                pv(u - 1)
        a(f'v_rcp_f32 v{OM(0) + 6}, v{OM(0) + 6}')
        pv(3)

        def fin(u):
            x, h = units[u]
            O = OM(u)
            d = 84 + 8 * x
            if u < 3:
                a(f'v_rcp_f32 v{OM(u + 1) + 6}, v{OM(u + 1) + 6}')
            for i in (0, 2, 4):
                a(f'v_pk_mul_f32 {vr(O + i, 2)}, {vr(O + i, 2)}, {vr(O + 6, 2)} op_sel_hi:[1,0]')
            a(f'v_cvt_pk_bf16_f32 v{d + 2 * h}, v{O}, v{O + 1}')
            a(f'v_cvt_pk_bf16_f32 v{d + 2 * h + 1}, v{O + 2}, v{O + 3}')
            a(f'v_cvt_pk_bf16_f32 v{d + 4 + h}, v{O + 4}, v{O + 5}')
        for u in range(4):
            fin(u)

        def st(f):
            for x in range(2):
                a(f'buffer_store_dwordx4 {vr(84 + 8 * x)}, v0, {WS}, s{34 + x} offen{f}')
            self.exec_mask(0xffff)
            for x in range(2):
                a(f'buffer_store_dwordx2 {vr(88 + 8 * x, 2)}, v1, {WS}, s{36 + x} offen{f}')
            self.exec_mask(-1)
        self.scoped(st, 's68')
        LR = a.label('NORES')
        a(f'''
        s_cmp_lg_u32 s19, 0
        s_cbranch_scc1 {LR}
        s_lshl_b32 s28, s21, 11
        s_add_u32 s29, s88, {ACT}
        s_add_u32 s28, s28, s29
        s_lshl_b32 s30, s21, 8
        s_add_u32 s29, s29, s30
        s_add_u32 s29, s29, 16384
        v_mov_b32 v12, 0
        v_mov_b32 v13, 0
        buffer_load_dwordx4 v[4:7], v0, {WS}, s28 offen sc1
        buffer_load_dwordx4 v[8:11], v0, {WS}, s28 offen offset:1024 sc1
        s_mov_b32 exec_hi, 0
        buffer_load_dwordx2 v[12:13], v1, {WS}, s29 offen sc1
        s_mov_b64 exec, -1
        v_and_b32 v14, 31, v3
        v_lshlrev_b32 v14, 8, v14
        s_and_b32 s28, s16, 0xe0
        s_lshl_b32 s28, s28, 8
        s_add_u32 s28, s28, {FLAG + 132}
        buffer_load_dword v50, v14, {WS}, s28 offen sc1
        {LR}:
        ''')
        self.stamp('p1.att')

    def a_groups(self, key, src_off, stats=None):
        a = self.a
        a('s_add_u32 s48, s88, s24')
        a(f's_add_u32 s48, s48, {src_off}')
        self.tile_sgprs(48)
        with a.capture() as L:
            if stats is not None:
                raw, so = stats
                a(f'buffer_load_dwordx2 {vr(raw, 2)}, v1, {WS}, {so} offen sc1')
                a(f'buffer_load_dwordx2 {vr(raw + 2, 2)}, v1, {WS}, {so} offen offset:512 sc1')
                a.mark_vm((key, 'st'))
            for s in range(18):
                self.load_frag(s, 52 + 4 * s, 48)
                a.mark_vm((key, s))
        return groups(L)

    def proj(self, which):
        a = self.a
        ACCR, NS = 20, 30
        slot = lambda f: 132 + 4 * (f % NS)
        rd = lambda f: f'ds_read_b128 {vr(slot(f))}, v{49 if f >= 60 else 0} offset:{(f % 60) * 1024}'
        dst = self.B[2] if which == 2 else self.B[4]
        a(f'''
        v_min_u32 v14, {15 if which == 2 else 7}, v3
        v_lshlrev_b32 v14, 8, v14
        s_lshl_b32 s30, {'s22, 12' if which == 2 else 's20, 11'}
        s_add_u32 s30, s30, {FLAG}
        s_add_u32 s31, s26, {0 if which == 2 else 2}
        v_add_u32 v49, {60 * 1024}, v0
        s_add_u32 s34, s88, s24
        s_add_u32 s34, s34, {dst}
        s_lshl_b32 s35, s21, 8
        s_add_u32 s35, s35, s34
        s_add_u32 s35, s35, 16384
        s_lshl_b32 s36, s21, 11
        s_add_u32 s34, s34, s36
        s_lshl_b32 s36, s21, 7
        s_add_u32 s36, s36, s89
        s_add_u32 s36, s36, s25
        s_add_u32 s36, s36, {self.ST[1] if which == 2 else self.ST[2]}
        v_and_b32 v48, 0x78, v1
        ''')
        AG = self.a_groups(which, self.B[1] if which == 2 else self.B[3])
        self.signal('s31', sel='s68')
        if which == 2:
            a(f'''
            v_cmp_ne_u32 vcc, s84, v50
            s_cmp_eq_u64 vcc, 0
            s_cselect_b32 s28, {0 if self.no_local else 1}, 0
            s_cmp_eq_u32 s19, 0
            s_cselect_b32 s68, s28, s68
            ''')
        self.stamp('p1.flag' if which == 2 else 'p4.flag')
        self.bar(f'v{which}')
        rid = {}
        for f in range(10):
            a(rd(f)); rid[f] = a.lg
            a(f'v_lshlrev_b32 v{ACCR + 2 * f}, 16, v{4 + f}')
            a(f'v_and_b32 v{ACCR + 2 * f + 1}, 0xffff0000, v{4 + f}')

        def more():
            for f in range(10, 20):
                a(rd(f)); rid[f] = a.lg
        self.poll_early('s30', 's31', more)
        self.stamp(f'p{which}.polled')
        for i in range(11):
            self.run(AG.pop(0))
            if i < 10:
                a(rd(20 + i)); rid[20 + i] = a.lg
        nf = NS
        for s in range(18):
            a.wvm((which, s))
            a.wait_lg(rid[5 * s + 4])
            if s == 17:
                self.bar(f'm{which}')
            for t in range(5):
                a(f'{M16} {vr(ACCR + 4 * t)}, {vr(slot(5 * s + t))}, {vr(52 + 4 * s)}, {vr(ACCR + 4 * t)}')
                if t == 0:
                    if AG:
                        self.run(AG.pop(0))
                elif nf < 90:
                    a(rd(nf)); rid[nf] = a.lg; nf += 1
        self.stamp(f'p{which}.mfma')
        for i in range(10):
            a(f'v_cvt_pk_bf16_f32 v{4 + i}, v{ACCR + 2 * i}, v{ACCR + 2 * i + 1}')
        if which == 5:
            a('s_cmp_eq_u32 s19, 1')
            a('s_cbranch_scc1 L_FINAL')
        self.stats_emit(['v[4:7]', 'v[8:11]'], 'v[12:13]', 40, 44)

        def st(f):
            a(f'buffer_store_dwordx4 v[4:7], v0, {WS}, s34 offen{f}')
            a(f'buffer_store_dwordx4 v[8:11], v0, {WS}, s34 offen offset:1024{f}')
            a('s_mov_b32 exec_hi, 0')
            a(f'buffer_store_dwordx2 v[12:13], v1, {WS}, s35 offen{f}')
            self.exec_mask(-1)
            a('s_nop 2')
            self.stats_store(40, 44, 's36', 'v48', f)
        self.scoped(st, 's68')

    def p3(self):
        a = self.a
        QA, RAW, NM, RS, PR, KA, KC = 20, 40, 42, 43, 44, 124, 140
        Q1, Q2 = 132, 140
        TOK, GG = 168, 169
        NS = 19
        slot = lambda f: 176 + 4 * (f % NS)
        LNP, LJ = a.label('NOPROD'), a.label('JOIN')
        a(f'''
        v_min_u32 v14, 7, v3
        v_lshlrev_b32 v14, 8, v14
        s_lshl_b32 s32, s20, 11
        s_add_u32 s32, s32, {FLAG}
        s_add_u32 s33, s26, 1
        s_add_u32 s58, s89, s25
        s_add_u32 s58, s58, {self.ST[1]}
        v_and_b32 v{TOK}, 15, v3
        v_lshrrev_b32 v{GG}, 4, v3
        s_cmp_lg_u32 s21, 0
        s_cbranch_scc1 {LNP}
        ''')
        rdk = lambda f: f'ds_read_b128 {vr(slot(f))}, v170 offset:{f * 1024}'
        a(f'''
        v_add_u32 v170, {L_KVW}, v0
        v_lshlrev_b32 v171, 4, v{GG}
        v_lshlrev_b32 v172, 2, v{TOK}
        v_add_u32 v171, {L_CS + 12 * 64}, v171
        v_add_u32 v172, {L_CS + 12 * 64}, v172
        ds_read_b128 {vr(KC)}, v171
        ds_read_b128 {vr(KC + 4)}, v171 offset:128
        ds_read_b32 v{KC + 8}, v172 offset:64
        ds_read_b32 v{KC + 9}, v172 offset:128
        s_lshl_b32 s28, s17, 9
        s_add_u32 s28, s28, {L_ST}
        v_lshl_add_u32 v171, v{TOK}, 2, s28
        v_lshl_add_u32 v172, v{GG}, 4, s28
        s_lshr_b32 s28, s20, 2
        s_mul_i32 s28, s28, {GRP}
        s_mul_i32 s29, s19, {KVSTR}
        s_add_u32 s28, s28, s29
        s_add_u32 s28, s28, {KVIMG}
        s_and_b32 s29, s20, 3
        s_lshl_b32 s34, s29, 8
        s_add_u32 s34, s34, s28
        s_lshr_b32 s30, s17, 1
        s_lshl_b32 s31, s30, 2
        s_add_u32 s34, s34, s31
        s_and_b32 s31, s17, 1
        s_lshl_b32 s35, s31, 7
        s_add_u32 s34, s34, s35
        s_lshl_b32 s29, s29, 1
        s_add_u32 s29, s29, s30
        s_mul_i32 s29, s29, {STEP}
        s_add_u32 s28, s28, s29
        s_add_u32 s28, s28, 1024
        s_lshl_b32 s35, s31, 8
        s_add_u32 s35, s35, s28
        s_mul_i32 s36, s31, 608
        s_add_u32 s36, s36, s28
        s_add_u32 s36, s36, 1024
        v_mul_u32_u24 v173, 304, v{GG}
        v_lshl_add_u32 v173, v{TOK}, 4, v173
        v_lshlrev_b32 v174, 8, v{GG}
        v_lshl_add_u32 v174, v{TOK}, 4, v174
        s_lshl_b32 s28, s17, 2
        s_add_u32 s28, s28, {L_KM}
        v_mov_b32 v175, s28
        ''')
        AG = self.a_groups('3p', self.B[2], (RAW, 's58'))
        self.signal('s33', sel='s68')
        self.stamp('p2.flag')
        rid = {}
        for f in range(6):
            a(rdk(f)); rid[f] = a.lg
        self.poll('s32', 's33')
        self.stamp('p3.polled')
        for i in range(14):
            self.run(AG.pop(0))
            if i < 12:
                a(rdk(6 + i)); rid[6 + i] = a.lg
        with a.capture() as stat:
            self.stats_finish(RAW)
            a(f'''
            ds_write_b32 v171, v{NM}
            ds_write_b32 v171, v{RS} offset:64
            ds_read_b128 {vr(PR)}, v172
            ds_read_b128 {vr(PR + 4)}, v172 offset:64
            ''')
        nf = 18
        for s in range(18):
            a.wvm(('3p', s))
            a.wait_lg(rid[3 * s + 2])
            x = vr(52 + 4 * s)
            z = lambda i: '0' if s == 0 else vr(KA + 4 * i)
            w = lambda t: vr(slot(3 * s + t))
            ms = [f'{M16} {vr(KA)}, {w(0)}, {x}, {z(0)}', f'{M16} {vr(KA + 8)}, {x}, {w(1)}, {z(2)}',
                  f'{M16} {vr(KA + 4)}, {w(2)}, {x}, {z(1)}', f'{M16} {vr(KA + 12)}, {x}, {w(2)}, {z(3)}']
            for i, m in enumerate(ms):
                a(m)
                if i == 0:
                    if AG:
                        self.run(AG.pop(0))
                elif nf < 54:
                    a(rdk(nf)); rid[nf] = a.lg; nf += 1
                if stat:
                    a.emit(stat.pop(0))
        assert not stat and not AG
        a('s_waitcnt lgkmcnt(0)')
        for i in (0, 1, 2, 3, 8, 9, 10, 11, 4, 5, 12, 13, 14, 15):
            a(f'v_fmac_f32 v{KA + i}, v{KC + (i if i < 8 else 6 + i // 4)}, v{NM if i < 8 else PR + i % 4}')
        for i in (0, 1, 2, 3, 4, 5, 8, 9, 10, 11, 12, 13, 14, 15):
            a(f'v_mul_f32 v{KA + i}, v{KA + i}, v{RS if i < 8 else PR + 4 + i % 4}')
        for d, src in ((152, KA), (156, KA + 8), (160, KA + 12)):
            for k in range(4):
                a(f'v_cvt_pk_bf16_f32 v{d + k}, v{src + 2 * (k % 2)}, v{src + 2 * (k % 2) + 1}')
        a(f'v_cvt_pk_bf16_f32 v150, v{KA + 4}, v{KA + 5}')
        a('v_dot2_f32_bf16 v151, v152, v152, 0')
        a('v_dot2_f32_bf16 v151, v153, v153, v151')
        a('v_permlane16_swap_b32 v152, v154')
        a('v_permlane16_swap_b32 v153, v155')
        for d in (156, 160):
            a(f'v_permlane32_swap_b32 v{d}, v{d + 2}')
            a(f'v_permlane32_swap_b32 v{d + 1}, v{d + 3}')
        self.exec_mask(0x0000ffff0000ffff)
        a(f'buffer_store_dwordx4 v[152:155], v174, {WS}, s35 offen sc1')
        self.exec_mask(0xffffffff)
        a(f'buffer_store_dwordx4 v[156:159], v173, {WS}, s36 offen sc1')
        a('s_mov_b32 exec_lo, 0xffff')
        a(f'buffer_store_dword v150, v1, {WS}, s34 offen sc1')
        a('s_mov_b32 exec_lo, 0x000c000c')
        a(f'buffer_store_dwordx4 v[160:163], v173, {WS}, s36 offen offset:224 sc1')
        self.exec_mask(-1)
        a('v_dot2_f32_bf16 v151, v150, v150, v151')
        self.allred(151, 164)
        self.rowmax(151)
        a('ds_write_b32 v175, v151')
        a(f's_branch {LJ}')
        a(f'{LNP}:')
        AG = self.a_groups('3n', self.B[2], (RAW, 's58'))
        self.signal('s33', sel='s68')
        self.stamp('p2.flag', again=True)
        self.poll('s32', 's33')
        self.stamp('p3.polled', again=True)
        for g in AG:
            self.run(g)
        a.wvm(('3n', 'st'))
        self.stats_finish(RAW)
        a(f'{LJ}:')
        self.stamp('p3.join')
        self.bar('v3')
        rd = lambda f: f'ds_read_b128 {vr(slot(f))}, v{170 if f >= 60 else 0} offset:{(f % 60) * 1024}'
        rid = {}
        for nf in range(NS - 1):
            a(rd(nf)); rid[nf] = a.lg
        nf = NS - 1
        a(f'''
        v_add_u32 v170, {60 * 1024}, v0
        v_lshlrev_b32 v171, 4, v{GG}
        v_add_u32 v171, {L_CS + 7 * 64}, v171
        ''')
        for s in range(18):
            if s == 3:
                LS = a.label('KVSIG')
                a('s_cmp_lg_u32 s21, 0')
                a(f's_cbranch_scc1 {LS}')
                self.arrive(LS)
                a(f'''
                v_mov_b32 v164, {L_KM}
                ds_read_b128 v[164:167], v164
                s_add_u32 s28, s18, 1
                v_mov_b32 v254, s28
                s_lshl_b32 s28, s19, 13
                s_lshl_b32 s29, s20, 8
                s_add_u32 s28, s28, s29
                s_add_u32 s28, s28, {KVFLAG}
                s_waitcnt lgkmcnt(0)
                v_max3_f32 v255, v164, v165, v166
                v_max_f32 v255, v255, v167
                ''')
                a.lg -= 2
                self.exec_mask(0xffff)
                a(f'buffer_store_dwordx2 v[254:255], v1, {WS}, s28 offen sc1')
                a.vm -= 1
                self.exec_mask(-1)
                a(f'{LS}:')
            a.wvm(('3n', s))
            a.wait_lg(rid[5 * s + 4])
            for t in range(5):
                a(f'{M16} {vr(QA + 4 * t)}, {vr(slot(5 * s + t))}, {vr(52 + 4 * s)}, {"0" if s == 0 else vr(QA + 4 * t)}')
                if nf < 90:
                    a(rd(nf)); rid[nf] = a.lg; nf += 1
                elif nf < 95:
                    a(f'ds_read_b128 {vr(52 + 4 * (nf - 90))}, v171 offset:{64 * (nf - 90)}'); nf += 1
        qs = 18 ** -0.5 * math.log2(math.e)
        self.stamp('p3.done')
        a(f'v_mov_b32 v165, {L_KM + 32}')
        self.bar('k0')
        self.stamp('p4.polled')
        a('ds_read_b32 v165, v165')
        a(f'v_mul_f32 v{RS}, 0x{f2u(qs):x}, v{RS}')
        for c in range(2):
            for k in (1, 2, 4, 5, 6):
                a(f'v_mov_b32 v{Q2 + 8 * c + k}, 0')
        a('s_waitcnt lgkmcnt(0)')
        for i in range(20):
            a(f'v_fmac_f32 v{QA + i}, v{52 + i}, v{NM}')
        for i in range(16, 20):
            a(f'v_mul_f32 v{QA + i}, v{QA + i}, v{RS}')
        for c in range(2):
            b = Q2 + 8 * c
            for k in (0, 3, 7):
                a(f'v_cvt_pk_bf16_f32 v{b + k}, v{QA + 16 + 2 * c}, v{QA + 17 + 2 * c}')
        for i in range(16):
            a(f'v_mul_f32 v{QA + i}, v{QA + i}, v{RS}')
        for c in range(2):
            a(f'v_permlane32_swap_b32 v{Q2 + 8 * c + 4}, v{Q2 + 8 * c + 7}')
        for k in range(8):
            a(f'v_cvt_pk_bf16_f32 v{Q1 + k}, v{QA + 2 * k}, v{QA + 2 * k + 1}')
        for c in range(2):
            b = Q2 + 8 * c
            a(f'v_mov_b32 v{b + 7}, v{b + 4}')
            a(f'v_dot2_f32_bf16 v{156 + c}, v{b}, v{b}, 0')
        for c in range(2):
            a(f'v_permlane16_swap_b32 v{Q1 + 4 * c}, v{Q1 + 4 * c + 2}')
            a(f'v_permlane16_swap_b32 v{Q1 + 4 * c + 1}, v{Q1 + 4 * c + 3}')
        for k in range(4):
            for c in range(2):
                a(f'v_dot2_f32_bf16 v{156 + c}, v{Q1 + 4 * c + k}, v{Q1 + 4 * c + k}, v{156 + c}')

    def kv_poll_setup(self):
        self.a(f'''
        v_and_b32 v14, 31, v3
        v_lshlrev_b32 v14, 8, v14
        s_lshl_b32 s30, s19, 13
        s_add_u32 s30, s30, {KVFLAG}
        s_add_u32 s31, s18, 1
        ''')

    def p4(self):
        a = self.a
        S = (20, 36)
        SH = (52, 68)
        O = (84, 100)
        P = (116, 124)
        Q1 = (132, 136)
        Q2 = lambda c, t: 140 + 8 * c + 2 * (t % 4)
        K1 = lambda t: 168 + 4 * (t % 2)
        V0 = lambda t: 176 + 8 * (t % 2)
        V1 = lambda t: 180 + 8 * (t % 2)
        K2 = lambda t: 192 + 2 * ((t // 4) % 2)
        vK, vK2, vV = 160, 161, 162
        a(f'''
        v_mov_b32 v{vK}, v0
        v_mov_b32 v{vK2}, v1
        v_and_b32 v163, 31, v3
        v_lshrrev_b32 v164, 5, v3
        v_mul_u32_u24 v164, 304, v164
        v_lshl_add_u32 v{vV}, v163, 4, v164
        v_mov_b32 v164, 0x400000
        v_cmp_lt_u32 vcc, 18, v163
        v_cndmask_b32 v{vV}, v{vV}, v164, vcc
        s_add_u32 s32, s88, s24
        s_add_u32 s32, s32, {self.B[3]}
        s_lshl_b32 s33, s21, 8
        s_add_u32 s33, s33, s32
        s_add_u32 s33, s33, 16384
        s_lshl_b32 s34, s21, 11
        s_add_u32 s32, s32, s34
        ''')
        for c in range(2):
            self.allred(156 + c, 158, only32=True)
        for i in range(32):
            a(f'v_mov_b32 v{O[0] + i}, 0')
        for i in range(4):
            a(f'v_mov_b32 v{P[1] + 4 + i}, 0')
            a(f'v_mov_b32 v{V1(1) + i}, 0')
        for c in range(2):
            a(f'v_mul_f32 v{156 + c}, v{156 + c}, v165')
            a(f'v_sqrt_f32 v{156 + c}, v{156 + c}')
        thr = -1.0 if self.force_fallback else BTHR
        a(f'v_mov_b32 v158, 0x{f2u(thr):x}')
        for c in range(2):
            a(f'v_mul_f32 v{156 + c}, 0x{f2u(1.002):x}, v{156 + c}')
        a('v_cmp_nle_f32 s[28:29], v156, v158')
        a('v_cmp_nle_f32 vcc, v157, v158')
        a('s_mov_b32 s34, 1')
        a('s_or_b64 vcc, vcc, s[28:29]')
        LFB, LGO = a.label('FALLBACK'), a.label('GO')
        a(f's_cbranch_vccnz {LFB}')
        for c in range(2):
            for i in range(16):
                a(f'v_sub_f32 v{SH[c] + i}, 0, v{156 + c}')
        self.bar('k1')
        a(f'{LGO}:')
        koff = lambda t: (t // 8) * GRP + 1024 + (t % 8) * STEP
        k2off = lambda t: (t // 8) * GRP + ((t % 8) // 4) * 512
        a(f'ds_read_b64 {vr(K2(0), 2)}, v{vK2} offset:{k2off(0)}')
        a(f'ds_read_b128 {vr(K1(0))}, v{vK} offset:{koff(0)}')
        a(f'ds_read_b128 {vr(K1(1))}, v{vK} offset:{koff(1)}')
        a(f'ds_read_b128 {vr(V0(0))}, v{vV} offset:{koff(0) + 1024}')
        a(f'ds_read_b128 {vr(V1(0))}, v{vV} offset:{koff(0) + 1024 + 608}')
        a('s_waitcnt lgkmcnt(3)')
        a(f'{M32H} {vr(S[0], 16)}, {vr(K2(0), 2)}, {vr(Q2(0, 0), 2)}, {vr(SH[0], 16)}')
        a(f'{M32} {vr(S[0], 16)}, {vr(K1(0))}, {vr(Q1[0])}, {vr(S[0], 16)}')
        self.stamp('p4.start')
        LA, LD = a.label('ATT'), a.label('ATTD')
        a('s_mov_b32 s35, 0')
        a('s_waitcnt lgkmcnt(0)')
        a('s_nop 8')
        a('.p2align 6')
        a(f'{LA}:')
        e = lambda c, i: f'v_exp_f32 v{S[c] + i}, v{S[c] + i}'
        cv = lambda c, i: f'v_cvt_pk_bf16_f32 v{P[c] + i}, v{S[c] + 2 * i}, v{S[c] + 2 * i + 1}'
        for t in range(8):
            for c in range(2):
                n = 1 - c
                tn = t + c
                tp = t - 1 + c
                g = [[], [], [], []]
                if c == 0:
                    g[1].append(f'ds_read_b128 {vr(K1(t))}, v{vK} offset:{koff(t + 2)}')
                    g[2].append(f'ds_read_b128 {vr(V1(t + 1))}, v{vV} offset:{koff(t + 1) + 1024 + 608}')
                    g[3].append(f'ds_read_b128 {vr(V0(t + 1))}, v{vV} offset:{koff(t + 1) + 1024}')
                else:
                    if t in (1, 5):
                        g[1].append(f'ds_read_b64 {vr(K2(t + 3), 2)}, v{vK2} offset:{k2off(t + 3)}')
                    g[3].append('s_waitcnt lgkmcnt(0)')
                    if t == 7:
                        g[1].append('s_add_u32 s35, s35, 1')
                        g[2].append('s_cmp_lg_u32 s35, s34')
                a(f'{M32H} {vr(S[n], 16)}, {vr(K2(tn), 2)}, {vr(Q2(n, tn), 2)}, {vr(SH[n], 16)}')
                for x in g[0] + [e(c, 0), e(c, 1), e(c, 2), cv(c, 0), e(c, 3)]: a(x)
                a(f'{M32} {vr(S[n], 16)}, {vr(K1(tn))}, {vr(Q1[n])}, {vr(S[n], 16)}')
                for x in g[1] + [e(c, 4), cv(c, 1), e(c, 5), e(c, 6), cv(c, 2), e(c, 7)]: a(x)
                a(f'{M32} {vr(O[n], 16)}, {vr(V1(tp))}, {vr(P[n] + 4)}, {vr(O[n], 16)}')
                for x in g[2] + [e(c, 8), cv(c, 3), e(c, 9), e(c, 10), cv(c, 4), e(c, 11)]: a(x)
                a(f'{M32} {vr(O[c], 16)}, {vr(V0(t))}, {vr(P[c])}, {vr(O[c], 16)}')
                for x in g[3] + [e(c, 12), cv(c, 5), e(c, 13), e(c, 14), e(c, 15), cv(c, 6), cv(c, 7)]: a(x)
        a(f'''
        v_add_u32 v{vK}, {GRP}, v{vK}
        v_add_u32 v{vK2}, {GRP}, v{vK2}
        v_add_u32 v{vV}, {GRP}, v{vV}
        s_cbranch_scc1 {LA}
        s_cmp_eq_u32 s35, 8
        s_cbranch_scc1 {LD}
        s_cmp_eq_u32 s35, 1
        s_cselect_b32 s34, 5, 8
        ''')
        self.bar('k2')
        self.bars['C'].append('k3')
        a(f's_branch {LA}')
        a(f'{LFB}:')
        self.bar('k1', log=False)
        self.bar('k2', log=False)
        a('s_mov_b32 s34, 5')
        a(f'v_mov_b32 v156, 0x{f2u(-3.0e38):x}')
        a(f'v_mov_b32 v157, 0x{f2u(-3.0e38):x}')
        a('s_mov_b32 s35, 0')
        LM = a.label('MAXL')
        a(f'{LM}:')
        for t in range(8):
            if t % 4 == 0:
                a(f'ds_read_b64 {vr(K2(t), 2)}, v{vK2} offset:{k2off(t)}')
            a(f'ds_read_b128 {vr(K1(t))}, v{vK} offset:{koff(t)}')
            a('s_waitcnt lgkmcnt(0)')
            for c in range(2):
                a(f'{M32H} {vr(S[c], 16)}, {vr(K2(t), 2)}, {vr(Q2(c, t), 2)}, 0')
                a(f'{M32} {vr(S[c], 16)}, {vr(K1(t))}, {vr(Q1[c])}, {vr(S[c], 16)}')
            for c in range(2):
                for i in range(8):
                    a(f'v_max3_f32 v{156 + c}, v{156 + c}, v{S[c] + 2 * i}, v{S[c] + 2 * i + 1}')
        a(f'''
        v_add_u32 v{vK}, {GRP}, v{vK}
        v_add_u32 v{vK2}, {GRP}, v{vK2}
        s_add_u32 s35, s35, 1
        s_cmp_lt_u32 s35, 8
        s_cbranch_scc1 {LM}
        v_mov_b32 v{vK}, v0
        v_mov_b32 v{vK2}, v1
        ''')
        for c in range(2):
            self.allred(156 + c, 158, op='v_max_f32', only32=True)
        for c in range(2):
            for i in range(16):
                a(f'v_sub_f32 v{SH[c] + i}, 0, v{156 + c}')
        a(f's_branch {LGO}')
        a(f'{LD}:')
        a(f'{M32} {vr(O[1], 16)}, {vr(V1(7))}, {vr(P[1] + 4)}, {vr(O[1], 16)}')
        self.stamp('p4.loop')
        for c in range(2):
            o = O[c]
            a(f'v_mov_b32 v{o + 11}, v{o + 10}')
            a(f'v_permlane32_swap_b32 v{o + 10}, v{o + 11}')
            a(f'v_rcp_f32 v{o + 10}, v{o + 10}')
            for i in range(10):
                a(f'v_mul_f32 v{o + i}, v{o + i}, v{o + 10}')
            for k in range(4):
                a(f'v_cvt_pk_bf16_f32 v{116 + 4 * c + k}, v{o + 2 * k}, v{o + 2 * k + 1}')
            a(f'v_cvt_pk_bf16_f32 v{124 + c}, v{o + 8}, v{o + 9}')
        a('v_permlane16_swap_b32 v124, v125')

        def st(f):
            for c in range(2):
                a(f'buffer_store_dwordx4 {vr(116 + 4 * c)}, v0, {WS}, s32 offen offset:{1024 * c}{f}')
            a('s_mov_b32 exec_hi, 0')
            a(f'buffer_store_dwordx2 v[124:125], v1, {WS}, s33 offen{f}')
            self.exec_mask(-1)
        self.scoped(st, 's68')

    def x0_load(self):
        a = self.a
        LX = a.label('NOXT')
        a(f'''
        s_mov_b32 s64, s48
        s_mov_b32 s65, s49
        s_mov_b32 s66, {2048 * 1152}
        v_mul_u32_u24 v25, 1152, v20
        v_lshl_add_u32 v26, v21, 4, v25
        s_lshr_b32 s35, s16, 1
        s_mul_i32 s36, s35, {TILE}
        s_and_b32 s34, s16, 1
        s_lshl_b32 s33, s34, 2
        s_add_u32 s33, s33, s17
        s_mul_i32 s37, s33, 144
        s_add_u32 s37, s37, s36
        buffer_load_dwordx4 v[140:143], v26, s[64:67], s37 offen
        buffer_load_dwordx4 v[144:147], v26, s[64:67], s37 offen offset:64
        v_mov_b32 v148, 0
        v_mov_b32 v149, 0
        v_mov_b32 v150, 0
        v_mov_b32 v151, 0
        s_cmp_lg_u32 s17, 0
        s_cbranch_scc1 {LX}
        v_mad_u32_u24 v27, v21, 64, v25
        v_mad_u32_u24 v27, v21, 64, v27
        v_lshl_add_u32 v27, v21, 4, v27
        buffer_load_dwordx4 v[148:151], v27, s[64:67], s37 offen offset:128
        {LX}:
        ''')

    def x0_store(self):
        a = self.a
        LE, LL, LX4 = a.label('XE'), a.label('XST'), a.label('NOX4')
        self.stats_emit([vr(140 + 4 * i) for i in range(3)], None, 52, 56)
        a(f'''
        s_add_u32 s37, s36, {ACT}
        s_lshl_b32 s38, s35, 10
        s_add_u32 s38, s38, {STATS}
        v_lshlrev_b32 v60, 3, v20
        s_and_b32 s39, s35, 7
        s_lshl_b32 s31, s33, 11
        s_lshl_b32 s32, s33, 7
        s_lshl_b32 s34, s34, 10
        s_add_u32 s34, s34, 16384
        v_cndmask_b32 v52, v52, v53, s[42:43]
        v_cndmask_b32 v54, v54, v55, s[42:43]
        v_cndmask_b32 v57, v52, v54, s[44:45]
        {LL}:
        s_add_u32 s28, s37, s31
        s_add_u32 s29, s37, s34
        s_add_u32 s38, s38, s32
        buffer_store_dwordx4 v[140:143], v0, {WS}, s28 offen sc1
        buffer_store_dwordx4 v[144:147], v0, {WS}, s28 offen offset:1024 sc1
        s_cmp_lg_u32 s17, 0
        s_cbranch_scc1 {LX4}
        buffer_store_dwordx2 v[148:149], v2, {WS}, s29 offen sc1
        buffer_store_dwordx2 v[150:151], v2, {WS}, s29 offen offset:128 sc1
        {LX4}:
        s_mov_b64 exec, s[40:41]
        buffer_store_dwordx2 v[56:57], v60, {WS}, s38 offen sc1
        s_mov_b64 exec, -1
        s_cmp_lg_u32 s39, 7
        s_cbranch_scc1 {LE}
        s_mov_b32 s39, 0
        s_add_u32 s37, s22, 1
        s_and_b32 s37, s37, 15
        s_mul_i32 s37, s37, {HSLOT}
        s_add_u32 s37, s37, {HALO}
        s_add_u32 s38, s37, {TILE}
        s_branch {LL}
        {LE}:
        ''')

    def pcs(self, n):
        a = self.a
        a('s_lshl_b32 s78, s73, 6')
        a('s_add_u32 s77, s77, s78')
        a('v_lshlrev_b32 v30, 2, v3')
        for t in range(n):
            a(f'{M16} {vr(64 + 4 * t)}, {ONES}, {vr(104 + 4 * t)}, 0')
        self.exec_mask(0xffff)
        for t in range(n):
            a(f'buffer_store_dword v{64 + 4 * t}, v30, {WS}, s77 offen sc1')
            a('s_add_u32 s77, s77, 1152')
        self.exec_mask(-1)

    def mat_load(self):
        a = self.a
        a(f'''
        s_cmp_ge_u32 s39, 144
        s_cselect_b32 s71, 1, 0
        s_cmp_ge_u32 s39, 288
        s_cselect_b32 s71, 2, s71
        s_mul_i32 s72, s71, 144
        s_sub_u32 s72, s39, s72
        s_lshr_b32 s73, s72, 3
        s_and_b32 s72, s72, 7
        s_cmp_eq_u32 s71, 0
        s_cselect_b32 s8, s52, s62
        s_cselect_b32 s9, s53, s63
        s_cmp_eq_u32 s71, 1
        s_cselect_b32 s8, s56, s8
        s_cselect_b32 s9, s57, s9
        s_mov_b32 s10, {576 * 1152}
        s_mul_i32 s74, s73, 36
        s_cmp_eq_u32 s71, 0
        s_cselect_b32 s75, 18, 8
        s_cselect_b32 s76, 4, 18
        s_cselect_b32 s77, 8, 4
        s_lshr_b32 s78, s73, 1
        s_mul_i32 s78, s78, 72
        s_and_b32 s79, s73, 1
        s_lshl_b32 s80, s79, 5
        s_add_u32 s78, s78, s80
        s_cmp_eq_u32 s71, 1
        s_cselect_b32 s74, s78, s74
        s_cselect_b32 s75, 4, s75
        s_cselect_b32 s76, 8, s76
        s_cselect_b32 s77, 16, s77
        s_cselect_b32 s78, 64, 16
        s_cselect_b32 s80, 4, 36
        s_cselect_b32 s81, 2, 18
        s_mul_i32 s79, s79, 288
        s_add_u32 s78, s78, s79
        s_cmp_ge_u32 s73, 16
        s_cselect_b32 s74, s78, s74
        s_cselect_b32 s75, s80, s75
        s_cselect_b32 s76, 72, s76
        s_cselect_b32 s77, 144, s77
        s_cselect_b32 s81, s81, 2
        s_mul_i32 s74, s74, 1152
        s_mul_i32 s75, s75, 1152
        s_mul_i32 s76, s76, 1152
        s_mul_i32 s77, s77, 1152
        s_lshl_b32 s78, s72, 7
        s_add_u32 s74, s74, s78
        v_lshrrev_b32 v28, 1, v21
        v_mul_u32_u24 v28, s81, v28
        v_and_b32 v29, 1, v21
        v_add_u32 v28, v28, v29
        v_mul_u32_u24 v28, 1152, v28
        v_lshl_add_u32 v28, v20, 4, v28
        s_mov_b32 s79, s38
        ''')
        for i in range(8):
            a('s_mov_b32 s78, s74')
            if i & 1: a('s_add_u32 s78, s78, s75')
            if i & 2: a('s_add_u32 s78, s78, s76')
            if i & 4: a('s_add_u32 s78, s78, s77')
            a(f's_add_u32 m0, s79, {i * 1024}')
            a('buffer_load_dwordx4 v28, s[8:11], s78 offen lds')
        a(f'''
        v_lshrrev_b32 v30, 2, v20
        v_lshlrev_b32 v30, 4, v30
        v_and_b32 v31, 3, v20
        v_lshl_add_u32 v30, v31, 1, v30
        v_lshlrev_b32 v31, 1, v20
        v_add_u32 v132, 128, v31
        v_bfe_u32 v133, v20, 1, 1
        v_bfe_u32 v134, v20, 2, 1
        v_lshl_add_u32 v133, v133, 1, v134
        v_mul_u32_u24 v133, 36, v133
        v_and_b32 v134, 1, v20
        v_lshl_add_u32 v133, v134, 1, v133
        v_add_u32 v133, 32, v133
        s_cmp_eq_u32 s71, 1
        s_cselect_b64 vcc, -1, 0
        s_cselect_b32 s74, 36, 8
        s_cselect_b32 s75, 72, 64
        s_add_u32 s76, s74, s75
        v_cndmask_b32 v30, v30, v31, vcc
        v_cndmask_b32 v132, v132, v133, vcc
        s_lshl_b32 s78, s72, 4
        s_add_u32 s78, s78, s79
        v_lshlrev_b32 v24, 11, v21
        v_add_u32 v24, s78, v24
        v_add_u32 v30, v30, v24
        v_add_u32 v132, v132, v24
        v_add_u32 v133, s74, v30
        v_add_u32 v134, s75, v30
        v_add_u32 v135, s76, v30
        s_mul_i32 s77, s72, 18
        s_add_u32 s77, s77, s73
        s_mul_i32 s77, s77, 5120
        s_mul_i32 s78, s71, {WSSTR}
        s_add_u32 s77, s77, s78
        s_add_u32 s77, s77, {WS_P}
        s_add_u32 s78, s77, 4096
        v_cmp_le_u32 vcc, 8, v20
        ''')

    def mat_store(self, done):
        a = self.a
        addrs = [30, 133, 134, 135, 132]
        for t in range(5):
            self.gather_lds(addrs[t], 0, 64 + 8 * t)
        a('s_waitcnt lgkmcnt(0)')
        for t in range(5):
            self.gather_pack(104 + 4 * t, 64 + 8 * t)
            if t < 4:
                a(f'buffer_store_dwordx4 {vr(104 + 4 * t)}, v0, {WS}, s77 offen offset:{t * 1024} sc1')
            else:
                for k in range(4):
                    a(f'v_cndmask_b32 v{120 + k}, v{120 + k}, 0, vcc')
                a(f'buffer_store_dwordx4 v[120:123], v0, {WS}, s78 offen sc1')

        a(f'''
        s_cmp_lg_u32 s71, 1
        s_cbranch_scc1 {done}
        s_mul_i32 s77, s72, {5 * 1152}
        s_add_u32 s77, s77, {PCS}
        ''')
        self.pcs(5)

    def kv_load(self):
        a = self.a
        a(f'''
        s_lshr_b32 s74, s73, 1
        s_mul_i32 s74, s74, 72
        s_and_b32 s75, s73, 1
        s_lshl_b32 s76, s75, 5
        s_add_u32 s74, s74, s76
        s_mul_i32 s75, s75, 288
        s_add_u32 s75, s75, 64
        s_cmp_lt_u32 s73, 16
        s_cselect_b32 s74, s74, s75
        s_cselect_b32 s76, 8, 72
        s_mul_i32 s76, s76, 36
        s_mul_i32 s74, s74, 36
        v_mul_u32_u24 v28, s76, v21
        v_and_b32 v29, 1, v20
        v_lshl_add_u32 v29, v29, 1, v28
        v_lshl_add_u32 v28, v20, 1, v28
        s_mov_b32 s8, s58
        s_mov_b32 s9, s59
        s_mov_b32 s10, {576 * 36}
        ''')
        for jj in range(8):
            a(f'v_mov_b32 v{80 + jj}, 0')
        for jj in range(8):
            a(f'buffer_load_ushort v{64 + jj}, v28, s[8:11], s74 offen offset:{36 * jj}')
        self.exec_mask(0x0003000300030003)
        for jj in range(8):
            a(f'buffer_load_ushort v{80 + jj}, v29, s[8:11], s74 offen offset:{36 * jj + 32}')
        a('s_mov_b32 s8, s60')
        a('s_mov_b32 s9, s61')
        self.exec_mask(0x000c000c000c000c)
        for jj in range(8):
            a(f'buffer_load_ushort v{80 + jj}, v29, s[8:11], s74 offen offset:{36 * jj + 32}')
        self.exec_mask(-1)
        for jj in range(8):
            a(f'buffer_load_ushort v{72 + jj}, v28, s[8:11], s74 offen offset:{36 * jj}')

    def kv_store(self):
        a = self.a
        a('s_mul_i32 s77, s73, 3072')
        a(f's_add_u32 s77, s77, {WKV_P}')
        for t in range(3):
            self.gather_pack(104 + 4 * t, 64 + 8 * t)
            a(f'buffer_store_dwordx4 {vr(104 + 4 * t)}, v0, {WS}, s77 offen offset:{t * 1024} sc1')
        a(f's_mov_b32 s77, {PCS + 40 * 1152}')
        self.pcs(3)

    def halo_setup(self):
        a = self.a
        a(f'''
        s_lshl_b32 s28, s19, 4
        s_add_u32 s28, s28, s22
        s_mul_i32 s47, s28, {HSLOT}
        s_add_u32 s47, s47, {HALO}
        v_lshlrev_b32 v24, 8, v3
        v_add_u32 v24, {L_HALO}, v24
        ds_write_b128 v24, {ONES}
        v_lshlrev_b32 v24, 7, v20
        v_add_u32 v24, {L_HALO + 16384}, v24
        ds_write_b128 v24, {ONES}
        ''')

    def touch_setup(self):
        a = self.a
        a(f'''
        v_and_b32 v34, 7, v3
        v_lshlrev_b32 v34, 7, v34
        s_lshl_b32 s28, s23, 10
        v_add_u32 v34, s28, v34
        s_lshl_b32 s28, s23, 7
        s_add_u32 s28, s28, 16384
        v_mov_b32 v35, s28
        v_cmp_gt_u32 vcc, 8, v20
        v_cndmask_b32 v32, v35, v34, vcc
        v_and_b32 v34, 1, v21
        s_lshl_b32 s28, s22, 3
        s_lshl_b32 s29, s17, 1
        s_add_u32 s28, s28, s29
        v_add_u32 v34, s28, v34
        v_mul_u32_u24 v34, {TILE}, v34
        v_add_u32 v32, v32, v34
        v_lshlrev_b32 v34, 7, v20
        s_lshl_b32 s28, s21, 11
        v_add_u32 v34, s28, v34
        v_and_b32 v35, 1, v3
        v_lshlrev_b32 v35, 7, v35
        s_lshl_b32 s28, s21, 8
        s_add_u32 s28, s28, 16384
        v_add_u32 v35, s28, v35
        v_cmp_gt_u32 vcc, 16, v3
        v_cndmask_b32 v33, v35, v34, vcc
        s_lshl_b32 s28, s20, 2
        s_add_u32 s28, s28, s17
        s_lshl_b32 s89, s28, 10
        s_mul_i32 s28, s28, {TILE}
        v_add_u32 v33, s28, v33
        s_lshl_b32 s28, s21, 7
        s_add_u32 s89, s89, s28
        ''')

    def touch(self, reg, buf, stats=None):
        a = self.a
        a(f's_add_u32 s28, s24, {self.B[buf]}')
        a(f'buffer_load_dword v36, v{reg}, {WS}, s28 offen')
        if stats is not None:
            a('s_add_u32 s28, s89, s25')
            a(f's_add_u32 s28, s28, {self.ST[stats]}')
            a(f'buffer_load_dword v37, v22, {WS}, s28 offen')

    def halo_dma(self, soff, tail):
        a = self.a
        a(f's_add_u32 s97, s47, {soff}')
        a(f's_add_u32 m0, {soff}, {L_HALO}')
        self.exec_mask(0xfefefefefefefefe if tail else 0xfffefffefffefffe)
        a(f'buffer_load_dwordx4 v0, {WS}, s97 offen sc1 lds')
        self.exec_mask(-1)

    def helper(self):
        a = self.a
        self.who = 'H'
        a('L_HELPER:')
        self.x0_load()
        a(f'''
        s_lshr_b32 s30, s23, 1
        s_lshl_b32 s30, s30, 8
        s_add_u32 s30, s30, {WFLAG}
        v_lshl_add_u32 v13, v3, 11, s30
        v_min_u32 v12, 9, v3
        v_lshl_add_u32 v12, v12, 11, s30
        s_lshl_b32 s30, s22, 4
        s_sub_u32 s30, s30, 2
        s_and_b32 s30, s30, 255
        s_lshl_b32 s30, s30, 8
        s_add_u32 s30, s30, {FLAG}
        v_and_b32 v15, 1, v3
        v_lshl_add_u32 v15, v15, 8, s30
        v_cmp_gt_u32 vcc, 18, v3
        v_cndmask_b32 v13, v15, v13, vcc
        buffer_load_dword v249, v13, {WS}, 0 offen sc1
        v_mov_b32 v24, {L_CNT}
        v_mov_b32 v28, 0
        v_mov_b32 v29, 0
        v_mov_b32 v30, 0
        v_mov_b32 v31, 0
        ds_write_b128 v24, v[28:31]
        ds_write_b128 v24, v[28:31] offset:32
        s_lshl_b32 s28, s17, 8
        s_add_u32 s28, s28, s16
        s_lshl_b32 s29, s28, 10
        s_add_u32 s29, s29, {KVIMG}
        s_cmp_lt_u32 s28, 320
        s_cselect_b32 s29, s29, 0x7f000000
        buffer_store_dwordx4 {ONES}, v0, {WS}, s29 offen sc1
        ''')
        self.halo_setup()
        self.touch_setup()
        a('s_waitcnt lgkmcnt(0)')
        self.bar('b0a')
        a('s_waitcnt vmcnt(2)')
        self.nonce()
        self.x0_store()
        self.signal('s85', cnt=2)
        a(f'''
        s_lshl_b32 s82, s17, 10
        s_and_b32 s83, s17, 1
        s_lshl_b32 s83, s83, 10
        s_add_u32 s83, s83, 16384
        s_mul_i32 s98, s23, {126 * 1024}
        s_add_u32 s98, s98, {WA_P}
        s_lshl_b32 s39, s17, 8
        s_add_u32 s39, s39, s2
        s_mul_i32 s38, s17, {-26 * 1024}
        s_add_u32 s38, s38, {144 * 1024}
        ''')
        self.bar('b0b')
        LK, LJ, LW, LC = a.label('PKV'), a.label('PJ'), a.label('HW'), a.label('HC')
        a(f'''
        s_cmp_ge_u32 s17, 2
        s_cbranch_scc1 {LW}
        s_cmp_ge_u32 s39, 306
        s_cbranch_scc1 {LJ}
        s_cmp_ge_u32 s39, 288
        s_cbranch_scc1 {LK}
        ''')
        self.mat_load()
        a('s_waitcnt vmcnt(0)')
        self.mat_store(LJ)
        a(f's_branch {LJ}')
        a(f'{LK}:')
        a('s_sub_u32 s73, s39, 288')
        self.kv_load()
        a('s_waitcnt vmcnt(0)')
        self.kv_store()
        a(f'{LJ}:')
        self.bar('c0')
        self.signal('s85', cnt=1, off=128, second='s84', mask=1)
        a(f's_branch {LC}')
        a(f'{LW}:')

        def rnd(r):
            self.dma_linear('s98', 0, 256, [r], first_kb=-8)
            self.dma_linear('s98', 0, 256, [r])

        def hal(base='s82'):
            for k in range(4):
                a(f's_add_u32 s96, {base}, {4096 * k}')
                self.halo_dma('s96', False)
        a('v_mov_b32 v14, v12')
        self.poll('0', 's85')
        for r in range(3):
            rnd(r)
        a('s_waitcnt vmcnt(8)')
        self.bar('c0', log=False)
        rnd(3)
        a(f'{LC}:')
        a('v_mov_b32 v14, v13')
        self.poll('0', 's85')
        self.post(0)
        self.dma_linear('s98', 0, 126, range(4, 6))
        hal()
        self.halo_dma('s83', True)
        self.dma_linear('s98', 0, 126, range(6, 8))
        HQ, HK, HA = 40, 192, 64
        a(f'''
        s_mul_i32 s34, s21, 5
        s_add_u32 s35, s34, 4
        s_add_u32 s34, s34, s17
        s_add_u32 s36, s17, 39
        s_cmp_eq_u32 s17, 0
        s_cselect_b32 s35, s35, s36
        s_mul_i32 s34, s34, 1152
        s_mul_i32 s35, s35, 1152
        s_add_u32 s34, s34, {PCS}
        s_add_u32 s35, s35, {PCS}
        v_lshlrev_b32 v24, 2, v3
        s_mul_i32 s99, s21, {90 * 1024}
        s_add_u32 s99, s99, {WS_P}
        s_add_u32 s98, s99, {WSSTR}
        v_lshlrev_b32 v14, 8, v3
        s_lshl_b32 s30, s17, 14
        s_add_u32 s30, s30, {FLAG + 128}
        s_waitcnt vmcnt(13)
        ''')
        self.post(1)
        a('s_waitcnt vmcnt(8)')
        self.post(2)
        self.poll('s30', 's85')
        self.bar('c1')
        for k in range(2):
            for i in range(5):
                a(f'buffer_load_dword v{140 + 5 * k + i}, v24, {WS}, s{34 + k} offen offset:{256 * i} sc1')
        a(f'''
        s_mov_b32 s31, {WKV_P}
        s_cmp_lg_u32 s21, 0
        s_cbranch_scc1 L_HCHAIN
        ''')
        self.reg_load('s31', 54, range(4), HK)
        a('L_HCHAIN:')
        self.reg_load('s98', 90, range(6), HQ)
        a('s_waitcnt lgkmcnt(0)')
        self.bar('t1')
        self.dma_linear('s99', 0, 90, range(2))
        self.bar('t2')
        self.dma_linear('s99', 0, 90, range(2, 6))
        a('s_waitcnt vmcnt(0)')
        self.bar('v2')
        LQ = a.label('HAVEQ')
        a('s_cmp_eq_u32 s19, 1')
        a(f's_cbranch_scc1 {LQ}')
        a('v_cmp_gt_u32 vcc, 32, v3')
        for k in range(2):
            b = 140 + 5 * k
            a(f'v_cndmask_b32 v{b + 4}, 0, v{b + 4}, vcc')
            a(f'v_add_f32 v{b}, v{b}, v{b + 1}')
            a(f'v_add_f32 v{b + 2}, v{b + 2}, v{b + 3}')
            a(f'v_add_f32 v{b}, v{b}, v{b + 4}')
            a(f'v_add_f32 v{b}, v{b}, v{b + 2}')
            self.allred(b, b + 1)
        a(f'''
        s_lshl_b32 s28, s17, 6
        s_add_u32 s28, s28, {L_CS + 7 * 64}
        v_lshl_add_u32 v24, v20, 2, s28
        ds_write_b32 v24, v140
        ds_write_b32 v24, v145 offset:256
        {LQ}:
        ''')
        LNK = a.label('NOKVW')
        a('s_cmp_lg_u32 s21, 0')
        a(f's_cbranch_scc1 {LNK}')
        self.reg_dump(54, range(4), HK, L_KVW)
        a(f'{LNK}:')
        a('s_waitcnt vmcnt(0) lgkmcnt(0)')
        self.bar('m2')
        self.reg_dump(90, range(6), HQ)
        self.kv_poll_setup()
        a(f'''
        s_mul_i32 s98, s19, {KVSTR}
        s_add_u32 s98, s98, {KVIMG}
        s_add_u32 s99, s99, {2 * WSSTR}
        s_waitcnt lgkmcnt(0)
        ''')
        self.bar('v3')
        LP = a.label('NOPOLL')
        a('s_cmp_lg_u32 s17, 0')
        a(f's_cbranch_scc1 {LP}')
        self.poll('s30', 's31', wide=38)
        self.allred(39, 38, op='v_max_f32')
        self.rowmax(39)
        a(f'v_mov_b32 v38, {L_KM + 32}')
        a('ds_write_b32 v38, v39')
        a('s_waitcnt lgkmcnt(0)')
        a(f'{LP}:')
        self.bar('k0')
        self.dma_linear('s98', 0, 148, range(2))
        a('s_waitcnt vmcnt(0)')
        self.bar('k1')
        self.dma_linear('s98', 0, 148, range(2, 10))
        a('s_waitcnt vmcnt(0)')
        self.bar('k2')
        a(f's_mul_i32 s98, s23, {126 * 1024}')
        a(f's_add_u32 s98, s98, {WA_P}')
        LN = a.label('NOWA')
        a('s_cmp_eq_u32 s19, 1')
        a(f's_cbranch_scc1 {LN}')
        LJ = a.label('PJ')
        a(f'''
        v_mov_b32 v40, v252
        v_mov_b32 v41, v253
        v_mov_b32 v42, v254
        v_mov_b32 v43, v255
        s_lshl_b32 s39, s17, 8
        s_add_u32 s39, s39, s2
        s_add_u32 s39, s39, 288
        s_mov_b32 s38, {148 * 1024}
        s_cmp_ge_u32 s39, 432
        s_cbranch_scc1 {LJ}
        ''')
        a('s_setprio 2')
        self.mat_load()
        a('s_waitcnt vmcnt(0)')
        self.mat_store(LJ)
        a(f'{LJ}:')
        a('s_setprio 0')
        a('s_add_u32 s31, s18, 2')
        self.signal('s31', cnt=3, off=128, second='s84')
        self.reg_load('s98', 126, range(8), HA)
        a(f'''
        v_and_b32 v14, 7, v3
        v_lshlrev_b32 v14, 8, v14
        s_lshl_b32 s30, s22, 11
        s_add_u32 s30, s30, {HFLAG}
        buffer_load_dword v36, v14, {WS}, s30 offen sc1
        v_lshlrev_b32 v14, 8, v3
        s_lshl_b32 s30, s17, 14
        s_add_u32 s30, s30, {FLAG + 128}
        ''')
        self.poll('s30', 's31')
        a('''
        v_mov_b32 v252, v40
        v_mov_b32 v253, v41
        v_mov_b32 v254, v42
        v_mov_b32 v255, v43
        ''')
        a(f'{LN}:')
        self.bar('k3')
        self.touch(33, 3)
        self.touch(33, 4, 2)
        self.dma_linear('s99', 0, 90, range(6))
        a('s_waitcnt vmcnt(0)')
        self.bar('v5')
        LE = a.label('HLAST')
        a('s_cmp_eq_u32 s19, 1')
        a(f's_cbranch_scc1 {LE}')
        self.next_layer()
        self.halo_setup()
        self.reg_dump(126, range(6, 8), HA)
        a(f'''
        v_and_b32 v14, 7, v3
        v_lshlrev_b32 v14, 8, v14
        s_lshl_b32 s30, s22, 11
        s_add_u32 s30, s30, {HFLAG}
        s_sub_u32 s98, s99, {WSSTR}
        ''')
        self.bar('m5')
        self.reg_dump(126, range(6), HA)
        a('s_waitcnt lgkmcnt(0)')
        self.bar('c0', log=False)
        self.poll('s30', 's85')
        hal()
        self.halo_dma('s83', True)
        a(f's_sub_u32 s99, s98, {WSSTR}')
        a('s_waitcnt vmcnt(0)')
        self.post(2)
        self.bar('c1', log=False)
        a('s_branch L_HCHAIN')
        a(f'{LE}:')
        if 'wbl2' in self.exp:
            LB = a.label('NOWB')
            a('s_or_b32 s28, s17, s21')
            a('s_cmp_lg_u32 s28, 0')
            a(f's_cbranch_scc1 {LB}')
            a('buffer_wbl2 sc1')
            a(f'{LB}:')
        self.bar('m5', log=False)
        a('s_endpgm')

    def build(self):
        a = self.a
        self.entry()
        self.p0()
        a('L_LAYER:')
        self.p1()
        self.proj(2)
        self.p3()
        self.p4()
        self.proj(5)
        LH, LH2, LH3 = a.label('NOH'), a.label('NOH'), a.label('NOH')
        a(f'''
        s_add_u32 s31, s26, 3
        s_and_b32 s37, s20, 1
        s_lshl_b32 s37, s37, 2
        s_add_u32 s37, s37, s17
        s_cmp_lg_u32 s37, 7
        s_cbranch_scc1 {LH}
        s_add_u32 s38, s22, 1
        s_and_b32 s38, s38, 15
        s_mul_i32 s34, s38, {HSLOT}
        s_add_u32 s34, s34, {HALO + 16 * HSLOT}
        s_lshl_b32 s35, s21, 8
        s_add_u32 s35, s35, s34
        s_add_u32 s35, s35, 16384
        s_lshl_b32 s36, s21, 7
        s_add_u32 s36, s36, s34
        s_add_u32 s36, s36, {TILE}
        s_lshl_b32 s28, s21, 11
        s_add_u32 s34, s34, s28
        buffer_store_dwordx4 v[4:7], v0, {WS}, s34 offen sc1
        buffer_store_dwordx4 v[8:11], v0, {WS}, s34 offen offset:1024 sc1
        s_mov_b32 exec_hi, 0
        buffer_store_dwordx2 v[12:13], v1, {WS}, s35 offen sc1
        s_mov_b64 exec, s[40:41]
        buffer_store_dwordx2 v[44:45], v48, {WS}, s36 offen sc1
        s_mov_b64 exec, -1
        s_waitcnt vmcnt(4)
        s_branch {LH2}
        {LH}:
        s_waitcnt vmcnt(0)
        {LH2}:
        ''')
        self.signal('s31', sel='s68', wait=False)
        a(f'''
        s_cmp_lg_u32 s37, 7
        s_cbranch_scc1 {LH3}
        s_lshl_b32 s38, s38, 3
        s_add_u32 s38, s38, s21
        s_lshl_b32 s38, s38, 8
        s_add_u32 s38, s38, {HFLAG}
        s_waitcnt vmcnt(0)
        s_mov_b64 exec, 0xffff
        buffer_store_dwordx2 v[254:255], v1, {WS}, s38 offen sc1
        s_mov_b64 exec, -1
        {LH3}:
        ''')
        self.stamp('p5.flag')
        of = ' sc1' if 'outsc1' in self.exp else (' nt' if 'outnt' in self.exp else '')
        self.next_layer()
        a(f'''
        s_mov_b32 s82, {FLAG}
        s_branch L_LAYER
        L_FINAL:
        v_and_b32 v20, 15, v3
        v_lshrrev_b32 v21, 4, v3
        v_mul_u32_u24 v20, 1152, v20
        v_lshl_add_u32 v22, v21, 4, v20
        v_lshl_add_u32 v23, v21, 3, v20
        s_mul_i32 s28, s21, 144
        s_add_u32 s28, s28, s88
        buffer_store_dwordx4 v[4:7], v22, s[12:15], s28 offen{of}
        buffer_store_dwordx4 v[8:11], v22, s[12:15], s28 offen offset:64{of}
        s_mov_b32 exec_hi, 0
        buffer_store_dwordx2 v[12:13], v23, s[12:15], s28 offen offset:128{of}
        s_mov_b64 exec, -1
        ''')
        if self.prof:
            a('s_waitcnt vmcnt(0)')
        self.stamp('end')
        a(f'''
        s_or_b32 s28, s16, s17
        s_cmp_lg_u32 s28, 0
        s_cbranch_scc1 L_EXIT
        v_mov_b32 v20, s18
        v_mov_b32 v21, 0
        s_mov_b64 exec, 1
        buffer_store_dword v20, v21, {WS}, 0 offen sc1
        L_EXIT:
        s_endpgm
        ''')
        self.helper()
        for c in self.cold:
            c()
        a('L_CODE_END:')
        assert self.bars['C'] == self.bars['H'], self.bars
        for b in a.check_branches():
            print('BRANCH HAZARD', b, file=sys.stderr)
        head = open(f'cdna_kernels/{NAME}.s.ref').read().split('; Override launch')[0]
        return f'''{head}; @launch grid=(256,1,1) block=({BLOCK},1,1) lds={LDS_BYTES}
.amdgcn_target "amdgcn-amd-amdhsa--gfx950"
.text
.globl {NAME}_kernel
.p2align 8
.type {NAME}_kernel,@function
{NAME}_kernel:
{a.text()}.section .rodata,"a"
.p2align 6
.amdhsa_kernel {NAME}_kernel
  .amdhsa_next_free_vgpr 256
  .amdhsa_next_free_sgpr 102
  .amdhsa_accum_offset 256
  .amdhsa_group_segment_fixed_size 0
  .amdhsa_kernarg_size 88
  .amdhsa_user_sgpr_count 2
  .amdhsa_user_sgpr_kernarg_segment_ptr 1
  .amdhsa_system_sgpr_workgroup_id_x 1
.end_amdhsa_kernel
'''


if __name__ == '__main__':
    import argparse
    ap = argparse.ArgumentParser()
    ap.add_argument('-o', default=f'cdna_kernels/{NAME}.s')
    ap.add_argument('--fallback', action='store_true')
    ap.add_argument('--prof', action='store_true')
    ap.add_argument('--nolocal', action='store_true')
    ap.add_argument('--sep', action='store_true')
    ap.add_argument('--dbg', action='store_true')
    ap.add_argument('--exp', default='')
    args = ap.parse_args()
    g = Gen(args.fallback, args.prof, args.nolocal, args.sep, args.dbg, args.exp)
    txt = g.build()
    open(args.o, 'w').write(txt)
    if args.prof:
        import json; json.dump([g.stamps, g.hstamps], open(args.o + '.json', 'w'))
    print('nops inserted:', g.a.nops, 'lines:', txt.count('\n'), 'barriers:', g.bars['C'])
```

```python
import sys, struct, math
from asmlib import Asm, Ins, groups, weave

NAME = 'interleave_layers__sliding_local_dilated__grouped_kv_mqa__prompt'

FLAG = 0x1000
HFLAG = 0x16000
KVIMG = 0x20000
KVSTR = 0x28000
WFLAG = 0x70000
STATS = 0x80000
STSTR = 0x20000
WA_P = 0x100000
WS_P = 0x300000
WSSTR = 0xB4000
WKV_P = 0x520000
PCS = 0x540000
HALO = 0x550000
HSLOT = 0x5000
ACT = 0x600000
ACTB = 0x240000
VFLAG = 0x1800000
KVFLAG = 0x1820000
PROF = 0x1840000
WS_SIZE = 0x1940000
TILE = 18432
GRP = 18944
STEP = 2240
L_KVW = 90 * 1024
L_HALO = 126 * 1024
L_W5 = 58 * 1024
L_X = 144 * 1024
L_EX = L_X
L_VT = L_X + 9216
L_CS = L_X + 13056
L_ST = L_CS + 1024
L_KM = L_ST + 2048
L_CNT = L_KM + 16
L_RDY = L_KM + 48
LDS_BYTES = 160 * 1024
BLOCK = 512
POLL_LIMIT = 40000
BTHR = 50.0


def f2u(x):
    return struct.unpack('<I', struct.pack('<f', x))[0]


def vr(b, n=4):
    return f'v[{b}:{b + n - 1}]' if n > 1 else f'v{b}'


M16 = 'v_mfma_f32_16x16x32_bf16'
M16H = 'v_mfma_f32_16x16x16_bf16'
M32 = 'v_mfma_f32_32x32x16_bf16'
M32H = 'v_mfma_f32_32x32x8_bf16'
WS = 's[4:7]'
ONES = 'v[16:19]'


class Gen:
    def __init__(self, force_fallback=False, prof=False, no_local=False, sep=False, dbg=False, exp=''):
        self.exp = exp.split(',')
        self.ntw = ' nt'
        self.ntx = ' nt'
        self.dbg = dbg
        self.no_local = no_local
        self.B = [i * ACTB for i in range(5)] if sep else [0, ACTB, 0, ACTB, 0]
        self.ST = [i * STSTR for i in range(3)] if sep else [0, 0, 0]
        self.prof = prof
        self.stamps = []
        self.hstamps = []
        self.a = Asm()
        self.force_fallback = force_fallback
        self.bars = {'C': [], 'H': []}
        self.who = 'C'
        self.cold = []

    def bar(self, name, log=True):
        if self.who == 'H' or name in ('t2', 'c1'):
            self.stamp('>' + name)
        self.a('s_barrier')
        if log:
            self.bars[self.who].append(name)

    def run(self, g):
        for x in g:
            self.a.emit(x)

    def exec_mask(self, m):
        a = self.a
        if m == -1:
            a('s_mov_b64 exec, -1')
        elif m < (1 << 31):
            a(f's_mov_b64 exec, 0x{m:x}')
        else:
            a(f's_mov_b32 exec_lo, 0x{m & 0xffffffff:x}')
            a(f's_mov_b32 exec_hi, 0x{m >> 32:x}')

    def poll(self, sbase, sneed, wide=None):
        a = self.a
        L, D = a.label('POLL'), a.label('POLLD')
        a('s_mov_b32 s70, 0')
        a(f'{L}:')
        if wide:
            a(f'buffer_load_dwordx2 {vr(wide, 2)}, v14, {WS}, {sbase} offen sc1')
            a('s_waitcnt vmcnt(0)')
            a(f'v_subrev_u32 v15, {sneed}, v{wide}')
        else:
            a(f'buffer_load_dword v15, v14, {WS}, {sbase} offen sc1')
            a('s_waitcnt vmcnt(0)')
            a(f'v_subrev_u32 v15, {sneed}, v15')
        a('v_cmp_le_u32 vcc, 16, v15')
        a('s_add_u32 s70, s70, 1')
        a(f's_cmp_gt_u32 s70, {POLL_LIMIT}')
        a(f's_cbranch_scc1 {D}')
        a(f's_cbranch_vccnz {L}')
        a(f'{D}:')

    def poll_early(self, sbase, sneed, between):
        a = self.a
        D = a.label('POLLE')
        a(f'buffer_load_dword v15, v14, {WS}, {sbase} offen sc1')
        between()
        a('s_waitcnt vmcnt(0)')
        a(f'v_subrev_u32 v15, {sneed}, v15')
        a('v_cmp_le_u32 vcc, 16, v15')
        C = a.label('POLLC')
        a(f's_cbranch_vccnz {C}')
        a(f'{D}:')

        def cold():
            a(f'{C}:')
            self.poll(sbase, sneed)
            a(f's_branch {D}')
        self.cold.append(cold)

    def post(self, k, n=1):
        a = self.a
        a(f'v_mov_b32 v38, {L_RDY}')
        a(f'v_mov_b32 v39, {n}')
        a('s_mov_b64 exec, 1')
        a(f'ds_add_u32 v38, v39 offset:{4 * k}')
        a('s_mov_b64 exec, -1')
        self.stamp(f'post{k}')

    def spin(self, k, addr, val, checked=None, need='4'):
        a = self.a
        LS, LD = a.label('SPIN'), a.label('SPIND')
        LC = a.label('SPINC')
        a.wait_lg(checked)
        a(f'v_cmp_gt_u32 vcc, {need}, v{val}')
        a(f's_cbranch_vccnz {LC}')
        a(f'{LD}:')
        self.cold.append(lambda: a(f'''
        {LC}:
        s_mov_b32 s70, 0
        {LS}:
        s_sleep 1
        ds_read_b32 v{val}, v{addr} offset:{4 * k}
        s_add_u32 s70, s70, 1
        s_waitcnt lgkmcnt(0)
        v_cmp_gt_u32 vcc, {need}, v{val}
        s_cmp_gt_u32 s70, {POLL_LIMIT * 8}
        s_cbranch_scc1 {LD}
        s_cbranch_vccnz {LS}
        s_branch {LD}
        '''))

    def arrive(self, skip, cnt=0, mask=3, wait=True):
        a = self.a
        a(f'v_mov_b32 v252, {L_CNT + 4 * cnt}')
        a('v_mov_b32 v253, 1')
        a('s_mov_b64 exec, 1')
        if wait:
            a('s_waitcnt vmcnt(0)')
        a('ds_add_rtn_u32 v253, v252, v253')
        a('s_waitcnt lgkmcnt(0)')
        a('v_readfirstlane_b32 s28, v253')
        a('s_mov_b64 exec, -1')
        a(f's_and_b32 s28, s28, {mask}')
        a(f's_cmp_lg_u32 s28, {mask}')
        a(f's_cbranch_scc1 {skip}')

    def scoped(self, fn, sel):
        a = self.a
        if sel is None:
            fn(' sc1')
            return
        LL, LE = a.label('LOC'), a.label('LOCE')
        a(f's_cmp_eq_u32 {sel}, 0')
        a(f's_cbranch_scc1 {LL}')
        fn('')
        a(f'{LE}:')

        def cold():
            a(f'{LL}:')
            fn(' sc1')
            a(f's_branch {LE}')
        self.cold.append(cold)

    def signal(self, stag, cnt=0, off=0, sel=None, second=None, mask=3, wait=True, line='s27'):
        a = self.a
        L = a.label('SIG')
        a(f'v_mov_b32 v254, {stag}')
        a(f'v_mov_b32 v255, {second or stag}')
        self.arrive(L, cnt, mask, wait)
        self.exec_mask(0xffff)
        self.scoped(lambda f: a(f'buffer_store_dwordx2 v[254:255], v1, {WS}, {line} offen offset:{off}{f}'), sel)
        a.vm -= 1
        self.exec_mask(-1)
        a(f'{L}:')

    def wave_signal(self, stag, wait=True):
        a = self.a
        a(f'v_mov_b32 v254, {stag}')
        a(f'v_mov_b32 v255, {stag}')
        self.exec_mask(0xffff)
        if wait:
            a('s_waitcnt vmcnt(0)')
        self.scoped(lambda f: a(f'buffer_store_dwordx2 v[254:255], v1, {WS}, s81 offen{f}'), 's68')
        self.exec_mask(-1)

    def dma_linear(self, ssrc, lds0, kb, rounds, first_kb=0):
        a = self.a
        for i in rounds:
            a(f's_add_u32 s96, s100, {(16384 * i + first_kb * 1024) & 0xffffffff}')
            if first_kb + (4 * i + 4) * 4 > kb:
                a(f's_min_u32 s96, s96, {(kb - 4) * 1024}')
            a(f's_add_u32 s97, s96, {ssrc}')
            a(f's_add_u32 m0, s96, {lds0}')
            for k in range(4):
                a(f'buffer_load_dwordx4 v0, {WS}, s97 offen offset:{k * 1024} sc1 lds')

    def reg_load(self, ssrc, kb, rounds, base):
        a = self.a
        for i in rounds:
            a(f's_add_u32 s96, s100, {16384 * i}')
            if (4 * i + 4) * 4 > kb:
                a(f's_min_u32 s96, s96, {(kb - 4) * 1024}')
            a(f's_add_u32 s97, s96, {ssrc}')
            for k in range(4):
                a(f'buffer_load_dwordx4 {vr(base + 16 * i + 4 * k)}, v0, {WS}, s97 offen offset:{k * 1024} sc1')

    def reg_dump(self, kb, rounds, base, lds0=0):
        a = self.a
        for i in rounds:
            a(f's_add_u32 s96, s100, {16384 * i}')
            if (4 * i + 4) * 4 > kb:
                a(f's_min_u32 s96, s96, {(kb - 4) * 1024}')
            if lds0:
                a(f's_add_u32 s96, s96, {lds0}')
            a(f'v_add_u32 v{25 + i % 2}, s96, v0')
            for k in range(4):
                a(f'ds_write_b128 v{25 + i % 2}, {vr(base + 16 * i + 4 * k)} offset:{k * 1024}')

    def load_frag(self, s, reg, stile):
        a = self.a
        so = f's{stile + s // 4}'
        if s < 16:
            a(f'buffer_load_dwordx4 {vr(reg)}, v0, {WS}, {so} offen offset:{(s % 4) * 1024} sc1')
        else:
            a(f'buffer_load_dwordx2 {vr(reg, 2)}, v2, {WS}, {so} offen offset:{(s % 4) * 1024} sc1')
            a(f'buffer_load_dwordx2 {vr(reg + 2, 2)}, v2, {WS}, {so} offen offset:{(s % 4) * 1024 + 128} sc1')

    def tile_sgprs(self, stile):
        for i in range(1, 5):
            self.a(f's_add_u32 s{stile + i}, s{stile}, {4096 * i}')

    def allred(self, x, t, op='v_add_f32', only32=False):
        a = self.a
        a(f'v_mov_b32 v{t}, v{x}')
        a(f'v_permlane32_swap_b32 v{x}, v{t}')
        a(f'{op} v{x}, v{x}, v{t}')
        if not only32:
            a(f'v_mov_b32 v{t}, v{x}')
            a(f'v_permlane16_swap_b32 v{x}, v{t}')
            a(f'{op} v{x}, v{x}, v{t}')

    def rowmax(self, x):
        for n in (8, 4, 2, 1):
            self.a(f'v_max_f32_dpp v{x}, v{x}, v{x} row_ror:{n} row_mask:0xf bank_mask:0xf')

    def stats_finish(self, raw):
        a = self.a
        a(f'v_add_f32 v{raw}, v{raw}, v{raw + 2}')
        a(f'v_add_f32 v{raw + 1}, v{raw + 1}, v{raw + 3}')
        for sw in ('v_permlane32_swap_b32', 'v_permlane16_swap_b32'):
            a(f'v_mov_b32 v{raw + 2}, v{raw}')
            a(f'v_mov_b32 v{raw + 3}, v{raw + 1}')
            a(f'{sw} v{raw}, v{raw + 2}')
            a(f'{sw} v{raw + 1}, v{raw + 3}')
            a(f'v_add_f32 v{raw}, v{raw}, v{raw + 2}')
            a(f'v_add_f32 v{raw + 1}, v{raw + 1}, v{raw + 3}')
        a(f'v_mul_f32 v{raw + 2}, 0x{f2u(-1.0 / 576):x}, v{raw}')
        a(f'v_mul_f32 v{raw + 1}, 0x{f2u(1.0 / 576):x}, v{raw + 1}')
        a(f'v_fma_f32 v{raw + 1}, -v{raw + 2}, v{raw + 2}, v{raw + 1}')
        a(f'v_max_f32 v{raw + 1}, 0, v{raw + 1}')
        a(f'v_add_f32 v{raw + 1}, 0x{f2u(1e-5):x}, v{raw + 1}')
        a(f'v_rsq_f32 v{raw + 3}, v{raw + 1}')

    def stats_emit(self, frags, tail, d1, d2):
        a = self.a
        first = True
        for f in frags:
            a(f'{M16} {vr(d1)}, {f}, {f}, {"0" if first else vr(d1)}')
            a(f'{M16} {vr(d2)}, {ONES}, {f}, {"0" if first else vr(d2)}')
            first = False
        if tail:
            a(f'{M16H} {vr(d1)}, {tail}, {tail}, {vr(d1)}')
            a(f'{M16H} {vr(d2)}, v[16:17], {tail}, {vr(d2)}')

    def stats_store(self, d1, d2, soff, vaddr, f=' sc1'):
        a = self.a
        a(f'v_cndmask_b32 v{d1}, v{d1}, v{d1 + 1}, s[42:43]')
        a(f'v_cndmask_b32 v{d1 + 2}, v{d1 + 2}, v{d1 + 3}, s[42:43]')
        a(f'v_cndmask_b32 v{d2 + 1}, v{d1}, v{d1 + 2}, s[44:45]')
        a('s_mov_b64 exec, s[40:41]')
        a(f'buffer_store_dwordx2 {vr(d2, 2)}, {vaddr}, {WS}, {soff} offen{f}')
        self.exec_mask(-1)

    def gather_lds(self, vaddr, off, tmp):
        for jj in range(8):
            self.a(f'ds_read_u16 v{tmp + jj}, v{vaddr} offset:{off + jj * 256}')

    def gather_pack(self, dst, tmp):
        for k in range(4):
            self.a(f'v_lshl_or_b32 v{dst + k}, v{tmp + 2 * k + 1}, 16, v{tmp + 2 * k}')

    def stamp(self, name, again=False):
        a = self.a
        if self.dbg and self.who == 'C':
            sel = ['start', 'p0.flag1', 'p1.bar', 'p1.mfma', 'p4.start', 'p4.loop', 'p5.mfma', 'end']
            if name in sel:
                if name == 'start':
                    a('s_load_dwordx2 s[64:65], s[0:1], 72')
                    a('s_mov_b32 s66, 256')
                a('s_memrealtime s[94:95]')
                a('s_lshl_b32 s90, s19, 5')
                a('s_or_b32 s91, s16, s17')
                a('s_lshl_b32 s91, s91, 8')
                a('s_add_u32 s90, s90, s91')
                a('s_waitcnt lgkmcnt(0)')
                a('v_mov_b32 v254, s94')
                a('s_mov_b64 exec, 1')
                a(f'buffer_store_dword v254, v0, s[64:67], s90 offen offset:{4 * sel.index(name)}')
                a.vm -= 1
                a('s_mov_b64 exec, -1')
        if not self.prof:
            return
        if 'lite' in self.exp and name not in ('start', 'p1.mfma', 'p4.start', 'p4.loop', 'end'):
            return
        names = self.stamps if self.who == 'C' else self.hstamps
        idx = names.index(name) if name in names else len(names)
        if name not in names:
            names.append(name)
        assert idx < 32
        r0 = 254 if self.who == 'C' else 30
        a('s_memtime s[92:93]')
        a('s_memrealtime s[94:95]')
        a('s_lshl_b32 s90, s16, 2')
        a('s_add_u32 s90, s90, s17')
        a('s_lshl_b32 s90, s90, 9')
        a('s_lshl_b32 s91, s19, 8')
        a('s_add_u32 s90, s90, s91')
        a(f's_add_u32 s90, s90, {PROF + idx * 8 + (0 if r0 == 254 else 0x80000)}')
        a('s_waitcnt lgkmcnt(0)')
        a(f'v_mov_b32 v{r0}, s92')
        a(f'v_mov_b32 v{r0 + 1}, s94')
        a('s_mov_b64 exec, 1')
        a(f'buffer_store_dwordx2 {vr(r0, 2)}, v0, {WS}, s90 offen')
        a.vm -= 1
        a('s_mov_b64 exec, -1')

    def next_layer(self):
        self.a(f'''
        s_mov_b32 s19, 1
        s_add_u32 s85, s26, 3
        s_add_u32 s26, s26, 4
        s_add_u32 s24, s24, {self.B[4]}
        s_add_u32 s25, s25, {self.ST[2]}
        ''')

    def entry(self):
        a = self.a
        a(f'''
        s_cmp_ge_u32 s2, 256
        s_cbranch_scc1 L_EXIT
        s_load_dwordx16 s[48:63], s[0:1], 0
        s_load_dwordx2 s[12:13], s[0:1], 64
        s_load_dwordx2 s[4:5], s[0:1], 80
        s_getpc_b64 s[8:9]
        L_PC:
        s_mov_b32 s10, L_CODE_END-L_PC
        s_mov_b32 s11, 0x20000
        s_lshl_b32 s37, s2, 8
        s_and_b32 s37, s37, 0xf800
        v_lshlrev_b32 v31, 2, v0
        buffer_load_dword v251, v31, s[8:11], s37 offen
        v_lshrrev_b32 v14, 6, v0
        v_and_b32 v3, 63, v0
        v_lshlrev_b32 v0, 4, v3
        v_readfirstlane_b32 s69, v14
        v_lshlrev_b32 v1, 3, v3
        v_and_b32 v20, 15, v3
        v_lshrrev_b32 v21, 4, v3
        v_lshlrev_b32 v2, 8, v21
        v_lshl_add_u32 v2, v20, 3, v2
        s_and_b32 s17, s69, 3
        s_and_b32 s28, s2, 7
        s_lshr_b32 s29, s2, 3
        s_lshl_b32 s16, s28, 5
        s_add_u32 s16, s16, s29
        s_lshr_b32 s20, s16, 3
        s_and_b32 s21, s16, 7
        s_lshr_b32 s22, s16, 4
        s_and_b32 s23, s16, 15
        s_lshl_b32 s27, s16, 8
        s_add_u32 s27, s27, {FLAG}
        s_mov_b32 s19, 0
        s_getreg_b32 s84, hwreg(HW_REG_XCC_ID)
        s_lshl_b32 s100, s17, 12
        s_mov_b32 s24, {ACT}
        s_mov_b32 s25, {STATS}
        s_mov_b32 s40, 0x00f0000f
        s_mov_b32 s41, 0xf0000f00
        s_mov_b32 s42, 0xaaaaaaaa
        s_mov_b32 s43, 0xaaaaaaaa
        s_mov_b32 s44, 0xcccccccc
        s_mov_b32 s45, 0xcccccccc
        v_mov_b32 v16, 0x3f803f80
        v_mov_b32 v17, 0x3f803f80
        v_mov_b32 v18, 0x3f803f80
        v_mov_b32 v19, 0x3f803f80
        v_mov_b32 v22, 0
        s_mov_b32 s6, {WS_SIZE}
        s_mov_b32 s7, 0x20000
        s_mov_b32 s14, {2048 * 1152}
        s_mov_b32 s15, 0x20000
        s_mov_b32 s67, 0x20000
        s_waitcnt lgkmcnt(0)
        buffer_load_dword v23, v22, {WS}, 0 offen sc1
        s_cmp_ge_u32 s69, 4
        s_cbranch_scc1 L_HELPER
        ''')

    def nonce(self):
        self.a('''
        v_readfirstlane_b32 s18, v23
        s_add_u32 s18, s18, 16
        s_add_u32 s26, s18, 3
        s_add_u32 s85, s18, 1
        ''')

    def p0(self):
        a = self.a
        self.stamp('start')
        a('''
        s_and_b32 s78, s16, 31
        s_lshr_b32 s79, s16, 5
        s_mul_i32 s80, s79, 18
        s_add_u32 s80, s80, s78
        s_and_b32 s81, s80, 7
        s_lshr_b32 s80, s80, 3
        ''')
        LA = a.label('NOWA')
        a(f'''
        s_cmp_ge_u32 s78, 18
        s_cbranch_scc1 {LA}
        s_mov_b32 s8, s50
        s_mov_b32 s9, s51
        s_mov_b32 s10, {576 * 3456}
        s_lshr_b32 s32, s80, 1
        s_mul_i32 s32, s32, 72
        s_and_b32 s33, s80, 1
        s_lshl_b32 s34, s33, 5
        s_add_u32 s32, s32, s34
        s_mul_i32 s33, s33, 288
        s_add_u32 s33, s33, 64
        s_cmp_lt_u32 s80, 16
        s_cselect_b32 s32, s32, s33
        s_cselect_b32 s34, 8, 72
        s_mul_i32 s34, s34, s17
        s_add_u32 s32, s32, s34
        s_mul_i32 s32, s32, 3456
        s_lshl_b32 s33, s81, 7
        s_add_u32 s32, s32, s33
        v_mul_u32_u24 v24, 3456, v21
        v_lshl_add_u32 v24, v20, 4, v24
        s_lshl_b32 s33, s17, 11
        ''')
        for sec in range(3):
            for i in range(2):
                a(f's_add_u32 s34, s32, {sec * 1152 + i * 4 * 3456}')
                a(f's_add_u32 m0, s33, {sec * 8192 + i * 1024}')
                a(f'buffer_load_dwordx4 v24, s[8:11], s34 offen{self.ntw} lds')
        LJ = a.label('P0J')
        a(f'''
        s_branch {LJ}
        {LA}:
        s_sub_u32 s39, s78, 18
        s_mul_i32 s38, s79, 14
        s_add_u32 s39, s39, s38
        s_lshl_b32 s39, s39, 2
        s_add_u32 s39, s39, s17
        s_mul_i32 s39, s39, 1536
        v_lshlrev_b32 v24, 7, v3
        s_mov_b32 s10, {576 * 1152}
        s_mov_b64 exec, 0xfff
        ''')
        for p in (() if 'nopre' in self.exp else (52, 56)):
            a(f's_mov_b32 s8, s{p}')
            a(f's_mov_b32 s9, s{p + 1}')
            a(f'buffer_load_dword v25, v24, s[8:11], s39 offen')
        a(f's_mov_b32 s10, {576 * 36}')
        for p in (58, 60):
            a(f's_mov_b32 s8, s{p}')
            a(f's_mov_b32 s9, s{p + 1}')
            a(f'buffer_load_dword v25, v24, s[8:11], s39 offen')
        a('s_mov_b64 exec, -1')
        a(f'{LJ}:')
        a(f'''
        s_lshl_b32 s89, s20, 2
        s_add_u32 s89, s89, s17
        s_mul_i32 s88, s89, {TILE}
        s_lshl_b32 s89, s89, 10
        s_waitcnt vmcnt(0)
        ''')
        self.nonce()
        self.stamp('p0.loaded')
        self.bar('b0a')
        LA2, LA3 = a.label('NOWA2'), a.label('NOWAT')
        a(f'''
        s_cmp_ge_u32 s78, 18
        s_cbranch_scc1 {LA2}
        s_mul_i32 s32, s17, 36
        s_lshl_b32 s33, s81, 4
        s_add_u32 s32, s32, s33
        v_lshlrev_b32 v24, 11, v21
        v_lshl_add_u32 v30, v20, 1, v24
        v_add_u32 v30, s32, v30
        s_lshl_b32 s34, s81, 1
        s_lshr_b32 s32, s17, 1
        s_add_u32 s34, s34, s32
        s_mul_i32 s34, s34, 18
        s_add_u32 s34, s34, s80
        s_mul_i32 s34, s34, 7
        s_and_b32 s32, s17, 1
        s_add_u32 s34, s34, s32
        s_lshl_b32 s34, s34, 10
        s_add_u32 s34, s34, {WA_P}
        s_add_u32 s32, s34, 4096
        ''')
        for sec in range(3):
            self.gather_lds(30, sec * 8192, 96 + 8 * sec)
        for sec in range(3):
            a(f's_waitcnt lgkmcnt({min(15, 16 - 8 * sec)})')
            self.gather_pack(120 + 4 * sec, 96 + 8 * sec)
            if sec < 2:
                a(f'buffer_store_dwordx4 {vr(120 + 4 * sec)}, v0, {WS}, s34 offen offset:{sec * 2048} sc1')
            else:
                a(f'buffer_store_dwordx4 {vr(120 + 4 * sec)}, v0, {WS}, s32 offen sc1')
        a(f'''
        s_cmp_ge_u32 s17, 2
        s_cbranch_scc1 {LA3}
        v_bfe_u32 v31, v20, 1, 1
        v_bfe_u32 v132, v20, 2, 1
        v_cmp_le_u32 vcc, 8, v20
        v_cndmask_b32 v133, v132, v31, vcc
        v_cndmask_b32 v31, v31, 2, vcc
        v_lshlrev_b32 v31, 13, v31
        v_mad_u32_u24 v31, v133, 36, v31
        v_and_b32 v132, 1, v20
        v_lshl_add_u32 v31, v132, 1, v31
        v_add_u32 v31, v31, v24
        s_mul_i32 s32, s17, 72
        s_add_u32 s32, s32, s33
        s_add_u32 s32, s32, 32
        v_add_u32 v31, s32, v31
        s_lshl_b32 s34, s81, 1
        s_add_u32 s34, s34, s17
        s_mul_i32 s34, s34, 18
        s_add_u32 s34, s34, s80
        s_mul_i32 s34, s34, 7
        s_add_u32 s34, s34, 6
        s_lshl_b32 s34, s34, 10
        s_add_u32 s34, s34, {WA_P}
        ''')
        self.gather_lds(31, 0, 136)
        a('s_waitcnt lgkmcnt(0)')
        self.gather_pack(144, 136)
        a('v_cmp_le_u32 vcc, 12, v20')
        for k in range(4):
            a(f'v_cndmask_b32 v{144 + k}, v{144 + k}, 0, vcc')
        a(f'buffer_store_dwordx4 v[144:147], v0, {WS}, s34 offen sc1')
        a(f'{LA3}:')
        a('s_lshl_b32 s32, s80, 3')
        a('s_add_u32 s32, s32, s81')
        a('s_lshl_b32 s32, s32, 8')
        a(f's_add_u32 s32, s32, {WFLAG}')
        self.signal('s85', line='s32')
        a(f'{LA2}:')
        self.bar('b0b')
        self.stamp('p0.flag1')
        if 'pf' in self.exp:
            LP, LE = a.label('PF'), a.label('PFE')
            a(f'''
            s_lshl_b32 s32, s78, 2
            s_add_u32 s32, s32, s17
            v_mov_b32 v14, 0
            v_min_u32 v24, 55, v3
            v_lshlrev_b32 v24, 7, v24
            {LP}:
            s_lshl_b32 s30, s32, 8
            s_add_u32 s30, s30, {WFLAG}
            s_and_b32 s33, s32, 7
            s_mul_i32 s33, s33, 36
            s_lshr_b32 s34, s32, 3
            s_add_u32 s33, s33, s34
            s_mul_i32 s33, s33, 7168
            s_add_u32 s33, s33, {WA_P}
            s_add_u32 s34, s33, {126 * 1024}
            ''')
            self.poll('s30', 's85')
            a(f'''
            buffer_load_dword v25, v24, {WS}, s33 offen sc1
            buffer_load_dword v26, v24, {WS}, s34 offen sc1
            s_add_u32 s32, s32, 128
            s_cmp_lt_u32 s32, 144
            s_cbranch_scc1 {LP}
            ''')
        a(f'''
        s_mov_b32 s68, 0
        s_lshl_b32 s81, s16, 2
        s_add_u32 s81, s81, s17
        s_lshl_b32 s81, s81, 7
        s_add_u32 s81, s81, {VFLAG}
        s_lshl_b32 s83, s21, 9
        s_sub_u32 s83, s81, s83
        s_lshl_b32 s82, s22, 12
        s_add_u32 s82, s82, {FLAG}
        v_and_b32 v14, 15, v3
        v_lshlrev_b32 v14, 8, v14
        ''')

    def p1(self):
        a = self.a
        ACC = lambda x, t: 20 + 28 * x + 4 * t
        WR = lambda s, t: 84 + 28 * (s % 2) + 4 * t
        AR = lambda s, x: 164 + 8 * (s % 8) + 4 * x
        RAW, PR = 228, 136
        H1, H2 = 76, 80
        NR = lambda x: vr(RAW + 4 * x + 2, 2)
        QC = lambda x: RAW + 4 * x
        TQD = (160, 176)
        vH1, vH2, vHA, vHT = 244, 245, 246, 247
        RD = (3, 5, 8)
        MP, MC, MPA, PM = 180, 184, 188, 192
        xK, xT, xV, cN, cS, vTR, hN, hS = 196, 197, 198, 199, 200, 201, 202, 203
        vW, TOK, GG = 248, 249, 250
        QO = lambda x, h: 204 + 8 * x + 4 * h
        KO = lambda h, y: 112 + 12 * h + 4 * y
        VV = lambda h: 164 + 6 * h
        VT = (220, 106)
        cexp = 18 ** -0.5 * math.log2(math.e)

        def setup():
            a(f'''
            v_and_b32 v{TOK}, 15, v3
            v_lshrrev_b32 v{GG}, 4, v3
            v_mov_b32 v{vW}, v0
            v_mov_b32 v242, {L_RDY}
            s_lshl_b32 s28, s22, 3
            s_lshl_b32 s29, s17, 1
            s_add_u32 s29, s29, s28
            s_mul_i32 s48, s29, {TILE}
            s_add_u32 s48, s48, s24
            s_add_u32 s53, s48, {TILE}
            s_lshl_b32 s58, s29, 10
            s_add_u32 s58, s58, s25
            s_lshl_b32 s28, s19, 4
            s_add_u32 s28, s28, s22
            s_mul_i32 s59, s28, {HSLOT}
            s_add_u32 s59, s59, {HALO + TILE}
            s_lshl_b32 s71, s19, 2
            s_add_u32 s71, s71, 4
            ''')
            self.tile_sgprs(48)
            self.tile_sgprs(53)
            a(f'''
            s_lshl_b32 s60, s17, 9
            s_add_u32 s60, s60, {L_ST}
            v_lshl_add_u32 v240, v{TOK}, 2, s60
            v_lshl_add_u32 v241, v{GG}, 4, s60
            s_mov_b32 s76, -1
            s_mov_b32 s77, 0
            s_lshr_b32 s28, s17, 1
            s_and_b32 s29, s17, 1
            s_lshl_b32 s86, s28, 2
            s_add_u32 s86, s86, s29
            s_add_u32 s86, s86, 2
            s_min_u32 s86, s86, 6
            s_xor_b32 s28, s28, 1
            s_lshl_b32 s87, s28, 2
            s_add_u32 s87, s87, s29
            s_lshl_b32 s28, s86, 10
            s_lshl_b32 s29, s87, 10
            v_add_u32 v{vH1}, s28, v0
            v_add_u32 v{vH2}, s29, v0
            v_add_u32 v{vHA}, {L_HALO}, v0
            v_add_u32 v{vHT}, {L_HALO + 16384}, v2
            s_lshl_b32 s34, s23, 10
            s_add_u32 s34, s34, s48
            s_add_u32 s34, s34, {ACTB}
            s_add_u32 s35, s34, {TILE}
            s_lshl_b32 s36, s23, 7
            s_add_u32 s36, s36, s48
            s_add_u32 s36, s36, {ACTB + 16384}
            s_add_u32 s37, s36, {TILE}
            s_mov_b32 s72, 0xffff
            s_mov_b32 s73, 0
            s_mov_b32 s74, 0xffff0000
            s_mov_b32 s75, 0
            s_or_b32 s28, s22, s17
            v_mov_b32 v251, s28
            v_cmp_eq_u32 s[62:63], 0, v251
            s_mul_i32 s32, s17, 2304
            s_add_u32 s32, s32, {L_EX}
            s_lshl_b32 s33, s17, 9
            s_add_u32 s33, s33, {L_VT}
            s_cmp_lt_u32 s17, 2
            s_cselect_b64 s[64:65], -1, 0
            s_cselect_b32 s66, 0, 0xffff
            s_cmp_lt_u32 s17, 3
            s_cselect_b64 s[78:79], -1, 0
            s_lshl_b32 s38, s86, 6
            s_add_u32 s38, s38, {L_CS}
            s_lshl_b32 s39, s87, 6
            s_add_u32 s39, s39, {L_CS}
            ''')
        self.poll_early('s82', 's85', setup)
        self.stamp('p1.polled')
        G = {}
        for s in range(18):
            with a.capture() as L:
                self.load_frag(s, AR(s, 0), 48)
                self.load_frag(s, AR(s, 1), 53)
                a.mark_vm(('p1', s))
            G[s] = groups(L)
        with a.capture() as L:
            for x in range(2):
                a(f'buffer_load_dwordx2 {vr(RAW + 4 * x, 2)}, v1, {WS}, s58 offen offset:{1024 * x} sc1')
                a(f'buffer_load_dwordx2 {vr(RAW + 4 * x + 2, 2)}, v1, {WS}, s58 offen offset:{1024 * x + 512} sc1')
            a.mark_vm(('p1', 'st'))
        GS = groups(L)
        with a.capture() as L:
            a(f'buffer_load_dwordx2 {vr(RAW + 8, 2)}, v1, {WS}, s59 offen sc1')
            a(f'buffer_load_dwordx2 {vr(RAW + 10, 2)}, v1, {WS}, s59 offen offset:512 sc1')
            a.mark_vm(('p1', 'hst'))
        GH = groups(L)

        def hreads(hs):
            o = (7 * (hs % 9)) * 1024
            rb = 140 + 12 * (hs % 2)
            out = [f'v_add_u32 v{r}, {63 * 1024}, v{r}' for r in (vH1, vH2)] if hs == 9 else []
            if hs < 16:
                out.append(f'ds_read_b128 {vr(rb)}, v{vHA} offset:{hs * 1024}')
            else:
                out.append(f'ds_read_b64 {vr(rb, 2)}, v{vHT} offset:{(hs - 16) * 1024}')
                out.append(f'ds_read_b64 {vr(rb + 2, 2)}, v{vHT} offset:{(hs - 16) * 1024 + 128}')
            out.append(f'ds_read_b128 {vr(rb + 4)}, v{vH1} offset:{o}')
            out.append(f'ds_read_b128 {vr(rb + 8)}, v{vH2} offset:{o}')
            return out

        def reads(s):
            o = (7 * (s % 9)) * 1024
            out = [f'v_add_u32 v{vW}, {63 * 1024}, v{vW}'] if s == 9 else []
            return out + [f'ds_read_b128 {vr(WR(s, t))}, v{vW} offset:{o + t * 1024}' for t in range(7)]

        npro = 8 if 'pro8' in self.exp else (6 if 'pro6' in self.exp else 4)
        for s in range(npro):
            for g in G[s]:
                self.run(g)
        LR, LB = a.label('RES'), a.label('RESB')
        a('s_cmp_eq_u32 s19, 0')
        a(f's_cbranch_scc1 {LR}')
        a(f'{LB}:')
        self.cold.append(lambda: a(f'''
        {LR}:
        s_lshl_b32 s28, s21, 11
        s_add_u32 s29, s88, {ACT}
        s_add_u32 s28, s28, s29
        s_lshl_b32 s30, s21, 8
        s_add_u32 s29, s29, s30
        s_add_u32 s29, s29, 16384
        v_mov_b32 v12, 0
        v_mov_b32 v13, 0
        buffer_load_dwordx4 v[4:7], v0, {WS}, s28 offen sc1
        buffer_load_dwordx4 v[8:11], v0, {WS}, s28 offen offset:1024 sc1
        s_mov_b32 exec_hi, 0
        buffer_load_dwordx2 v[12:13], v1, {WS}, s29 offen sc1
        s_mov_b64 exec, -1
        s_branch {LB}
        '''))
        self.bar('c0')
        self.stamp('p1.bar')
        rid = {}

        def emit_read(s, r):
            a(r)
            if r.startswith('ds_read'):
                rid.setdefault(s, []).append(a.lg)
        for r in reads(0):
            emit_read(0, r)
        queue = {4: G[4] + G[5] + GS + G[6] + G[7], 6: GS + G[6] + G[7], 8: GS}[npro]
        with a.capture() as side:
            a.wvm(('p1', 'st'))
            for x in range(2):
                self.stats_finish(RAW + 4 * x)
            for x in range(2):
                a(f'ds_write_b32 v240, v{RAW + 4 * x + 2} offset:{128 * x}')
                a(f'ds_write_b32 v240, v{RAW + 4 * x + 3} offset:{128 * x + 64}')
                a(f'v_cndmask_b32 v{QC(x)}, v{RAW + 4 * x + 3}, 1.0, s[76:77]')
                a(f'v_mul_f32 v{QC(x) + 1}, 0x{f2u(cexp):x}, v{RAW + 4 * x + 3}')
        with a.capture() as side2:
            a.wvm(('p1', 'hst'))
            self.stats_finish(RAW + 8)
            a(f'ds_write_b32 v240, v{RAW + 10} offset:256')
            a(f'ds_write_b32 v240, v{RAW + 11} offset:320')
            a(f'v_mov_b32 v243, 0x{f2u(-1e30):x}')
            a(f'v_and_b32 v242, 1, v{TOK}')
            a('v_lshlrev_b32 v242, 4, v242')
            a('v_lshlrev_b32 v240, v242, s72')
            for r in range(4):
                a(f'v_lshl_add_u32 v251, v{GG}, 2, {r}')
                a(f'v_sub_u32 v251, v{TOK}, v251')
                if r % 2 == 0:
                    a('v_cmp_le_i32 vcc, 0, v251')
                    a(f'v_cndmask_b32 v{PM + 2 + r // 2}, 0, v240, vcc')
                    a(f'v_cndmask_b32 v{PM + r // 2}, v240, 0, vcc')
                a('v_and_b32 v251, 0x80000001, v251')
                a('v_cmp_eq_u32 vcc, 0, v251')
                a(f'v_cndmask_b32 v{MC + r}, v243, 0, vcc')
                a('v_cmp_eq_u32 vcc, 0x80000000, v251')
                a(f'v_cndmask_b32 v{MP + r}, v243, 0, vcc')
                a(f'v_cndmask_b32 v{MPA + r}, v{MP + r}, v243, s[62:63]')
            a(f'''
            v_add_u32 v{xK}, s32, v1
            v_lshl_add_u32 v{xT}, v3, 2, s32
            v_lshl_add_u32 v{xV}, v{TOK}, 4, s33
            v_lshlrev_b32 v{cN}, 4, v{GG}
            v_lshlrev_b32 v{cS}, 2, v{TOK}
            v_add_u32 v{hN}, s38, v{cN}
            v_add_u32 v{hS}, s39, v{cS}
            v_add_u32 v{cN}, {L_CS}, v{cN}
            v_add_u32 v{cS}, {L_CS}, v{cS}
            v_and_b32 v{vTR}, 60, v3
            v_lshl_add_u32 v{vTR}, v{vTR}, 2, s33
            ''')
            for u in range(4):
                a(f'v_mov_b32 v{204 + 4 * u + 3}, 0')
            a(f'''
            s_mul_i32 s28, s17, {512 - 2304}
            v_add_u32 v225, s28, v{xK}
            v_lshlrev_b32 v226, 2, v3
            v_lshlrev_b32 v227, 4, v{TOK}
            v_add_u32 v226, {L_EX + 2048}, v226
            v_add_u32 v227, {L_VT}, v227
            ''')
        for s in range(18):
            if s in RD:
                if 'rd' in self.exp:
                    self.stamp(f'<r{s}')
                self.spin(RD.index(s), 242, 243, rdy, need='s71' if s == 8 else '4')
                if 'rd' in self.exp:
                    self.stamp(f'>r{s}')
            if s == 11:
                for g in queue:
                    self.run(g)
                del queue[:]
                a('v_and_b32 v14, 31, v3')
                a('v_lshlrev_b32 v14, 8, v14')
                a('s_and_b32 s28, s16, 0xe0')
                a('s_lshl_b32 s28, s28, 8')
                a(f's_add_u32 s28, s28, {FLAG + 132}')
                self.bar('c1')
                a(f'buffer_load_dword v15, v14, {WS}, s28 offen sc1')
            if 1 <= s <= 10:
                queue += G[s + 7]
            if s == 8:
                queue += GH
            a.wvm(('p1', s))
            nxt = [(s + 1, r) for r in reads(s + 1)] if s < 17 else []
            if s == 8:
                nxt += [(('h', 0), r) for r in hreads(0)] + [(('h', 1), r) for r in hreads(1)]
            order = (2, 4, 3, 5, 6, 0, 1) if s == 17 else range(7)
            ms = []
            for t in order:
                w = vr(WR(s, t))
                for x in (1, 0):
                    xf = vr(AR(s, x))
                    c = '0' if s == 0 else vr(ACC(x, t))
                    if t in (4, 5):
                        ms.append(f'{M16} {vr(ACC(x, t))}, {xf}, {w}, {c}')
                    else:
                        ms.append(f'{M16} {vr(ACC(x, t))}, {w}, {xf}, {c}')
            hpos = {}
            if s >= 9:
                for k, p in enumerate((0, 2) if s == 17 else (4, 12)):
                    hs = 2 * (s - 9) + k
                    rb = 140 + 12 * k
                    ms[p:p] = [f'{M16} {vr(H1)}, {vr(rb + 4)}, {vr(rb)}, {"0" if hs == 0 else vr(H1)}',
                               f'{M16} {vr(H2)}, {vr(rb)}, {vr(rb + 8)}, {"0" if hs == 0 else vr(H2)}']
                    hpos[p] = hs
            for i, m in enumerate(ms):
                if i == 5 and s + 1 in RD:
                    a(f'ds_read_b32 v243, v242 offset:{4 * RD.index(s + 1)}')
                    rdy = a.lg
                if s == 17:
                    if i == 0:
                        a('s_waitcnt lgkmcnt(0)')
                else:
                    if i == 0:
                        a.wait_lg(rid[s][3])
                    if i == 6:
                        a.wait_lg(rid[s][-1])
                    if i in hpos:
                        a.wait_lg(rid[('h', hpos[i])][-1])
                a(m)
                if i - 1 in hpos and hpos[i - 1] + 2 < 18:
                    hs = hpos[i - 1] + 2
                    nxt += [(('h', hs), r) for r in hreads(hs)]
                ns = 2
                if i % 5 == 1 and queue:
                    self.run(queue.pop(0))
                    ns = 0
                elif nxt and not (s < 8 and i % 5 == 3):
                    emit_read(*nxt.pop(0))
                    ns = 1 if (s >= 13 and i % 2) else 0
                for _ in range(ns):
                    if s >= 4 and side:
                        a.emit(side.pop(0))
                    elif s >= 12 and side2:
                        x = side2.pop(0)
                        if not callable(x):
                            for k, r in Ins(x).w:
                                if k == 'v' and 164 <= r < 228:
                                    slot = (r - 164) // 8
                                    assert (slot + 16 if slot < 2 else slot + 8) < s, (x, s)
                        a.emit(x)
            for r in nxt:
                emit_read(*r)
        assert not queue and not side and not side2
        self.stamp('p1.mfma')
        CS = 84
        cs = {0: CS, 1: CS + 4, 2: CS + 8, 3: CS + 12, 6: CS + 16, 4: CS + 20, 5: CS + 21}
        self.exec_mask(0x0001000100010001)
        a(f'ds_write_b128 v{hN}, {vr(H1)}')
        self.exec_mask(0xffff)
        a(f'ds_write_b32 v{hS}, v{H2}')
        self.exec_mask(-1)
        a(f'ds_read_b128 v[220:223], v{hN}')
        a(f'ds_read_b32 v224, v{hS}')
        for x in (2, 1, 0):
            a(f'ds_read_b128 {vr(PR + 8 * x)}, v241 offset:{128 * x}')
            a(f'ds_read_b128 {vr(PR + 8 * x + 4)}, v241 offset:{128 * x + 64}')
        a('s_waitcnt lgkmcnt(8)')
        self.bar('t1')
        a(f'ds_read_b128 {vr(cs[2])}, v{cN} offset:{64 * 2}')
        a(f'ds_read2_b32 {vr(cs[4], 2)}, v{cS} offset0:{16 * 4} offset1:{16 * 5}')
        for t in (3, 6, 0, 1):
            a(f'ds_read_b128 {vr(cs[t])}, v{cN} offset:{64 * t}')
        for q in TQD + (108,):
            a(f'v_mov_b32 v{q + 1}, v16')
            a(f'v_mov_b32 v{q + 3}, v16')

        def cen_n(acc, c, x):
            for r in (0, 2):
                a(f'v_pk_fma_f32 {vr(acc + r, 2)}, {vr(c + r, 2)}, {NR(x)}, {vr(acc + r, 2)} op_sel_hi:[1,0,1]')

        def scl_n(acc, x):
            for r in (0, 2):
                a(f'v_pk_mul_f32 {vr(acc + r, 2)}, {vr(acc + r, 2)}, {NR(x)} op_sel:[0,1] op_sel_hi:[1,1]')

        def norm_s(acc, h, x, c=None):
            for r in (0, 2):
                a(f'v_pk_fma_f32 {vr(acc + r, 2)}, {vr(PR + 8 * x + r, 2)}, {vr(c or cs[4], 2)}, {vr(acc + r, 2)} '
                  f'op_sel:[0,{h},0] op_sel_hi:[1,{h},1]')
            for r in (0, 2):
                a(f'v_pk_mul_f32 {vr(acc + r, 2)}, {vr(acc + r, 2)}, {vr(PR + 8 * x + 4 + r, 2)}')

        def pack(dst, acc):
            a(f'v_cvt_pk_bf16_f32 v{dst}, v{acc}, v{acc + 1}')
            a(f'v_cvt_pk_bf16_f32 v{dst + 1}, v{acc + 2}, v{acc + 3}')

        def tail_tile(x):
            T = ACC(x, 6)
            cen_n(T, cs[6], x)
            a(f'v_pk_mul_f32 {vr(T, 2)}, {vr(T, 2)}, {vr(QC(x), 2)} op_sel_hi:[1,0]')
            a(f'v_pk_mul_f32 {vr(T + 2, 2)}, {vr(T + 2, 2)}, {NR(x)} op_sel:[0,1] op_sel_hi:[1,1]')
            a(f'v_cvt_pk_bf16_f32 v{TQD[x]}, v{T}, v{T + 1}')
            for d in (TQD[x] + 2, KO(0, x + 1) + 2, KO(1, x + 1) + 2):
                a(f'v_cvt_pk_bf16_f32 v{d}, v{T + 2}, v{T + 3}')

        def kv_head(x, h):
            cen_n(ACC(x, 2 + h), cs[2 + h], x)
            norm_s(ACC(x, 4 + h), h, x)
            scl_n(ACC(x, 2 + h), x)
            pack(VV(h) + 2 * x + 2, ACC(x, 4 + h))
            pack(KO(h, x + 1), ACC(x, 2 + h))

        if 'tail' in self.exp:
            self.stamp('t.t1')
        a('s_waitcnt lgkmcnt(10)')
        cen_n(H1, 220, 2)
        norm_s(H2, 0, 2, 224)
        scl_n(H1, 2)
        a(f'v_cvt_pk_bf16_f32 v108, v{H1}, v{H1 + 1}')
        a(f'v_cvt_pk_bf16_f32 v110, v{H1 + 2}, v{H1 + 3}')
        pack(H1, H1)
        pack(H2, H2)
        a(f'''
        s_mov_b64 exec, s[64:65]
        ds_write_b64 v225, {vr(H1, 2)}
        ds_write_b64 v225, {vr(H2, 2)} offset:1024
        s_not_b64 exec, exec
        ds_write_b32 v226, v110
        s_mov_b32 exec_lo, 0
        s_mov_b32 exec_hi, s66
        ds_write_b128 v227, v[108:111]
        s_mov_b64 exec, -1
        ''')
        a('s_waitcnt lgkmcnt(6)')
        kv_head(1, 0)
        a('s_waitcnt lgkmcnt(4)')
        kv_head(1, 1)
        tail_tile(1)
        a('s_mov_b64 exec, s[78:79]')
        for h in range(2):
            a(f'ds_write_b64 v{xK}, {vr(KO(h, 2), 2)} offset:{2304 + 512 * h}')
            a(f'ds_write_b64 v{xK}, {vr(VV(h) + 4, 2)} offset:{2304 + 1024 + 512 * h}')
        a(f'ds_write_b32 v{xT}, v{KO(0, 2) + 2} offset:{2304 + 2048}')
        self.exec_mask(-1)
        tail_tile(0)
        self.exec_mask(0x0000ffff00000000)
        a(f'ds_write_b128 v{xV}, {vr(TQD[1])} offset:512')
        a(f'ds_write_b128 v{xV}, {vr(TQD[0])} offset:256')
        self.exec_mask(-1)
        kv_head(0, 0)
        kv_head(0, 1)
        a('s_waitcnt lgkmcnt(0)')
        self.bar('t2')
        for h in range(2):
            a(f'ds_read_b64 {vr(KO(h, 0), 2)}, v{xK} offset:{512 * h}')
            a(f'ds_read_b32 v{KO(h, 0) + 2}, v{xT} offset:2048')
        for h in range(2):
            a(f'ds_read_b64 {vr(VV(h), 2)}, v{xK} offset:{1024 + 512 * h}')
            for y in range(3):
                a(f'ds_read_b64_tr_b16 {vr(VT[h] + 2 * y, 2)}, v{vTR} offset:{256 * y + 8 * h}')
        units = [(x, h) for x in (1, 0) for h in range(2)]
        SS = lambda u: (56, 64, 28, 36)[u]
        PP = lambda u: (48, 52, 20, 24)[u]
        OM = lambda u: 112 + 8 * u
        TM = lambda u: 72 + 2 * u

        def qk(u):
            x, h = units[u]
            a(f'{M16} {vr(SS(u))}, {vr(KO(h, x))}, {vr(QO(x, h))}, {vr(MPA if x == 0 else MP)}')
            a(f'{M16} {vr(SS(u) + 4)}, {vr(KO(h, x + 1))}, {vr(QO(x, h))}, {vr(MC)}')
        for u, (x, h) in enumerate(units):
            cen_n(ACC(x, h), cs[h], x)
            a(f'v_cndmask_b32 v{QO(x, h) + 2}, 0, v{TQD[x]}, s[{72 + 2 * h}:{73 + 2 * h}]')
            pack(QO(x, h), ACC(x, h))
            if u == 3:
                a('s_waitcnt lgkmcnt(8)')
            if u >= 1:
                qk(u - 1)

        def mx(u):
            S, m = SS(u), TM(u)
            a(f'v_max3_f32 v{S}, v{S}, v{S + 1}, v{S + 4}')
            a(f'v_max3_f32 v{S + 2}, v{S + 2}, v{S + 3}, v{S + 6}')
            a(f'v_max_f32 v{S}, v{S}, v{S + 5}')
            a(f'v_max_f32 v{S + 2}, v{S + 2}, v{S + 7}')
            a(f'v_max_f32 v{m}, v{S}, v{S + 2}')
            a(f'v_max_f32 v{m + 1}, v{S}, v{S + 2}')
        qk(3)
        if 'tail' in self.exp:
            self.stamp('t.qk')
        for u in range(4):
            mx(u)
        for u in range(4):
            a(f'v_permlane32_swap_b32 v{TM(u)}, v{TM(u) + 1}')
        for u in range(4):
            a(f'v_max_f32 v{TM(u)}, v{TM(u)}, v{TM(u) + 1}')
        for u in range(4):
            a(f'v_mov_b32 v{TM(u) + 1}, v{TM(u)}')
        for u in range(4):
            a(f'v_permlane16_swap_b32 v{TM(u)}, v{TM(u) + 1}')
        for u in range(4):
            a(f'v_max_f32 v{TM(u)}, v{TM(u)}, v{TM(u) + 1}')
        for u in range(4):
            for i in (0, 2):
                a(f'v_sub_f32 v{SS(u) + i}, v{SS(u) + i}, v{TM(u)}')
        for u in range(4):
            for i in (0, 2):
                a(f'v_mul_f32 v{SS(u) + i}, v{SS(u) + i}, v{QC(units[u][0]) + 1}')
        for u in range(4):
            for i in (0, 2):
                a(f'v_exp_f32 v{SS(u) + i}, v{SS(u) + i}')
        a(f'''
        s_waitcnt vmcnt(0) lgkmcnt(0)
        v_cmp_ne_u32 vcc, s84, v15
        s_cmp_eq_u64 vcc, 0
        s_cselect_b32 s68, {0 if self.no_local else 1}, 0
        ''')

        if 'tail' in self.exp:
            self.stamp('t.exp')

        def pv(u):
            x, h = units[u]
            a(f'{M16} {vr(OM(u) + 4)}, {vr(VT[h] + 2 * x)}, {vr(PP(u))}, 0')
            a(f'{M16} {vr(OM(u))}, {vr(VV(h) + 2 * x)}, {vr(PP(u))}, 0')
        for u in range(4):
            S = SS(u)
            for i in (0, 2):
                a(f'v_cvt_pk_bf16_f32 v{S + i}, v{S + i}, v{S + i}')
            for k in range(4):
                a(f'v_and_b32 v{PP(u) + k}, v{S + 2 * (k % 2)}, v{PM + k}')
            if u >= 1:
                pv(u - 1)
        a(f'v_rcp_f32 v{OM(0) + 6}, v{OM(0) + 6}')
        pv(3)

        def fin(u):
            x, h = units[u]
            O = OM(u)
            d = 84 + 8 * x
            if u < 3:
                a(f'v_rcp_f32 v{OM(u + 1) + 6}, v{OM(u + 1) + 6}')
            for i in (0, 2, 4):
                a(f'v_pk_mul_f32 {vr(O + i, 2)}, {vr(O + i, 2)}, {vr(O + 6, 2)} op_sel_hi:[1,0]')
            a(f'v_cvt_pk_bf16_f32 v{d + 2 * h}, v{O}, v{O + 1}')
            a(f'v_cvt_pk_bf16_f32 v{d + 2 * h + 1}, v{O + 2}, v{O + 3}')
            a(f'v_cvt_pk_bf16_f32 v{d + 4 + h}, v{O + 4}, v{O + 5}')
        for u in range(4):
            fin(u)
        if 'tail' in self.exp:
            self.stamp('t.fin')

        def st(f):
            for x in range(2):
                a(f'buffer_store_dwordx4 {vr(84 + 8 * x)}, v0, {WS}, s{34 + x} offen{f}')
            self.exec_mask(0xffff)
            for x in range(2):
                a(f'buffer_store_dwordx2 {vr(88 + 8 * x, 2)}, v1, {WS}, s{36 + x} offen{f}')
            self.exec_mask(-1)
        self.scoped(st, 's68')
        self.stamp('p1.att')

    def a_groups(self, key, src_off, stats=None):
        a = self.a
        a('s_add_u32 s48, s88, s24')
        a(f's_add_u32 s48, s48, {src_off}')
        self.tile_sgprs(48)
        with a.capture() as L:
            if stats is not None:
                raw, so = stats
                a(f'buffer_load_dwordx2 {vr(raw, 2)}, v1, {WS}, {so} offen sc1')
                a(f'buffer_load_dwordx2 {vr(raw + 2, 2)}, v1, {WS}, {so} offen offset:512 sc1')
                a.mark_vm((key, 'st'))
            for s in range(18):
                self.load_frag(s, 52 + 4 * s, 48)
                a.mark_vm((key, s))
        return groups(L)

    def proj(self, which):
        a = self.a
        ACCR, NS = 20, 30
        slot = lambda f: 132 + 4 * (f % NS)
        wb = 0 if which == 2 else L_W5
        rd = lambda f: f'ds_read_b128 {vr(slot(f))}, v{49 if f >= 60 else 51} offset:{(f % 60) * 1024}'
        dst = self.B[2] if which == 2 else self.B[4]
        a(f'''
        v_and_b32 v14, {15 if which == 2 else 7}, v3
        v_lshlrev_b32 v14, 9, v14
        s_lshl_b32 s30, s22, 13
        s_and_b32 s28, s20, 1
        s_lshl_b32 s28, s28, 1
        s_lshr_b32 s29, s17, 1
        s_add_u32 s28, s28, s29
        s_lshl_b32 s28, s28, 7
        s_add_u32 s30, s30, s28
        s_add_u32 s30, s30, {VFLAG}
        s_add_u32 s31, s26, {0 if which == 2 else 2}
        v_add_u32 v49, {wb + 60 * 1024}, v0
        v_add_u32 v51, {wb}, v0
        s_add_u32 s34, s88, s24
        s_add_u32 s34, s34, {dst}
        s_lshl_b32 s35, s21, 8
        s_add_u32 s35, s35, s34
        s_add_u32 s35, s35, 16384
        s_lshl_b32 s36, s21, 11
        s_add_u32 s34, s34, s36
        s_lshl_b32 s36, s21, 7
        s_add_u32 s36, s36, s89
        s_add_u32 s36, s36, s25
        s_add_u32 s36, s36, {self.ST[1] if which == 2 else self.ST[2]}
        v_and_b32 v48, 0x78, v1
        ''')
        AG = self.a_groups(which, self.B[1] if which == 2 else self.B[3])
        self.wave_signal('s31')
        self.stamp('p1.flag' if which == 2 else 'p4.flag')
        self.bar(f'v{which}')
        rid = {}
        for f in range(10):
            a(rd(f)); rid[f] = a.lg
            a(f'v_lshlrev_b32 v{ACCR + 2 * f}, 16, v{4 + f}')
            a(f'v_and_b32 v{ACCR + 2 * f + 1}, 0xffff0000, v{4 + f}')

        def more():
            for f in range(10, 20):
                a(rd(f)); rid[f] = a.lg
        self.poll_early('s30' if which == 2 else 's83', 's31', more)
        self.stamp(f'p{which}.polled')
        npre = int(next((e[3:] for e in self.exp if e.startswith('pre')), 8))
        for i in range(npre):
            self.run(AG.pop(0))
            for f in range(20 + i * 10 // npre, 20 + (i + 1) * 10 // npre):
                a(rd(f)); rid[f] = a.lg
        nf = NS
        for s in range(18):
            a.wvm((which, s))
            a.wait_lg(rid[5 * s + 4])
            if s == 17:
                self.bar(f'm{which}')
            for t in range(5):
                a(f'{M16} {vr(ACCR + 4 * t)}, {vr(slot(5 * s + t))}, {vr(52 + 4 * s)}, {vr(ACCR + 4 * t)}')
                if t == 0:
                    if AG:
                        self.run(AG.pop(0))
                elif nf < 90:
                    a(rd(nf)); rid[nf] = a.lg; nf += 1
        self.stamp(f'p{which}.mfma')
        for i in range(10):
            a(f'v_cvt_pk_bf16_f32 v{4 + i}, v{ACCR + 2 * i}, v{ACCR + 2 * i + 1}')
        if which == 5:
            a('s_cmp_eq_u32 s19, 1')
            a('s_cbranch_scc1 L_FINAL')
        self.stats_emit(['v[4:7]', 'v[8:11]'], 'v[12:13]', 40, 44)

        def st(f):
            a(f'buffer_store_dwordx4 v[4:7], v0, {WS}, s34 offen{f}')
            a(f'buffer_store_dwordx4 v[8:11], v0, {WS}, s34 offen offset:1024{f}')
            a('s_mov_b32 exec_hi, 0')
            a(f'buffer_store_dwordx2 v[12:13], v1, {WS}, s35 offen{f}')
            self.exec_mask(-1)
            a('s_nop 2')
            self.stats_store(40, 44, 's36', 'v48', f)
        self.scoped(st, 's68')

    def p3(self):
        a = self.a
        QA, RAW, NM, RS, PR, KA, KC = 20, 40, 42, 43, 44, 20, 28
        Q1, Q2 = 132, 140
        TOK, GG = 124, 125
        LNP, LJ, LV = a.label('NOPROD'), a.label('JOIN'), a.label('VPATH')
        a(f'''
        v_and_b32 v14, 7, v3
        v_lshlrev_b32 v14, 9, v14
        s_add_u32 s33, s26, 1
        s_add_u32 s58, s89, s25
        s_add_u32 s58, s58, {self.ST[1]}
        v_and_b32 v{TOK}, 15, v3
        v_lshrrev_b32 v{GG}, 4, v3
        s_and_b32 s29, s21, 3
        s_cmp_lg_u32 s29, s17
        s_cbranch_scc1 {LNP}
        ''')
        NK = 30
        kslot = lambda f: 132 + 4 * (f % NK)
        rdk = lambda f: f'ds_read_b128 {vr(kslot(f))}, v126 offset:{f * 1024}'
        a(f'''
        v_add_u32 v126, {L_KVW}, v0
        s_lshr_b32 s28, s20, 2
        s_mul_i32 s28, s28, {GRP}
        s_mul_i32 s29, s19, {KVSTR}
        s_add_u32 s28, s28, s29
        s_add_u32 s28, s28, {KVIMG}
        s_and_b32 s29, s20, 3
        s_lshl_b32 s34, s29, 8
        s_add_u32 s34, s34, s28
        s_lshr_b32 s30, s17, 1
        s_lshl_b32 s31, s30, 2
        s_add_u32 s34, s34, s31
        s_and_b32 s31, s17, 1
        s_lshl_b32 s35, s31, 7
        s_add_u32 s34, s34, s35
        s_lshl_b32 s29, s29, 1
        s_add_u32 s29, s29, s30
        s_mul_i32 s29, s29, {STEP}
        s_add_u32 s28, s28, s29
        s_add_u32 s28, s28, 1024
        s_lshl_b32 s35, s31, 8
        s_add_u32 s35, s35, s28
        s_mul_i32 s36, s31, 608
        s_add_u32 s36, s36, s28
        s_add_u32 s36, s36, 1024
        ''')
        AG = self.a_groups('3p', self.B[2], (RAW, 's58'))
        self.wave_signal('s33')
        self.stamp('p2.flag')
        rid = {}

        def pre():
            for f in range(16):
                a(rdk(f)); rid[f] = a.lg
        self.poll_early('s83', 's33', pre)
        self.stamp('p3.polled')
        for i, g in enumerate(AG):
            self.run(g)
        self.bar('v3')
        for f in range(16, NK):
            a(rdk(f)); rid[f] = a.lg
        a(f'''
        v_lshlrev_b32 v127, 4, v{GG}
        v_lshlrev_b32 v128, 2, v{TOK}
        s_lshl_b32 s28, s17, 9
        s_add_u32 s28, s28, {L_ST}
        v_add_u32 v129, s28, v128
        v_add_u32 v130, s28, v127
        v_add_u32 v127, {L_CS + 12 * 64}, v127
        v_add_u32 v128, {L_CS + 12 * 64}, v128
        s_cmp_ge_u32 s21, 4
        s_cbranch_scc1 {LV}
        ''')
        state = (a.vm, a.lg, dict(rid))

        def chains(kind):
            a.vm, a.lg = state[0], state[1]
            rid = dict(state[2])
            with a.capture() as side:
                if kind == 0:
                    a(f'ds_read_b128 {vr(KC)}, v127')
                    a(f'ds_read_b64 {vr(KC + 4, 2)}, v127 offset:128')
                    a(f'v_lshlrev_b32 v131, 8, v{GG}')
                else:
                    a(f'ds_read2_b32 {vr(KC, 2)}, v128 offset0:16 offset1:32')
                    a(f'v_mul_u32_u24 v131, 304, v{GG}')
                a(f'v_lshl_add_u32 v131, v{TOK}, 4, v131')
                self.stats_finish(RAW)
                if kind == 1:
                    a(f'''
                    ds_write_b32 v129, v{NM}
                    ds_write_b32 v129, v{RS} offset:64
                    ds_read_b128 {vr(PR)}, v130
                    ds_read_b128 {vr(PR + 4)}, v130 offset:64
                    ''')
            nf = NK
            for s in range(18):
                a.wvm(('3p', s))
                a.wait_lg(rid[2 * s + 1])
                x = vr(52 + 4 * s)
                for t in range(2):
                    w = vr(kslot(2 * s + t))
                    c = '0' if s == 0 else vr(KA + 4 * t)
                    a(f'{M16} {vr(KA + 4 * t)}, {w}, {x}, {c}' if kind == 0 else f'{M16} {vr(KA + 4 * t)}, {x}, {w}, {c}')
                    if nf < 36:
                        a(rdk(nf)); rid[nf] = a.lg; nf += 1
                    elif side:
                        a.emit(side.pop(0))
            assert not side
            a('s_waitcnt lgkmcnt(0)')
            NR = vr(NM, 2)
            if kind == 0:
                for r in (0, 2, 4):
                    a(f'v_pk_fma_f32 {vr(KA + r, 2)}, {vr(KC + r, 2)}, {NR}, {vr(KA + r, 2)} op_sel_hi:[1,0,1]')
                for r in (0, 2, 4):
                    a(f'v_pk_mul_f32 {vr(KA + r, 2)}, {vr(KA + r, 2)}, {NR} op_sel:[0,1] op_sel_hi:[1,1]')
                for k in range(4):
                    a(f'v_cvt_pk_bf16_f32 v{132 + k}, v{KA + 2 * (k % 2)}, v{KA + 2 * (k % 2) + 1}')
                a(f'v_cvt_pk_bf16_f32 v136, v{KA + 4}, v{KA + 5}')
                a('v_dot2_f32_bf16 v137, v132, v132, 0')
                a('v_dot2_f32_bf16 v137, v133, v133, v137')
                a('v_permlane16_swap_b32 v132, v134')
                a('v_permlane16_swap_b32 v133, v135')
                self.exec_mask(0x0000ffff0000ffff)
                a(f'buffer_store_dwordx4 v[132:135], v131, {WS}, s35 offen sc1')
                a('s_mov_b32 exec_hi, 0')
                a(f'buffer_store_dword v136, v1, {WS}, s34 offen sc1')
                self.exec_mask(-1)
                a('v_dot2_f32_bf16 v137, v136, v136, v137')
                self.allred(137, 138)
                self.rowmax(137)
            else:
                for t in range(2):
                    for r in (0, 2):
                        a(f'v_pk_fma_f32 {vr(KA + 4 * t + r, 2)}, {vr(PR + r, 2)}, {vr(KC, 2)}, {vr(KA + 4 * t + r, 2)} '
                          f'op_sel:[0,{t},0] op_sel_hi:[1,{t},1]')
                for t in range(2):
                    for r in (0, 2):
                        a(f'v_pk_mul_f32 {vr(KA + 4 * t + r, 2)}, {vr(KA + 4 * t + r, 2)}, {vr(PR + 4 + r, 2)}')
                for t in range(2):
                    for k in range(4):
                        a(f'v_cvt_pk_bf16_f32 v{140 + 4 * t + k}, v{KA + 4 * t + 2 * (k % 2)}, v{KA + 4 * t + 2 * (k % 2) + 1}')
                for d in (140, 144):
                    a(f'v_permlane32_swap_b32 v{d}, v{d + 2}')
                    a(f'v_permlane32_swap_b32 v{d + 1}, v{d + 3}')
                a('s_mov_b32 exec_hi, 0')
                a(f'buffer_store_dwordx4 v[140:143], v131, {WS}, s36 offen sc1')
                a('s_mov_b32 exec_lo, 0x000c000c')
                a(f'buffer_store_dwordx4 v[144:147], v131, {WS}, s36 offen offset:224 sc1')
                self.exec_mask(-1)
                a('v_mov_b32 v137, 0')
            a(f's_branch {LJ}')
        chains(0)
        a(f'{LV}:')
        chains(1)
        a(f'{LNP}:')
        AG = self.a_groups('3n', self.B[2], (RAW, 's58'))
        self.wave_signal('s33')
        self.stamp('p2.flag')
        self.poll('s83', 's33')
        self.stamp('p3.polled')
        self.bar('v3', log=False)
        for g in AG:
            self.run(g)
        a.wvm(('3n', 'st'))
        self.stats_finish(RAW)
        a(f'{LJ}:')
        self.stamp('p3.join')
        NS = 25
        slot = lambda f: 152 + 4 * (f % NS)
        rd = lambda f: f'ds_read_b128 {vr(slot(f))}, v{126 if f >= 60 else 0} offset:{(f % 60) * 1024}'
        rid = {}
        for nf in range(NS - 1):
            a(rd(nf)); rid[nf] = a.lg
        nf = NS - 1
        a(f'''
        v_add_u32 v126, {60 * 1024}, v0
        v_lshlrev_b32 v127, 4, v{GG}
        v_add_u32 v127, {L_CS + 7 * 64}, v127
        s_add_u32 s28, s18, 1
        v_mov_b32 v138, s28
        v_mov_b32 v139, v137
        s_lshl_b32 s34, s19, 15
        s_lshl_b32 s35, s16, 7
        s_add_u32 s34, s34, s35
        s_add_u32 s34, s34, {KVFLAG}
        s_and_b32 s35, s21, 3
        ''')
        with a.capture() as extra:
            a(f'''
            v_mov_b32 v148, {L_RDY}
            v_mov_b32 v149, 1
            v_and_b32 v150, 31, v3
            v_lshrrev_b32 v151, 5, v3
            v_mul_u32_u24 v151, 304, v151
            v_lshl_add_u32 v151, v150, 4, v151
            v_add_u32 v151, {7 * GRP}, v151
            v_cmp_lt_u32 s[62:63], 18, v150
            v_mov_b32 v150, 0x400000
            s_add_u32 s32, s88, s24
            s_add_u32 s32, s32, {self.B[3]}
            v_cndmask_b32 v44, v151, v150, s[62:63]
            s_lshl_b32 s33, s21, 8
            s_add_u32 s33, s33, s32
            s_add_u32 s33, s33, 16384
            s_lshl_b32 s36, s21, 11
            s_add_u32 s32, s32, s36
            s_lshl_b32 s37, s19, 1
            s_add_u32 s37, s37, 2
            v_mov_b32 v128, 0
            v_mov_b32 v129, 0
            v_mov_b32 v130, 0
            v_mov_b32 v131, 0
            v_mov_b32 v45, {L_RDY}
            v_mov_b32 v46, {L_KM}
            ''')
        for s in range(18):
            if s == 4:
                LS, LR = a.label('KVSIG'), a.label('KVRET')
                a('s_cmp_eq_u32 s35, s17')
                a(f's_cbranch_scc1 {LS}')
                a(f'{LR}:')
                self.cold.append(lambda: a(f'''
                {LS}:
                s_waitcnt vmcnt(0)
                s_mov_b64 exec, 0xffff
                buffer_store_dwordx2 v[138:139], v1, {WS}, s34 offen sc1
                s_mov_b64 exec, 1
                ds_add_u32 v148, v149 offset:12
                s_mov_b64 exec, -1
                s_branch {LR}
                '''))
            a.wvm(('3n', s))
            a.wait_lg(rid[5 * s + 4])
            for t in range(5):
                a(f'{M16} {vr(QA + 4 * t)}, {vr(slot(5 * s + t))}, {vr(52 + 4 * s)}, {"0" if s == 0 else vr(QA + 4 * t)}')
                if 9 <= s <= 16 and t < 4:
                    a(f'v_mov_b32 v{48 + 4 * s + t}, 0')
                elif extra:
                    a(extra.pop(0))
                if nf < 90:
                    a(rd(nf)); rid[nf] = a.lg; nf += 1
                elif nf < 95:
                    a(f'ds_read_b128 {vr(52 + 4 * (nf - 90))}, v127 offset:{64 * (nf - 90)}'); nf += 1
        assert not extra
        qs = 18 ** -0.5 * math.log2(math.e)
        NR = vr(NM, 2)
        a(f'v_mul_f32 v{RS}, 0x{f2u(qs):x}, v{RS}')
        for c in range(2):
            for k in (1, 2, 4, 5, 6):
                a(f'v_mov_b32 v{Q2 + 8 * c + k}, 0')
        a('s_waitcnt lgkmcnt(0)')
        for i in (16, 18, 0, 2, 4, 6, 8, 10, 12, 14):
            a(f'v_pk_fma_f32 {vr(QA + i, 2)}, {vr(52 + i, 2)}, {NR}, {vr(QA + i, 2)} op_sel_hi:[1,0,1]')
        for i in (16, 18, 0, 2, 4, 6, 8, 10, 12, 14):
            a(f'v_pk_mul_f32 {vr(QA + i, 2)}, {vr(QA + i, 2)}, {NR} op_sel:[0,1] op_sel_hi:[1,1]')
        for c in range(2):
            b = Q2 + 8 * c
            for k in (0, 3, 7):
                a(f'v_cvt_pk_bf16_f32 v{b + k}, v{QA + 16 + 2 * c}, v{QA + 17 + 2 * c}')
        a('s_waitcnt vmcnt(0)')
        for k in range(8):
            a(f'v_cvt_pk_bf16_f32 v{Q1 + k}, v{QA + 2 * k}, v{QA + 2 * k + 1}')
        for c in range(2):
            a(f'v_permlane32_swap_b32 v{Q2 + 8 * c + 4}, v{Q2 + 8 * c + 7}')
        for c in range(2):
            a(f'v_dot2_f32_bf16 v{156 + c}, v{Q2 + 8 * c}, v{Q2 + 8 * c}, 0')
        for c in range(2):
            a(f'v_permlane16_swap_b32 v{Q1 + 4 * c}, v{Q1 + 4 * c + 2}')
            a(f'v_permlane16_swap_b32 v{Q1 + 4 * c + 1}, v{Q1 + 4 * c + 3}')
        for c in range(2):
            a(f'v_mov_b32 v{Q2 + 8 * c + 7}, v{Q2 + 8 * c + 4}')
        for k in range(4):
            for c in range(2):
                a(f'v_dot2_f32_bf16 v{156 + c}, v{Q1 + 4 * c + k}, v{Q1 + 4 * c + k}, v{156 + c}')

    def p4(self):
        a = self.a
        S = (20, 36)
        SH = (52, 68)
        O = (84, 100)
        P = (116, 124)
        Q1 = (132, 136)
        Q2 = lambda c, t: 140 + 8 * c + 2 * (t % 4)
        K1 = lambda t: 168 + 4 * (t % 2)
        V0 = lambda t: 176 + 8 * (t % 2)
        V1 = lambda t: 180 + 8 * (t % 2)
        K2 = lambda t: 192 + 2 * ((t // 4) % 2)
        vK, vK2, vV = 160, 161, 162
        a('ds_read_b32 v47, v45 offset:12')
        rdy = a.lg
        a(f'''
        v_add_u32 v{vK}, {7 * GRP}, v0
        v_add_u32 v{vK2}, {7 * GRP}, v1
        v_mov_b32 v{vV}, v44
        v_mov_b32 v163, v46
        ''')
        for i in range(4):
            a(f'v_mov_b32 v{V1(1) + i}, 0')
        for c in range(2):
            self.allred(156 + c, 158 + c, only32=True)
        self.stamp('p3.done')
        self.spin(3, 45, 47, rdy, need='s37')
        a('ds_read_b32 v165, v163 offset:12')
        a('s_mov_b32 s34, 1')
        a('s_waitcnt lgkmcnt(0)')
        self.stamp('p4.polled')
        for c in range(2):
            a(f'v_mul_f32 v{158 + c}, v{156 + c}, v165')
        for c in range(2):
            a(f'v_sqrt_f32 v{158 + c}, v{158 + c}')
        for c in range(2):
            for i in range(16):
                a(f'v_sub_f32 v{SH[c] + i}, 0, v{158 + c}')
        LFB, LGO = a.label('FALLBACK'), a.label('GO')
        self.bar('k1')
        a(f'{LGO}:')
        koff = lambda t: 1024 + (t % 8) * STEP
        k2off = lambda t: ((t % 8) // 4) * 512
        a(f'ds_read_b64 {vr(K2(0), 2)}, v{vK2} offset:{k2off(0)}')
        a(f'ds_read_b128 {vr(K1(0))}, v{vK} offset:{koff(0)}')
        a(f'ds_read_b128 {vr(K1(1))}, v{vK} offset:{koff(1)}')
        a(f'ds_read_b128 {vr(V0(0))}, v{vV} offset:{koff(0) + 1024}')
        a(f'ds_read_b128 {vr(V1(0))}, v{vV} offset:{koff(0) + 1024 + 608}')
        a('s_waitcnt lgkmcnt(3)')
        a(f'{M32H} {vr(S[0], 16)}, {vr(K2(0), 2)}, {vr(Q2(0, 0), 2)}, {vr(SH[0], 16)}')
        a(f'{M32} {vr(S[0], 16)}, {vr(K1(0))}, {vr(Q1[0])}, {vr(S[0], 16)}')
        self.stamp('p4.start')
        LA, LD = a.label('ATT'), a.label('ATTD')
        a('s_mov_b32 s35, 0')
        a('s_waitcnt lgkmcnt(0)')
        a('s_nop 8')
        a('.p2align 6')
        a(f'{LA}:')
        e = lambda c, i: f'v_exp_f32 v{S[c] + i}, v{S[c] + i}'
        cv = lambda c, i: f'v_cvt_pk_bf16_f32 v{P[c] + i}, v{S[c] + 2 * i}, v{S[c] + 2 * i + 1}'
        for t in range(8):
            for c in range(2):
                n = 1 - c
                tn = t + c
                tp = t - 1 + c
                g = [[], [], [], []]
                if c == 1 and t in (4, 5, 6):
                    g[2].append(f'v_subrev_u32 v{(vK2, vK, vV)[t - 4]}, {GRP}, v{(vK2, vK, vV)[t - 4]}')
                if c == 0:
                    g[1].append(f'ds_read_b128 {vr(K1(t))}, v{vK} offset:{koff(t + 2)}')
                    g[2].append(f'ds_read_b128 {vr(V1(t + 1))}, v{vV} offset:{koff(t + 1) + 1024 + 608}')
                    g[3].append(f'ds_read_b128 {vr(V0(t + 1))}, v{vV} offset:{koff(t + 1) + 1024}')
                else:
                    if t in (1, 5):
                        g[1].append(f'ds_read_b64 {vr(K2(t + 3), 2)}, v{vK2} offset:{k2off(t + 3)}')
                    g[3].append('s_waitcnt lgkmcnt(0)')
                    if t == 7:
                        g[1].append('s_add_u32 s35, s35, 1')
                        g[2].append('s_cmp_lg_u32 s35, s34')
                a(f'{M32H} {vr(S[n], 16)}, {vr(K2(tn), 2)}, {vr(Q2(n, tn), 2)}, {vr(SH[n], 16)}')
                for x in g[0] + [e(c, 0), e(c, 1), e(c, 2), cv(c, 0), e(c, 3)]: a(x)
                a(f'{M32} {vr(S[n], 16)}, {vr(K1(tn))}, {vr(Q1[n])}, {vr(S[n], 16)}')
                for x in g[1] + [e(c, 4), cv(c, 1), e(c, 5), e(c, 6), cv(c, 2), e(c, 7)]: a(x)
                a(f'{M32} {vr(O[n], 16)}, {vr(V1(tp))}, {vr(P[n] + 4)}, {vr(O[n], 16)}')
                for x in g[2] + [e(c, 8), cv(c, 3), e(c, 9), e(c, 10), cv(c, 4), e(c, 11)]: a(x)
                a(f'{M32} {vr(O[c], 16)}, {vr(V0(t))}, {vr(P[c])}, {vr(O[c], 16)}')
                for x in g[3] + [e(c, 12), cv(c, 5), e(c, 13), e(c, 14), e(c, 15), cv(c, 6), cv(c, 7)]: a(x)
        thr = -1.0 if self.force_fallback else (BTHR / 1.002) ** 2
        a(f'''
        s_cbranch_scc1 {LA}
        s_cmp_eq_u32 s35, 8
        s_cbranch_scc1 {LD}
        ''')
        self.bar('k2')
        self.bars['C'].append('k3')
        a(f'''
        s_mov_b32 s34, 8
        s_cmp_lg_u32 s35, 1
        s_cbranch_scc1 {LA}
        ds_read_b128 v[164:167], v163
        s_mov_b32 s34, 5
        v_max_f32 v158, v156, v157
        v_add_f32 v159, v156, v157
        s_waitcnt lgkmcnt(0)
        v_max3_f32 v197, v164, v165, v166
        v_add_f32 v164, v164, v165
        v_max_f32 v197, v197, v167
        v_add_f32 v166, v166, v167
        v_mul_f32 v158, v158, v197
        v_add_f32 v164, v164, v166
        v_mov_b32 v196, 0x{f2u(thr):x}
        v_cmp_nle_f32 vcc, v158, v196
        v_cmp_u_f32 s[28:29], v159, v164
        s_or_b64 vcc, vcc, s[28:29]
        s_cbranch_vccz {LA}
        ''')
        a(f'{LFB}:')
        a('s_nop 15')
        for i in range(32):
            a(f'v_mov_b32 v{O[0] + i}, 0')
        for i in range(4):
            a(f'v_mov_b32 v{P[1] + 4 + i}, 0')
            a(f'v_mov_b32 v{V1(1) + i}, 0')
        a(f'''
        v_add_u32 v{vV}, {GRP}, v{vV}
        v_mov_b32 v{vK}, v0
        v_mov_b32 v{vK2}, v1
        v_mov_b32 v158, 0x{f2u(-3.0e38):x}
        v_mov_b32 v159, 0x{f2u(-3.0e38):x}
        s_mov_b32 s35, 0
        ''')
        LM = a.label('MAXL')
        a(f'{LM}:')
        for t in range(8):
            if t % 4 == 0:
                a(f'ds_read_b64 {vr(K2(t), 2)}, v{vK2} offset:{k2off(t)}')
            a(f'ds_read_b128 {vr(K1(t))}, v{vK} offset:{koff(t)}')
            a('s_waitcnt lgkmcnt(0)')
            for c in range(2):
                a(f'{M32H} {vr(S[c], 16)}, {vr(K2(t), 2)}, {vr(Q2(c, t), 2)}, 0')
                a(f'{M32} {vr(S[c], 16)}, {vr(K1(t))}, {vr(Q1[c])}, {vr(S[c], 16)}')
            for c in range(2):
                for i in range(8):
                    a(f'v_max3_f32 v{158 + c}, v{158 + c}, v{S[c] + 2 * i}, v{S[c] + 2 * i + 1}')
        a(f'''
        v_add_u32 v{vK}, {GRP}, v{vK}
        v_add_u32 v{vK2}, {GRP}, v{vK2}
        s_add_u32 s35, s35, 1
        s_cmp_lt_u32 s35, 8
        s_cbranch_scc1 {LM}
        v_add_u32 v{vK}, {7 * GRP}, v0
        v_add_u32 v{vK2}, {7 * GRP}, v1
        ''')
        for c in range(2):
            self.allred(158 + c, 164, op='v_max_f32', only32=True)
        for c in range(2):
            for i in range(16):
                a(f'v_sub_f32 v{SH[c] + i}, 0, v{158 + c}')
        a(f's_branch {LGO}')
        a(f'{LD}:')
        a(f'{M32} {vr(O[1], 16)}, {vr(V1(7))}, {vr(P[1] + 4)}, {vr(O[1], 16)}')
        self.stamp('p4.loop')
        for c in range(2):
            o = O[c]
            a(f'v_mov_b32 v{o + 11}, v{o + 10}')
            a(f'v_permlane32_swap_b32 v{o + 10}, v{o + 11}')
            a(f'v_rcp_f32 v{o + 10}, v{o + 10}')
            for i in range(10):
                a(f'v_mul_f32 v{o + i}, v{o + i}, v{o + 10}')
            for k in range(4):
                a(f'v_cvt_pk_bf16_f32 v{116 + 4 * c + k}, v{o + 2 * k}, v{o + 2 * k + 1}')
            a(f'v_cvt_pk_bf16_f32 v{124 + c}, v{o + 8}, v{o + 9}')
        a('v_permlane16_swap_b32 v124, v125')

        def st(f):
            for c in range(2):
                a(f'buffer_store_dwordx4 {vr(116 + 4 * c)}, v0, {WS}, s32 offen offset:{1024 * c}{f}')
            a('s_mov_b32 exec_hi, 0')
            a(f'buffer_store_dwordx2 v[124:125], v1, {WS}, s33 offen{f}')
            self.exec_mask(-1)
        self.scoped(st, 's68')

    def x0_load(self):
        a = self.a
        LX = a.label('NOXT')
        a(f'''
        s_mov_b32 s64, s48
        s_mov_b32 s65, s49
        s_mov_b32 s66, {2048 * 1152}
        v_mul_u32_u24 v25, 1152, v20
        v_lshl_add_u32 v26, v21, 4, v25
        s_lshr_b32 s35, s16, 1
        s_mul_i32 s36, s35, {TILE}
        s_and_b32 s34, s16, 1
        s_lshl_b32 s33, s34, 2
        s_add_u32 s33, s33, s17
        s_mul_i32 s37, s33, 144
        s_add_u32 s37, s37, s36
        buffer_load_dwordx4 v[140:143], v26, s[64:67], s37 offen{self.ntx}
        buffer_load_dwordx4 v[144:147], v26, s[64:67], s37 offen offset:64{self.ntx}
        v_mov_b32 v148, 0
        v_mov_b32 v149, 0
        v_mov_b32 v150, 0
        v_mov_b32 v151, 0
        s_cmp_lg_u32 s17, 0
        s_cbranch_scc1 {LX}
        v_mad_u32_u24 v27, v21, 64, v25
        v_mad_u32_u24 v27, v21, 64, v27
        v_lshl_add_u32 v27, v21, 4, v27
        buffer_load_dwordx4 v[148:151], v27, s[64:67], s37 offen offset:128{self.ntx}
        {LX}:
        ''')

    def x0_store(self):
        a = self.a
        LE, LL, LX4 = a.label('XE'), a.label('XST'), a.label('NOX4')
        self.stats_emit([vr(140 + 4 * i) for i in range(3)], None, 52, 56)
        a(f'''
        s_add_u32 s37, s36, {ACT}
        s_lshl_b32 s38, s35, 10
        s_add_u32 s38, s38, {STATS}
        v_lshlrev_b32 v60, 3, v20
        s_and_b32 s39, s35, 7
        s_lshl_b32 s31, s33, 11
        s_lshl_b32 s32, s33, 7
        s_lshl_b32 s34, s34, 10
        s_add_u32 s34, s34, 16384
        v_cndmask_b32 v52, v52, v53, s[42:43]
        v_cndmask_b32 v54, v54, v55, s[42:43]
        v_cndmask_b32 v57, v52, v54, s[44:45]
        {LL}:
        s_add_u32 s28, s37, s31
        s_add_u32 s29, s37, s34
        s_add_u32 s38, s38, s32
        buffer_store_dwordx4 v[140:143], v0, {WS}, s28 offen sc1
        buffer_store_dwordx4 v[144:147], v0, {WS}, s28 offen offset:1024 sc1
        s_cmp_lg_u32 s17, 0
        s_cbranch_scc1 {LX4}
        buffer_store_dwordx2 v[148:149], v2, {WS}, s29 offen sc1
        buffer_store_dwordx2 v[150:151], v2, {WS}, s29 offen offset:128 sc1
        {LX4}:
        s_mov_b64 exec, s[40:41]
        buffer_store_dwordx2 v[56:57], v60, {WS}, s38 offen sc1
        s_mov_b64 exec, -1
        s_cmp_lg_u32 s39, 7
        s_cbranch_scc1 {LE}
        s_mov_b32 s39, 0
        s_add_u32 s37, s22, 1
        s_and_b32 s37, s37, 15
        s_mul_i32 s37, s37, {HSLOT}
        s_add_u32 s37, s37, {HALO}
        s_add_u32 s38, s37, {TILE}
        s_branch {LL}
        {LE}:
        ''')

    def pcs(self, n):
        a = self.a
        a('s_lshl_b32 s78, s73, 6')
        a('s_add_u32 s77, s77, s78')
        a('v_lshlrev_b32 v30, 2, v3')
        for t in range(n):
            a(f'{M16} {vr(64 + 4 * t)}, {ONES}, {vr(104 + 4 * t)}, 0')
        self.exec_mask(0xffff)
        for t in range(n):
            a(f'buffer_store_dword v{64 + 4 * t}, v30, {WS}, s77 offen sc1')
            a('s_add_u32 s77, s77, 1152')
        self.exec_mask(-1)

    def mat_load(self):
        a = self.a
        a(f'''
        s_cmp_ge_u32 s39, 144
        s_cselect_b32 s71, 1, 0
        s_cmp_ge_u32 s39, 288
        s_cselect_b32 s71, 2, s71
        s_mul_i32 s72, s71, 144
        s_sub_u32 s72, s39, s72
        s_lshr_b32 s73, s72, 3
        s_and_b32 s72, s72, 7
        s_cmp_eq_u32 s71, 0
        s_cselect_b32 s8, s52, s62
        s_cselect_b32 s9, s53, s63
        s_cmp_eq_u32 s71, 1
        s_cselect_b32 s8, s56, s8
        s_cselect_b32 s9, s57, s9
        s_mov_b32 s10, {576 * 1152}
        s_mul_i32 s74, s73, 36
        s_cmp_eq_u32 s71, 0
        s_cselect_b32 s75, 18, 8
        s_cselect_b32 s76, 4, 18
        s_cselect_b32 s77, 8, 4
        s_lshr_b32 s78, s73, 1
        s_mul_i32 s78, s78, 72
        s_and_b32 s79, s73, 1
        s_lshl_b32 s80, s79, 5
        s_add_u32 s78, s78, s80
        s_cmp_eq_u32 s71, 1
        s_cselect_b32 s74, s78, s74
        s_cselect_b32 s75, 4, s75
        s_cselect_b32 s76, 8, s76
        s_cselect_b32 s77, 16, s77
        s_cselect_b32 s78, 64, 16
        s_cselect_b32 s80, 4, 36
        s_cselect_b32 s81, 2, 18
        s_mul_i32 s79, s79, 288
        s_add_u32 s78, s78, s79
        s_cmp_ge_u32 s73, 16
        s_cselect_b32 s74, s78, s74
        s_cselect_b32 s75, s80, s75
        s_cselect_b32 s76, 72, s76
        s_cselect_b32 s77, 144, s77
        s_cselect_b32 s81, s81, 2
        s_mul_i32 s74, s74, 1152
        s_mul_i32 s75, s75, 1152
        s_mul_i32 s76, s76, 1152
        s_mul_i32 s77, s77, 1152
        s_lshl_b32 s78, s72, 7
        s_add_u32 s74, s74, s78
        v_lshrrev_b32 v28, 1, v21
        v_mul_u32_u24 v28, s81, v28
        v_and_b32 v29, 1, v21
        v_add_u32 v28, v28, v29
        v_mul_u32_u24 v28, 1152, v28
        v_lshl_add_u32 v28, v20, 4, v28
        s_mov_b32 s79, s38
        ''')
        for i in range(8):
            a('s_mov_b32 s78, s74')
            if i & 1: a('s_add_u32 s78, s78, s75')
            if i & 2: a('s_add_u32 s78, s78, s76')
            if i & 4: a('s_add_u32 s78, s78, s77')
            a(f's_add_u32 m0, s79, {i * 1024}')
            a('buffer_load_dwordx4 v28, s[8:11], s78 offen lds')
        a(f'''
        v_lshrrev_b32 v30, 2, v20
        v_lshlrev_b32 v30, 4, v30
        v_and_b32 v31, 3, v20
        v_lshl_add_u32 v30, v31, 1, v30
        v_lshlrev_b32 v31, 1, v20
        v_add_u32 v132, 128, v31
        v_bfe_u32 v133, v20, 1, 1
        v_bfe_u32 v134, v20, 2, 1
        v_lshl_add_u32 v133, v133, 1, v134
        v_mul_u32_u24 v133, 36, v133
        v_and_b32 v134, 1, v20
        v_lshl_add_u32 v133, v134, 1, v133
        v_add_u32 v133, 32, v133
        s_cmp_eq_u32 s71, 1
        s_cselect_b64 vcc, -1, 0
        s_cselect_b32 s74, 36, 8
        s_cselect_b32 s75, 72, 64
        s_add_u32 s76, s74, s75
        v_cndmask_b32 v30, v30, v31, vcc
        v_cndmask_b32 v132, v132, v133, vcc
        s_lshl_b32 s78, s72, 4
        s_add_u32 s78, s78, s79
        v_lshlrev_b32 v24, 11, v21
        v_add_u32 v24, s78, v24
        v_add_u32 v30, v30, v24
        v_add_u32 v132, v132, v24
        v_add_u32 v133, s74, v30
        v_add_u32 v134, s75, v30
        v_add_u32 v135, s76, v30
        s_mul_i32 s77, s72, 18
        s_add_u32 s77, s77, s73
        s_mul_i32 s77, s77, 5120
        s_mul_i32 s78, s71, {WSSTR}
        s_add_u32 s77, s77, s78
        s_add_u32 s77, s77, {WS_P}
        s_add_u32 s78, s77, 4096
        v_cmp_le_u32 vcc, 8, v20
        ''')

    def mat_store(self, done):
        a = self.a
        addrs = [30, 133, 134, 135, 132]
        for t in range(5):
            self.gather_lds(addrs[t], 0, 64 + 8 * t)
        a('s_waitcnt lgkmcnt(0)')
        for t in range(5):
            self.gather_pack(104 + 4 * t, 64 + 8 * t)
            if t < 4:
                a(f'buffer_store_dwordx4 {vr(104 + 4 * t)}, v0, {WS}, s77 offen offset:{t * 1024} sc1')
            else:
                for k in range(4):
                    a(f'v_cndmask_b32 v{120 + k}, v{120 + k}, 0, vcc')
                a(f'buffer_store_dwordx4 v[120:123], v0, {WS}, s78 offen sc1')

        a(f'''
        s_cmp_lg_u32 s71, 1
        s_cbranch_scc1 {done}
        s_mul_i32 s77, s72, {5 * 1152}
        s_add_u32 s77, s77, {PCS}
        ''')
        self.pcs(5)

    def kv_load(self):
        a = self.a
        a(f'''
        s_lshr_b32 s74, s73, 1
        s_mul_i32 s74, s74, 72
        s_and_b32 s75, s73, 1
        s_lshl_b32 s76, s75, 5
        s_add_u32 s74, s74, s76
        s_mul_i32 s75, s75, 288
        s_add_u32 s75, s75, 64
        s_cmp_lt_u32 s73, 16
        s_cselect_b32 s74, s74, s75
        s_cselect_b32 s76, 8, 72
        s_mul_i32 s76, s76, 36
        s_mul_i32 s74, s74, 36
        v_mul_u32_u24 v28, s76, v21
        v_and_b32 v29, 1, v20
        v_lshl_add_u32 v29, v29, 1, v28
        v_lshl_add_u32 v28, v20, 1, v28
        s_mov_b32 s8, s58
        s_mov_b32 s9, s59
        s_mov_b32 s10, {576 * 36}
        ''')
        for jj in range(8):
            a(f'v_mov_b32 v{80 + jj}, 0')
        for jj in range(8):
            a(f'buffer_load_ushort v{64 + jj}, v28, s[8:11], s74 offen offset:{36 * jj}')
        self.exec_mask(0x0003000300030003)
        for jj in range(8):
            a(f'buffer_load_ushort v{80 + jj}, v29, s[8:11], s74 offen offset:{36 * jj + 32}')
        a('s_mov_b32 s8, s60')
        a('s_mov_b32 s9, s61')
        self.exec_mask(0x000c000c000c000c)
        for jj in range(8):
            a(f'buffer_load_ushort v{80 + jj}, v29, s[8:11], s74 offen offset:{36 * jj + 32}')
        self.exec_mask(-1)
        for jj in range(8):
            a(f'buffer_load_ushort v{72 + jj}, v28, s[8:11], s74 offen offset:{36 * jj}')

    def kv_store(self):
        a = self.a
        a('s_lshl_b32 s77, s73, 11')
        a(f's_add_u32 s77, s77, {WKV_P}')
        a(f's_add_u32 s78, s77, {36 * 1024}')
        for t in range(3):
            self.gather_pack(104 + 4 * t, 64 + 8 * t)
        for k in range(2):
            a(f'buffer_store_dwordx4 {vr(104 + 4 * k)}, v0, {WS}, s{77 + k} offen sc1')
            a(f'buffer_store_dwordx4 v[112:115], v0, {WS}, s{77 + k} offen offset:1024 sc1')
        a(f's_mov_b32 s77, {PCS + 40 * 1152}')
        self.pcs(3)

    def halo_setup(self):
        a = self.a
        a(f'''
        s_lshl_b32 s28, s19, 4
        s_add_u32 s28, s28, s22
        s_mul_i32 s47, s28, {HSLOT}
        s_add_u32 s47, s47, {HALO}
        v_lshlrev_b32 v24, 8, v3
        v_add_u32 v24, {L_HALO}, v24
        ds_write_b128 v24, {ONES}
        v_lshlrev_b32 v24, 7, v20
        v_add_u32 v24, {L_HALO + 16384}, v24
        ds_write_b128 v24, {ONES}
        ''')

    def touch_setup(self):
        a = self.a
        a(f'''
        v_and_b32 v34, 7, v3
        v_lshlrev_b32 v34, 7, v34
        s_lshl_b32 s28, s23, 10
        v_add_u32 v34, s28, v34
        s_lshl_b32 s28, s23, 7
        s_add_u32 s28, s28, 16384
        v_mov_b32 v35, s28
        v_cmp_gt_u32 vcc, 8, v20
        v_cndmask_b32 v32, v35, v34, vcc
        v_and_b32 v34, 1, v21
        s_lshl_b32 s28, s22, 3
        s_lshl_b32 s29, s17, 1
        s_add_u32 s28, s28, s29
        v_add_u32 v34, s28, v34
        v_mul_u32_u24 v34, {TILE}, v34
        v_add_u32 v32, v32, v34
        v_lshlrev_b32 v34, 7, v20
        s_lshl_b32 s28, s21, 11
        v_add_u32 v34, s28, v34
        v_and_b32 v35, 1, v3
        v_lshlrev_b32 v35, 7, v35
        s_lshl_b32 s28, s21, 8
        s_add_u32 s28, s28, 16384
        v_add_u32 v35, s28, v35
        v_cmp_gt_u32 vcc, 16, v3
        v_cndmask_b32 v33, v35, v34, vcc
        s_lshl_b32 s28, s20, 2
        s_add_u32 s28, s28, s17
        s_lshl_b32 s89, s28, 10
        s_mul_i32 s28, s28, {TILE}
        v_add_u32 v33, s28, v33
        s_lshl_b32 s28, s21, 7
        s_add_u32 s89, s89, s28
        ''')

    def touch(self, reg, buf, stats=None):
        a = self.a
        a(f's_add_u32 s28, s24, {self.B[buf]}')
        a(f'buffer_load_dword v36, v{reg}, {WS}, s28 offen' + (' nt' if 'ntt' in self.exp else ''))
        if stats is not None:
            a('s_add_u32 s28, s89, s25')
            a(f's_add_u32 s28, s28, {self.ST[stats]}')
            a(f'buffer_load_dword v37, v22, {WS}, s28 offen')

    def halo_dma(self, soff, tail):
        a = self.a
        a(f's_add_u32 s97, s47, {soff}')
        a(f's_add_u32 m0, {soff}, {L_HALO}')
        self.exec_mask(0xfefefefefefefefe if tail else 0xfffefffefffefffe)
        a(f'buffer_load_dwordx4 v0, {WS}, s97 offen sc1 lds')
        self.exec_mask(-1)

    def helper(self):
        a = self.a
        self.who = 'H'
        a('L_HELPER:')
        self.x0_load()
        a(f'''
        s_lshr_b32 s30, s23, 1
        s_lshl_b32 s30, s30, 8
        s_add_u32 s30, s30, {WFLAG}
        v_lshl_add_u32 v13, v3, 11, s30
        v_min_u32 v12, 9, v3
        v_lshl_add_u32 v12, v12, 11, s30
        s_lshl_b32 s30, s22, 4
        s_sub_u32 s30, s30, 2
        s_and_b32 s30, s30, 255
        s_lshl_b32 s30, s30, 8
        s_add_u32 s30, s30, {FLAG}
        v_and_b32 v15, 1, v3
        v_lshl_add_u32 v15, v15, 8, s30
        v_cmp_gt_u32 vcc, 18, v3
        v_cndmask_b32 v13, v15, v13, vcc
        buffer_load_dword v249, v13, {WS}, 0 offen sc1
        s_lshl_b32 s30, s16, 2
        s_add_u32 s30, s30, s17
        s_mul_i32 s30, s30, 192
        s_add_u32 s30, s30, {VFLAG}
        v_and_b32 v15, 1, v3
        v_lshlrev_b32 v15, 7, v15
        buffer_load_dword v248, v15, {WS}, s30 offen sc1
        v_mov_b32 v24, {L_CNT}
        v_mov_b32 v28, 0
        v_mov_b32 v29, 0
        v_mov_b32 v30, 0
        v_mov_b32 v31, 0
        ds_write_b128 v24, v[28:31]
        ds_write_b128 v24, v[28:31] offset:32
        s_lshl_b32 s28, s17, 8
        s_add_u32 s28, s28, s16
        s_lshl_b32 s29, s28, 10
        s_add_u32 s29, s29, {KVIMG}
        s_cmp_lt_u32 s28, 320
        s_cselect_b32 s29, s29, 0x7f000000
        buffer_store_dwordx4 {ONES}, v0, {WS}, s29 offen sc1
        ''')
        self.halo_setup()
        self.touch_setup()
        a('s_waitcnt lgkmcnt(0)')
        self.bar('b0a')
        a('s_waitcnt vmcnt(3)')
        self.nonce()
        self.x0_store()
        self.signal('s85', cnt=2)
        a(f'''
        s_lshl_b32 s82, s17, 10
        s_and_b32 s83, s17, 1
        s_lshl_b32 s83, s83, 10
        s_add_u32 s83, s83, 16384
        s_mul_i32 s98, s23, {126 * 1024}
        s_add_u32 s98, s98, {WA_P}
        s_lshl_b32 s39, s17, 8
        s_add_u32 s39, s39, s2
        s_mul_i32 s38, s17, {-26 * 1024}
        s_add_u32 s38, s38, {144 * 1024}
        ''')
        self.bar('b0b')
        LK, LJ, LW, LC = a.label('PKV'), a.label('PJ'), a.label('HW'), a.label('HC')
        a(f'''
        s_cmp_ge_u32 s17, 2
        s_cbranch_scc1 {LW}
        s_cmp_ge_u32 s39, 306
        s_cbranch_scc1 {LJ}
        s_cmp_ge_u32 s39, 288
        s_cbranch_scc1 {LK}
        ''')
        self.mat_load()
        a('s_waitcnt vmcnt(0)')
        self.mat_store(LJ)
        a(f's_branch {LJ}')
        a(f'{LK}:')
        a('s_sub_u32 s73, s39, 288')
        self.kv_load()
        a('s_waitcnt vmcnt(0)')
        self.kv_store()
        a(f'{LJ}:')
        L1 = a.label('R1')
        a('s_cmp_eq_u32 s17, 1')
        a(f's_cbranch_scc1 {L1}')
        a('v_mov_b32 v14, v13')
        self.poll('0', 's85')
        a(f'{L1}:')
        self.signal('s85', cnt=1, off=128, second='s84', mask=1)
        self.stamp('wpoll')
        self.bar('c0')

        def rnd(r, o):
            self.dma_linear('s98', 0, 256, [r], first_kb=o)
            self.dma_linear('s98', 0, 126 if r == 7 else 256, [r], first_kb=o + 8)

        def hal(base='s82'):
            for k in range(4):
                a(f's_add_u32 s96, {base}, {4096 * k}')
                self.halo_dma('s96', False)
        for r in (4, 5, 6):
            rnd(r, 0)
        a('s_waitcnt vmcnt(8)')
        self.post(2)
        a(f's_branch {LC}')
        a(f'{LW}:')
        a('v_mov_b32 v14, v12')
        self.poll('0', 's85')
        self.stamp('wpoll')
        for r in range(4):
            rnd(r, -8)
        a('s_waitcnt vmcnt(16)')
        self.bar('c0', log=False)
        a('s_waitcnt vmcnt(8)')
        self.post(0, 2)
        hal()
        a('s_sub_u32 s31, s82, 2048')
        hal('s31')
        self.halo_dma('s83', True)
        a('s_waitcnt vmcnt(9)')
        self.post(1, 2)
        rnd(7, -8)
        a('s_waitcnt vmcnt(8)')
        self.post(2)
        a(f'{LC}:')
        HQ, HK, HA = 40, 192, 64
        a(f'''
        s_mul_i32 s34, s21, 5
        s_add_u32 s35, s34, 4
        s_add_u32 s34, s34, s17
        s_add_u32 s36, s17, 39
        s_cmp_eq_u32 s17, 0
        s_cselect_b32 s35, s35, s36
        s_mul_i32 s34, s34, 1152
        s_mul_i32 s35, s35, 1152
        s_add_u32 s34, s34, {PCS}
        s_add_u32 s35, s35, {PCS}
        v_lshlrev_b32 v24, 2, v3
        s_mul_i32 s99, s21, {90 * 1024}
        s_add_u32 s99, s99, {WS_P}
        s_add_u32 s98, s99, {WSSTR}
        v_lshlrev_b32 v14, 8, v3
        s_lshl_b32 s30, s17, 14
        s_add_u32 s30, s30, {FLAG + 128}
        ''')
        self.poll('s30', 's85')
        self.bar('c1')
        self.touch(33, 1)
        a(f'''
        s_mov_b32 s8, s62
        s_mov_b32 s9, s63
        s_mov_b32 s10, {576 * 1152}
        s_lshl_b32 s28, s16, 2
        s_add_u32 s28, s28, s17
        s_mul_i32 s28, s28, 768
        v_min_u32 v25, 5, v3
        v_lshlrev_b32 v25, 7, v25
        buffer_load_dword v37, v25, s[8:11], s28 offen
        ''')
        a('L_HCHAIN:')
        self.reg_load('s98', 90, range(6), HQ)
        a('s_waitcnt lgkmcnt(0)')
        self.bar('t1')
        if 'now2' not in self.exp:
            self.dma_linear('s99', 0, 90, range(2))
        self.bar('t2')
        if 'now2' not in self.exp:
            self.dma_linear('s99', 0, 90, range(2, 6))
        LQ, LQ0 = a.label('HAVEQ'), a.label('FIRST')
        a('s_cmp_eq_u32 s19, 0')
        a(f's_cbranch_scc1 {LQ0}')
        a('s_waitcnt vmcnt(0)')
        self.bar('v2')
        a(f'''
        s_branch {LQ}
        {LQ0}:
        s_lshr_b32 s31, s21, 2
        s_mul_i32 s31, s31, {36 * 1024}
        s_add_u32 s31, s31, {WKV_P}
        ''')
        self.reg_load('s31', 36, range(2), HK)
        a('s_add_u32 s97, s31, s82')
        a('s_add_u32 s97, s97, 32768')
        a(f'buffer_load_dwordx4 {vr(HK + 32)}, v0, {WS}, s97 offen sc1')
        for k in range(2):
            for i in range(5):
                a(f'buffer_load_dword v{140 + 5 * k + i}, v24, {WS}, s{34 + k} offen offset:{256 * i} sc1')
        a('s_waitcnt vmcnt(19)')
        self.bar('v2', log=False)
        a('s_waitcnt vmcnt(0)')
        a('v_cmp_gt_u32 vcc, 32, v3')
        for k in range(2):
            b = 140 + 5 * k
            a(f'v_cndmask_b32 v{b + 4}, 0, v{b + 4}, vcc')
            a(f'v_add_f32 v{b}, v{b}, v{b + 1}')
            a(f'v_add_f32 v{b + 2}, v{b + 2}, v{b + 3}')
            a(f'v_add_f32 v{b}, v{b}, v{b + 4}')
            a(f'v_add_f32 v{b}, v{b}, v{b + 2}')
            self.allred(b, b + 1)
        a(f'''
        s_lshl_b32 s28, s17, 6
        s_add_u32 s28, s28, {L_CS + 7 * 64}
        v_lshl_add_u32 v24, v20, 2, s28
        ds_write_b32 v24, v140
        ds_write_b32 v24, v145 offset:256
        {LQ}:
        ''')
        self.reg_dump(36, range(2), HK, L_KVW)
        a(f's_add_u32 s96, s82, {L_KVW + 32768}')
        a('v_add_u32 v25, s96, v0')
        a(f'ds_write_b128 v25, {vr(HK + 32)}')
        a('s_waitcnt vmcnt(0) lgkmcnt(0)')
        self.bar('m2')
        self.reg_dump(90, range(6), HQ)
        a(f'''
        v_lshlrev_b32 v14, 7, v3
        s_lshr_b32 s28, s16, 6
        s_add_u32 s28, s28, s17
        s_add_u32 s28, s28, 1
        s_and_b32 s28, s28, 3
        s_lshl_b32 s30, s19, 15
        s_lshl_b32 s31, s28, 13
        s_add_u32 s30, s30, s31
        s_add_u32 s30, s30, {KVFLAG}
        s_add_u32 s31, s18, 1
        s_mul_i32 s98, s19, {KVSTR}
        s_mul_i32 s28, s28, {2 * GRP}
        s_add_u32 s98, s98, s28
        s_add_u32 s98, s98, {KVIMG}
        s_mul_i32 s32, s17, {2 * GRP}
        s_add_u32 s99, s99, {2 * WSSTR}
        s_lshl_b32 s33, s19, 1
        s_add_u32 s33, s33, 1
        s_lshl_b32 s28, s17, 2
        s_add_u32 s28, s28, {L_KM}
        v_mov_b32 v36, s28
        v_mov_b32 v37, {L_RDY}
        s_waitcnt lgkmcnt(0)
        ''')
        self.bar('v3')
        L3, L4, L5 = a.label('R3'), a.label('R3B'), a.label('R3C')
        a('s_cmp_eq_u32 s17, 3')
        a(f's_cbranch_scc1 {L3}')
        LJ = a.label('PJ')
        a(f'''
        s_add_u32 s39, s17, s19
        s_lshl_b32 s39, s39, 8
        s_add_u32 s39, s39, s2
        s_add_u32 s39, s39, 288
        s_mov_b32 s38, {148 * 1024}
        s_cmp_ge_u32 s39, 432
        s_cbranch_scc1 {LJ}
        ''')
        self.mat_load()
        a('s_waitcnt vmcnt(0)')
        self.mat_store(LJ)
        a(f'{LJ}:')
        self.bar('k1')
        a(f's_branch {L4}')
        a(f'{L3}:')
        a('ds_read_b32 v35, v37 offset:12')
        self.spin(3, 37, 35, a.lg, need='s33')
        a(f'{L4}:')
        self.poll('s30', 's31', wide=34)
        self.stamp('>k0')

        def kv(lo, hi):
            for q in range(lo, hi, 4):
                a(f's_add_u32 s97, s98, {q * 1024}')
                a(f's_add_u32 m0, s32, {q * 1024}')
                for k in range(min(4, hi - q)):
                    a(f'buffer_load_dwordx4 v0, {WS}, s97 offen offset:{k * 1024} sc1 lds')
        kv(18, 26)
        a('s_setprio 2')
        self.allred(35, 34, op='v_max_f32')
        self.rowmax(35)
        a('ds_write_b32 v36, v35')
        a('s_setprio 0')
        a('s_cmp_lg_u32 s17, 3')
        a(f's_cbranch_scc1 {L5}')
        self.post(3)
        a(f'{L5}:')
        kv(26, 37)
        kv(0, 18)
        L6 = a.label('R3D')
        a('s_cmp_lg_u32 s17, 3')
        a(f's_cbranch_scc1 {L6}')
        a('s_waitcnt vmcnt(13)')
        self.bar('k1', log=False)
        a(f'{L6}:')
        a('s_waitcnt vmcnt(0) lgkmcnt(0)')
        self.bar('k2')
        a(f's_mul_i32 s98, s23, {126 * 1024}')
        a(f's_add_u32 s98, s98, {WA_P}')
        LN = a.label('NOWA')
        a('s_cmp_eq_u32 s19, 1')
        a(f's_cbranch_scc1 {LN}')
        a('s_add_u32 s31, s18, 2')
        self.signal('s31', cnt=3, off=128, second='s84')
        self.reg_load('s98', 126, range(8), HA)
        a(f'''
        v_and_b32 v14, 7, v3
        v_lshlrev_b32 v14, 8, v14
        s_lshl_b32 s30, s22, 11
        s_add_u32 s30, s30, {HFLAG}
        buffer_load_dword v36, v14, {WS}, s30 offen sc1
        v_lshlrev_b32 v14, 8, v3
        s_lshl_b32 s30, s17, 14
        s_add_u32 s30, s30, {FLAG + 128}
        ''')
        self.poll('s30', 's31')
        a(f'{LN}:')
        self.bar('k3')
        self.touch(33, 3)
        self.touch(33, 4, 2)
        self.dma_linear('s99', L_W5, 90, range(6))
        a('s_waitcnt vmcnt(0)')
        self.bar('v5')
        LE = a.label('HLAST')
        a('s_cmp_eq_u32 s19, 1')
        a(f's_cbranch_scc1 {LE}')
        self.next_layer()
        self.reg_dump(126, range(3), HA)
        a(f'''
        v_and_b32 v14, 7, v3
        v_lshlrev_b32 v14, 8, v14
        s_lshl_b32 s30, s22, 11
        s_add_u32 s30, s30, {HFLAG}
        s_sub_u32 s98, s99, {WSSTR}
        ''')
        self.bar('m5')
        self.reg_dump(126, range(3, 8), HA)
        self.halo_setup()
        a('s_waitcnt lgkmcnt(0)')
        self.bar('c0', log=False)
        self.poll('s30', 's85')
        hal()
        self.halo_dma('s83', True)
        a(f's_sub_u32 s99, s98, {WSSTR}')
        a('s_waitcnt vmcnt(0)')
        self.post(2)
        self.bar('c1', log=False)
        a('s_branch L_HCHAIN')
        a(f'{LE}:')
        if 'wbl2' in self.exp:
            LB = a.label('NOWB')
            a('s_or_b32 s28, s17, s21')
            a('s_cmp_lg_u32 s28, 0')
            a(f's_cbranch_scc1 {LB}')
            a('buffer_wbl2 sc1')
            a(f'{LB}:')
        self.bar('m5', log=False)
        a('s_endpgm')

    def build(self):
        a = self.a
        self.entry()
        self.p0()
        a('L_LAYER:')
        self.p1()
        self.proj(2)
        self.p3()
        self.p4()
        self.proj(5)
        LH, LH2, LH3, LH4 = a.label('HCP'), a.label('HCP'), a.label('HCP'), a.label('HCP')
        a(f'''
        s_add_u32 s31, s26, 3
        s_and_b32 s37, s20, 1
        s_lshl_b32 s37, s37, 2
        s_add_u32 s37, s37, s17
        s_cmp_eq_u32 s37, 7
        s_cbranch_scc1 {LH}
        s_waitcnt vmcnt(0)
        {LH2}:
        ''')
        self.wave_signal('s31', wait=False)
        a('s_cmp_eq_u32 s37, 7')
        a(f's_cbranch_scc1 {LH3}')
        a(f'{LH4}:')
        self.cold.append(lambda: a(f'''
        {LH}:
        s_add_u32 s38, s22, 1
        s_and_b32 s38, s38, 15
        s_mul_i32 s34, s38, {HSLOT}
        s_add_u32 s34, s34, {HALO + 16 * HSLOT}
        s_lshl_b32 s35, s21, 8
        s_add_u32 s35, s35, s34
        s_add_u32 s35, s35, 16384
        s_lshl_b32 s36, s21, 7
        s_add_u32 s36, s36, s34
        s_add_u32 s36, s36, {TILE}
        s_lshl_b32 s28, s21, 11
        s_add_u32 s34, s34, s28
        buffer_store_dwordx4 v[4:7], v0, {WS}, s34 offen sc1
        buffer_store_dwordx4 v[8:11], v0, {WS}, s34 offen offset:1024 sc1
        s_mov_b32 exec_hi, 0
        buffer_store_dwordx2 v[12:13], v1, {WS}, s35 offen sc1
        s_mov_b64 exec, s[40:41]
        buffer_store_dwordx2 v[44:45], v48, {WS}, s36 offen sc1
        s_mov_b64 exec, -1
        s_waitcnt vmcnt(4)
        s_branch {LH2}
        {LH3}:
        s_lshl_b32 s38, s38, 3
        s_add_u32 s38, s38, s21
        s_lshl_b32 s38, s38, 8
        s_add_u32 s38, s38, {HFLAG}
        s_waitcnt vmcnt(0)
        s_mov_b64 exec, 0xffff
        buffer_store_dwordx2 v[254:255], v1, {WS}, s38 offen sc1
        s_mov_b64 exec, -1
        s_branch {LH4}
        '''))
        self.stamp('p5.flag')
        of = ' sc1' if 'outsc1' in self.exp else (' nt' if 'outnt' in self.exp else '')
        self.next_layer()
        a(f'''
        s_lshl_b32 s82, s22, 1
        s_lshr_b32 s28, s17, 1
        s_add_u32 s82, s82, s28
        s_lshl_b32 s82, s82, 12
        s_and_b32 s28, s17, 1
        s_lshl_b32 s28, s28, 8
        s_add_u32 s82, s82, s28
        s_add_u32 s82, s82, {VFLAG}
        v_bfe_u32 v14, v3, 1, 3
        v_lshlrev_b32 v14, 9, v14
        v_and_b32 v15, 1, v3
        v_lshl_add_u32 v14, v15, 7, v14
        s_branch L_LAYER
        L_FINAL:
        v_and_b32 v20, 15, v3
        v_lshrrev_b32 v21, 4, v3
        v_mul_u32_u24 v20, 1152, v20
        v_lshl_add_u32 v22, v21, 4, v20
        v_lshl_add_u32 v23, v21, 3, v20
        s_mul_i32 s28, s21, 144
        s_add_u32 s28, s28, s88
        buffer_store_dwordx4 v[4:7], v22, s[12:15], s28 offen{of}
        buffer_store_dwordx4 v[8:11], v22, s[12:15], s28 offen offset:64{of}
        s_mov_b32 exec_hi, 0
        buffer_store_dwordx2 v[12:13], v23, s[12:15], s28 offen offset:128{of}
        s_mov_b64 exec, -1
        ''')
        if self.prof:
            a('s_waitcnt vmcnt(0)')
        self.stamp('end')
        a(f'''
        s_or_b32 s28, s16, s17
        s_cmp_lg_u32 s28, 0
        s_cbranch_scc1 L_EXIT
        v_mov_b32 v20, s18
        v_mov_b32 v21, 0
        s_mov_b64 exec, 1
        buffer_store_dword v20, v21, {WS}, 0 offen sc1
        L_EXIT:
        s_endpgm
        ''')
        self.helper()
        for c in self.cold:
            c()
        a('L_CODE_END:')
        assert self.bars['C'] == self.bars['H'], self.bars
        for b in a.check_branches():
            print('BRANCH HAZARD', b, file=sys.stderr)
        head = open(f'cdna_kernels/{NAME}.s.ref').read().split('; Override launch')[0]
        return f'''{head}; @launch grid=(256,1,1) block=({BLOCK},1,1) lds={LDS_BYTES}
.amdgcn_target "amdgcn-amd-amdhsa--gfx950"
.text
.globl {NAME}_kernel
.p2align 8
.type {NAME}_kernel,@function
{NAME}_kernel:
{a.text()}.section .rodata,"a"
.p2align 6
.amdhsa_kernel {NAME}_kernel
  .amdhsa_next_free_vgpr 256
  .amdhsa_next_free_sgpr 102
  .amdhsa_accum_offset 256
  .amdhsa_group_segment_fixed_size 0
  .amdhsa_kernarg_size 88
  .amdhsa_user_sgpr_count 2
  .amdhsa_user_sgpr_kernarg_segment_ptr 1
  .amdhsa_system_sgpr_workgroup_id_x 1
.end_amdhsa_kernel
'''


if __name__ == '__main__':
    import argparse
    ap = argparse.ArgumentParser()
    ap.add_argument('-o', default=f'cdna_kernels/{NAME}.s')
    ap.add_argument('--fallback', action='store_true')
    ap.add_argument('--prof', action='store_true')
    ap.add_argument('--nolocal', action='store_true')
    ap.add_argument('--sep', action='store_true')
    ap.add_argument('--dbg', action='store_true')
    ap.add_argument('--exp', default='')
    args = ap.parse_args()
    g = Gen(args.fallback, args.prof, args.nolocal, args.sep, args.dbg, args.exp)
    txt = g.build()
    open(args.o, 'w').write(txt)
    if args.prof:
        import json; json.dump([g.stamps, g.hstamps], open(args.o + '.json', 'w'))
    print('nops inserted:', g.a.nops, 'lines:', txt.count('\n'), 'barriers:', g.bars['C'])
```

```python
from mb_common import *
import json
def kern(name, vpat, n, step_fn, wave_stride, wg_fn, mode, width='x4'):
    body = []
    for i in range(n):
        body.append(f"    s_add_u32 s40, s36, {step_fn(i)}")
        if mode == 'lds':
            body.append(f"    s_mov_b32 m0, s41")
            body.append(f"    s_nop 0")
            body.append(f"    buffer_load_dword{width} v3, s[16:19], s40 offen lds")
        else:
            d = 8 + 4 * (i % 28)
            body.append(f"    buffer_load_dwordx4 v[{d}:{d+3}], v3, s[16:19], s40 offen")
        if i >= 48:
            body.append("    s_waitcnt vmcnt(48)")
    body = "\n".join(body)
    return f"""
    s_load_dwordx4 s[4:7], s[0:1], 0
    v_mov_b32 v127, v0
    s_and_b32 s32, s2, 7
    s_lshr_b32 s33, s2, 3
{wg_fn}
    s_waitcnt lgkmcnt(0)
    s_mov_b32 s8, s4
    s_mov_b32 s9, s5
    s_mov_b32 s10, 0x100000
    s_mov_b32 s11, 0x20000
    s_mov_b32 s16, s6
    s_mov_b32 s17, s7
    s_mov_b32 s18, 0x8000000
    s_mov_b32 s19, 0x20000
    v_and_b32 v1, 63, v0
{vpat}
    v_lshrrev_b32 v4, 6, v0
    s_nop 1
    v_readfirstlane_b32 s41, v4
    s_nop 3
    s_mul_i32 s42, s41, {wave_stride}
    s_add_u32 s36, s36, s42
    s_lshl_b32 s41, s41, 10
    s_memtime s[12:13]
    s_waitcnt lgkmcnt(0)
{body}
    s_waitcnt vmcnt(0)
    s_mov_b64 exec, -1
    s_memtime s[14:15]
    s_waitcnt lgkmcnt(0)
    v_mov_b32 v4, s12
    v_mov_b32 v5, s14
    v_lshrrev_b32 v2, 6, v127
    s_lshl_b32 s3, s2, 4
    v_add_u32 v2, s3, v2
    v_lshlrev_b32 v2, 4, v2
    buffer_store_dwordx4 v[4:7], v2, s[8:11], 0 offen
    s_waitcnt vmcnt(0)
"""
def pat(lo_bits, lo_mul, hi_mul):
    return f"""    v_and_b32 v2, {(1<<lo_bits)-1}, v1
    v_mul_u32_u24 v2, {lo_mul}, v2
    v_lshrrev_b32 v3, {lo_bits}, v1
    v_mul_u32_u24 v3, {hi_mul}, v3
    v_add_u32 v3, v2, v3
"""
ks=[]; names=[]
def add(nm, nbytes, *a, **kw):
    ks.append(('k_'+nm, kern(nm, *a, **kw), 128)); names.append((nm, 4, nbytes // 1024))
hp = "    s_and_b32 s36, s33, 15\n    s_mul_i32 s36, s36, 72\n    s_add_u32 s36, s36, 0x400000\n"
p5 = """    v_mul_u32_u24 v2, 13108, v1
    v_lshrrev_b32 v2, 16, v2
    v_mul_u32_u24 v5, 5, v2
    v_sub_u32 v5, v1, v5
    v_mul_u32_u24 v3, 1152, v2
    v_lshl_add_u32 v3, v5, 4, v3
    s_mov_b32 exec_hi, 0x0fffffff
"""
add('raw5_lds', 135*1024, p5, 36, lambda i: i*4*3456, 144*3456, hp, 'lds')
p6 = """    v_mul_u32_u24 v2, 10923, v1
    v_lshrrev_b32 v2, 16, v2
    v_mul_u32_u24 v5, 6, v2
    v_sub_u32 v5, v1, v5
    v_mul_u32_u24 v3, 1152, v2
    v_lshl_add_u32 v3, v5, 4, v3
    s_mov_b32 exec_hi, 0x003fffff
"""
hpa = "    s_and_b32 s36, s33, 15\n    s_mul_i32 s36, s36, 72\n    s_and_b32 s36, s36, 0xfff0\n    s_add_u32 s36, s36, 0x400000\n"
add('raw5_al16', 135*1024, p5, 36, lambda i: i*4*3456, 144*3456, hpa, 'lds')
rows = "    s_lshl_b32 s36, s32, 1\n    s_lshr_b32 s34, s33, 4\n    s_add_u32 s36, s36, s34\n    s_mul_i32 s36, s36, 147456\n"
add('seg64_lds', 144*1024, pat(2,16,1152), 36, lambda i: (i//18)*16*1152 + (i%18)*64, 36864, rows, 'lds')
build('pat', ks)
json.dump({'names': names}, open('pat.json', 'w'))
```
